```python
import torch

def _softmax(x, axis=-1):
    return torch.softmax(x, dim=axis)

def _gelu(x):
    return torch.nn.functional.gelu(x, approximate='tanh')

def _silu(x):
    return torch.nn.functional.silu(x)

def _sigmoid(x):
    return torch.sigmoid(x)

def _layernorm(x, axis=-1, eps=1e-05):
    m = x.mean(dim=axis, keepdim=True)
    v = x.var(dim=axis, keepdim=True, unbiased=False)
    return (x - m) / torch.sqrt(v + eps)

def _scatter_add(tgt, idx, src, axis=0):
    return tgt.clone().index_add_(axis, idx, src)

def _segment_sum(src, seg, n):
    out = torch.zeros((n,) + src.shape[1:], dtype=src.dtype)
    return out.index_add_(0, seg, src)

def _pad(x, pw):
    flat = tuple((v for pair in reversed(pw) for v in pair))
    return torch.nn.functional.pad(x, flat)
kernel_name = 'standalone__conformer_family_branchformer__speech'

def setup_inputs():

    _w = lambda a: (lambda t: t.to(torch.bfloat16) if t.is_floating_point() else t)(torch.as_tensor(a))
    B, T, D, K = (2, 1000, 512, 31)
    s = float(D) ** (-0.5)
    return {'x': _w((lambda *s: torch.randn(*s, dtype=torch.bfloat16) * 0.05)(B, T, D)), 'w_q': _w((lambda *s: torch.randn(*s, dtype=torch.bfloat16) * 1.6)(D, D) * s), 'w_k': _w((lambda *s: torch.randn(*s, dtype=torch.bfloat16) * 1.6)(D, D) * s), 'w_v': _w((lambda *s: torch.randn(*s, dtype=torch.bfloat16) * 0.8)(D, D) * s), 'w_ao': _w((lambda *s: torch.randn(*s, dtype=torch.bfloat16) * 0.8)(D, D) * s), 'w_up': _w((lambda *s: torch.randn(*s, dtype=torch.bfloat16) * 1.6)(D, 2 * D) * s), 'dw': _w((lambda *s: torch.randn(*s, dtype=torch.bfloat16) * 1.6)(K, D) * (1.0 / K)), 'w_dn': _w((lambda *s: torch.randn(*s, dtype=torch.bfloat16) * 0.8)(D, D) * s), 'w_merge': _w((lambda *s: torch.randn(*s, dtype=torch.bfloat16) * 0.8)(2 * D, D) * s)}

def reference(x, w_q, w_k, w_v, w_ao, w_up, dw, w_dn, w_merge):
    B, T, D = x.shape
    K = dw.shape[0]
    xa = _layernorm(x, axis=-1)
    q = torch.einsum('btd,de->bte', xa, w_q)
    k = torch.einsum('btd,de->bte', xa, w_k)
    v = torch.einsum('btd,de->bte', xa, w_v)
    logits = torch.einsum('btd,bsd->bts', q, k) * float(D) ** (-0.5)
    attn = _softmax(logits, axis=-1)
    ya = torch.einsum('bts,bsd->btd', attn, v)
    ya = torch.einsum('btd,de->bte', ya, w_ao)
    xc = _layernorm(x, axis=-1)
    h = _gelu(torch.einsum('btd,de->bte', xc, w_up))
    u = h[..., :D].clone()
    g = _layernorm(h[..., D:], axis=-1)
    pad = K // 2
    gp = _pad(g, ((0, 0), (pad, pad), (0, 0)))
    conv = torch.zeros_like(g)
    for i in range(K):
        conv = conv + gp[:, i:i + T, :] * dw[i][None, None, :]
    yc = torch.einsum('btd,de->bte', u * conv, w_dn)
    merged = torch.concatenate([ya, yc], axis=-1)
    out = torch.einsum('btf,fd->btd', merged, w_merge)
    return x + out
```

```python
import re, os

KNAME = "standalone__conformer_family_branchformer__speech_kernel"
_REF = 'standalone__conformer_family_branchformer__speech.s.ref'
HDR = open(_REF).read().split('; Override')[0]

TRANS = ('v_exp_f32', 'v_log_f32', 'v_rcp_f32', 'v_rsq_f32', 'v_sqrt_f32', 'v_sin_f32', 'v_cos_f32')
_reg_re = re.compile(r'^(-|abs\()?\s*([vas])(\d+|\[(\d+):(\d+)\])\)?$')

def regs_of(tok):
    tok = tok.strip()
    if tok in ('vcc', 'exec', 'm0', 'scc'):
        return {tok}
    if tok in ('vcc_lo', 'vcc_hi'):
        return {'vcc'}
    m = _reg_re.match(tok)
    if not m:
        return set()
    k = m.group(2)
    if m.group(4) is not None:
        return {(k, i) for i in range(int(m.group(4)), int(m.group(5)) + 1)}
    return {(k, int(m.group(3)))}

class Ins:
    __slots__ = ('text', 'op', 'ops', 'dst', 'src', 'kind', 'passes', 'srcC', 'srcAB', 'ws', 'dpp', 'sdwa_dst')
    def __init__(self, text):
        self.text = text
        t = text.split(';')[0].strip()
        parts = t.split(None, 1)
        self.op = parts[0] if parts else ''
        rest = parts[1] if len(parts) > 1 else ''
        toks = [x.strip() for x in rest.split(',')] if rest else []
        mods = ''
        if toks:
            last = toks[-1].split(None, 1)
            toks[-1] = last[0] if last else ''
            mods = last[1] if len(last) > 1 else ''
        self.ops = toks
        self.dst, self.src = set(), set()
        self.passes = 0; self.srcC = set(); self.srcAB = set()
        self.ws = 1
        self.dpp = ('quad_perm' in mods or 'row_' in mods or 'wave_' in mods or self.op.endswith('_dpp'))
        self.sdwa_dst = ('dst_sel:' in mods and 'dst_sel:DWORD' not in mods)
        op = self.op
        R = [regs_of(x) for x in toks]
        allr = set().union(*R) if R else set()
        if op == 's_nop':
            self.kind = 'nop'; self.ws = int(toks[0], 0) + 1
        elif op.startswith('v_mfma'):
            self.kind = 'mfma'
            self.passes = 8 if '32x32' in op else 4
            self.dst = R[0]; self.srcAB = R[1] | R[2]; self.srcC = R[3] if len(R) > 3 else set()
            self.src = self.srcAB | self.srcC
        elif op.startswith('v_'):
            self.kind = 'valu'
            base = op.replace('_e32', '').replace('_e64', '').replace('_dpp', '').replace('_sdwa', '')
            if base.startswith('v_permlane') and 'swap' in base:
                self.dst = R[0] | R[1]; self.src = R[0] | R[1]
            elif base.startswith('v_cmp'):
                self.dst = R[0]; self.src = set().union(*R[1:])
            elif base in ('v_add_co_u32', 'v_sub_co_u32', 'v_subrev_co_u32'):
                self.dst = R[0] | R[1]; self.src = set().union(*R[2:])
            elif base in ('v_addc_co_u32', 'v_subb_co_u32'):
                self.dst = R[0] | R[1]; self.src = set().union(*R[2:])
            else:
                self.dst = R[0]; self.src = set().union(*R[1:]) if len(R) > 1 else set()
                if base.startswith(('v_fmac', 'v_dot2c', 'v_writelane')):
                    self.src |= R[0]
                if base == 'v_cndmask_b32' and len(toks) == 3:
                    self.src |= {'vcc'}
        elif op.startswith(('buffer_', 'global_')):
            self.kind = 'vmem'
            lds = re.search(r'\blds\b', mods) or '_lds_' in op
            if op in ('buffer_wbl2', 'buffer_inv'):
                pass
            elif 'load' in op and not lds:
                self.dst = R[0]; self.src = set().union(*R[1:])
            elif 'atomic' in op and 'sc0' in mods:
                self.dst = R[0]; self.src = allr
            else:
                self.src = allr
            if lds: self.src |= {'m0'}
        elif op.startswith('ds_'):
            self.kind = 'ds'
            if op.startswith(('ds_read', 'ds_bpermute', 'ds_permute', 'ds_swizzle')):
                self.dst = R[0]; self.src = set().union(*R[1:])
            else:
                self.src = allr
        elif op.startswith('s_'):
            self.kind = 'salu'
            if op.startswith(('s_cmp', 's_waitcnt', 's_barrier', 's_branch', 's_cbranch', 's_endpgm', 's_sleep', 's_setprio', 's_bitcmp')):
                self.src = allr
            else:
                self.dst = R[0] if R else set(); self.src = set().union(*R[1:]) if len(R) > 1 else set()
                if 'saveexec' in op: self.dst |= {'exec'}
        else:
            self.kind = 'other'

def _isv(r): return isinstance(r, tuple) and r[0] in 'va'
def _iss(r): return (isinstance(r, tuple) and r[0] == 's') or r == 'vcc'

def need(p, c):
    n = 0
    if p.kind == 'valu':
        pv = {r for r in p.dst if _isv(r)}
        ps = {r for r in p.dst if _iss(r)}
        if pv:
            if c.kind == 'mfma' and (pv & c.src): n = max(n, 2)
            if c.kind == 'valu':
                b = c.op
                if b.startswith('v_permlane') and (pv & c.src): n = max(n, 2)
                if c.dpp and (pv & c.src): n = max(n, 2)
                if b.startswith(('v_readlane', 'v_readfirstlane')) and (pv & c.src): n = max(n, 1)
                if p.op.replace('_e32', '').replace('_e64', '') in TRANS and (pv & c.src): n = max(n, 1)
                if p.sdwa_dst and (pv & (c.src | c.dst)): n = max(n, 1)
        if ps:
            if c.kind == 'valu' and (ps & c.src):
                n = max(n, 4 if c.op.startswith(('v_readlane', 'v_writelane')) else 2)
            if c.kind == 'vmem' and (ps & c.src): n = max(n, 5)
            if c.kind == 'salu' and (ps & c.src): n = max(n, 2)
        if 'exec' in p.dst: n = max(n, 5)
    elif p.kind == 'mfma':
        raw = 8 if p.passes == 4 else 12
        if c.kind == 'mfma':
            if p.dst & c.srcAB: n = max(n, raw)
            if p.dst & c.srcC:
                if not (p.dst == c.srcC and p.passes == c.passes): n = max(n, 6 if p.passes == 4 else 10)
            if (p.dst & c.dst) and not (p.dst & c.srcC): n = max(n, raw)
        elif c.kind in ('valu', 'vmem', 'ds'):
            if p.dst & (c.src | c.dst): n = max(n, raw)
            if c.kind == 'valu' and (p.srcC & c.dst): n = max(n, 3 if p.passes == 4 else 7)
    elif p.kind == 'salu':
        if 'm0' in p.dst and c.kind == 'vmem' and 'm0' in c.src: n = max(n, 1)
    elif p.kind == 'vmem':
        if 'store' in p.op and ('x4' in p.op or 'x3' in p.op):
            data = regs_of(p.ops[0]) if p.op.startswith('buffer') else regs_of(p.ops[1])
            if data & c.dst: n = max(n, 2 if c.kind == 'valu' else 1)
    return n

class Asm:
    def __init__(self):
        self.lines = []
        self.uid = 0
    def __call__(self, s=''):
        for l in s.split('\n'):
            l = l.strip()
            if l: self.lines.append(l)
    def label(self, n): self.lines.append(n + ':')
    def new(self, p='L'):
        self.uid += 1
        return f'{p}_{self.uid}'
    def text(self, pad=True):
        out = []; hist = []
        for l in self.lines:
            if l.endswith(':') or l.startswith(('.', ';')):
                out.append(l if l.endswith(':') else '    ' + l)
                continue
            c = Ins(l)
            if pad:
                req = 0; dist = 0
                for p in reversed(hist):
                    nd = need(p, c)
                    if nd > dist: req = max(req, nd - dist)
                    dist += p.ws
                    if dist >= 24: break
                while req > 0:
                    k = min(req, 16)
                    nop = Ins(f's_nop {k-1}')
                    out.append('    ' + nop.text); hist.append(nop); req -= k
            out.append('    ' + l); hist.append(c)
            if len(hist) > 64: hist = hist[-40:]
        return '\n'.join(out) + '\n'

def desc(name, vgpr, agpr, sgpr):
    acc = (vgpr + 3) // 4 * 4
    nfv = acc + agpr if agpr else vgpr
    return f""".amdhsa_kernel {name}
  .amdhsa_next_free_vgpr {nfv}
  .amdhsa_next_free_sgpr {sgpr}
  .amdhsa_accum_offset {acc}
  .amdhsa_group_segment_fixed_size 0
  .amdhsa_kernarg_size 96
  .amdhsa_user_sgpr_count 2
  .amdhsa_user_sgpr_kernarg_segment_ptr 1
  .amdhsa_system_sgpr_workgroup_id_x 1
.end_amdhsa_kernel
"""

def module(kernels, launches=None):
    byname = {k['name']: k for k in kernels}
    launches = launches or [k['name'] for k in kernels]
    s = HDR
    if len(launches) == 1 and launches[0] == KNAME:
        k = byname[KNAME]
        s += f"; @launch grid=({k['grid']},1,1) block=({k['block']},1,1) lds={k['lds']}\n"
    else:
        for n in launches:
            k = byname[n]
            s += f"; @launch kernel={n} grid=({k['grid']},1,1) block=({k['block']},1,1) lds={k['lds']}\n"
    s += '.amdgcn_target "amdgcn-amd-amdhsa--gfx950"\n.text\n'
    for k in kernels:
        n = k['name']
        s += f".globl {n}\n.p2align 8\n.type {n},@function\n{n}:\n{k['body']}"
    s += '.section .rodata,"a"\n.p2align 6\n'
    for k in kernels:
        s += desc(k['name'], k.get('vgpr', 256), k.get('agpr', 0), k.get('sgpr', 102))
    return s
```

```python
from asm import *
MB = 1 << 20
QF = 0 * MB
KF = 2 * MB
VF = 4 * MB
UF = 6 * MB
G  = 8 * MB
GS = 10 * MB
WO1 = 10 * MB + 512 * 1024
WO2 = 11 * MB
ML = 11 * MB + 512 * 1024
PF = 12 * MB
VT = 16 * MB
UC = 18 * MB
WS_BYTES = 20 * MB
OUT_BYTES = 2048000
SRD3 = 0x20000

def srd(a, s, lo, hi, nbytes):
    a(f's_mov_b32 s{s}, s{lo}'); a(f's_mov_b32 s{s+1}, s{hi}')
    a(f's_mov_b32 s{s+2}, {nbytes}'); a(f's_mov_b32 s{s+3}, {SRD3}')

def v(r, n=1): return f'v{r}' if n == 1 else f'v[{r}:{r+n-1}]'
def ag(r, n=1): return f'a{r}' if n == 1 else f'a[{r}:{r+n-1}]'
def s(r, n=1): return f's{r}' if n == 1 else f's[{r}:{r+n-1}]'
```

```python
from common import *

R = 6
STG = 24576
NST = 16
LOG2E = 1.4426950408889634
GC0 = -2.0 * 0.7978845608028654 * LOG2E
GC1 = GC0 * 0.044715

def f32(x):
    import struct
    return '0x%08x' % struct.unpack('<I', struct.pack('<f', x))[0]

def gelu(a, y, t, sC0, sC1):
    a(f'v_mul_f32 {v(t)}, {v(y)}, {v(y)}')
    a(f'v_fma_f32 {v(t)}, {v(t)}, s{sC1}, {v(t+1)}')
    a(f'v_mul_f32 {v(t)}, {v(t)}, {v(y)}')
    a(f'v_exp_f32 {v(t)}, {v(t)}')
    a(f'v_add_f32 {v(t)}, 1.0, {v(t)}')
    a(f'v_rcp_f32 {v(t)}, {v(t)}')
    a(f'v_mul_f32 {v(y)}, {v(y)}, {v(t)}')

def build(name='k1_kernel'):
    a = Asm()
    ACC = 0
    AF, AS, AG = 40, 44, 48
    AC = 52
    FR = 72
    ONES = 144
    AX0, AX1, AW, AFA, AFB = 148, 151, 154, 157, 160
    VX, V1, V2 = 163, 164, 165
    LANE, T0 = 166, 168
    def fr(st, what, i=0):
        b = FR + st * 36
        return {'x': b + 4 * i, 'w': b + 8 + 4 * i, 'fa': b + 28, 'fb': b + 32}[what]
    sX, s1, s2_, sW = 24, 28, 32, 36
    sW8, sWR, sWC, sRT, sCT, sF, sIB, sJB = 40, 41, 42, 43, 44, 45, 46, 47
    sO1, sS1, sO2, sS2, sM0, sOX = 48, 49, 50, 51, 52, 53
    sT, sT2, sT3 = 54, 55, 56
    sC0, sC1 = 58, 59

    a('s_cmp_ge_u32 s2, 256'); a('s_cbranch_scc1 K1_END')
    a('s_load_dwordx16 s[4:19], s[0:1], 0')
    a('s_load_dwordx2 s[20:21], s[0:1], 64')
    a('s_load_dwordx2 s[22:23], s[0:1], 88')
    a(f'v_lshrrev_b32 {v(T0)}, 6, v0'); a(f'v_and_b32 {v(LANE)}, 63, v0')
    a(f'v_readfirstlane_b32 s{sW8}, {v(T0)}')
    a(f's_and_b32 s{sT}, s2, 7'); a(f's_lshr_b32 s{sT2}, s2, 3')
    a(f's_and_b32 s{sRT}, s{sT}, 1'); a(f's_lshl_b32 s{sRT}, s{sRT}, 3')
    a(f's_and_b32 s{sT3}, s{sT2}, 7'); a(f's_add_u32 s{sRT}, s{sRT}, s{sT3}')
    a(f's_lshr_b32 s{sCT}, s{sT}, 1'); a(f's_lshl_b32 s{sCT}, s{sCT}, 2')
    a(f's_lshr_b32 s{sJB}, s{sT2}, 3'); a(f's_add_u32 s{sCT}, s{sCT}, s{sJB}')
    a(f's_and_b32 s{sF}, s{sT}, 1')
    a(f's_lshr_b32 s{sIB}, s{sT}, 1'); a(f's_and_b32 s{sIB}, s{sIB}, 1'); a(f's_lshl_b32 s{sIB}, s{sIB}, 3')
    a(f's_add_u32 s{sIB}, s{sIB}, s{sT3}')
    a(f's_lshr_b32 s{sT}, s{sT}, 2'); a(f's_lshl_b32 s{sT}, s{sT}, 2'); a(f's_add_u32 s{sJB}, s{sJB}, s{sT}')
    a(f's_and_b32 s{sWR}, s{sW8}, 3'); a(f's_lshr_b32 s{sWC}, s{sW8}, 2')
    a(f's_lshl_b32 s{sM0}, s{sW8}, 10')
    a('s_waitcnt lgkmcnt(0)')
    srd(a, sX, 4, 5, OUT_BYTES)
    srd(a, sW, 22, 23, WS_BYTES)
    a(f's_lshr_b32 s{sT}, s{sW8}, 1')
    a(f's_cmp_eq_u32 s{sT}, 1'); a(f's_cselect_b32 s{s1}, s8, s6'); a(f's_cselect_b32 s{s1+1}, s9, s7')
    a(f's_cmp_eq_u32 s{sT}, 2'); a(f's_cselect_b32 s{s1}, s10, s{s1}'); a(f's_cselect_b32 s{s1+1}, s11, s{s1+1}')
    a(f's_cmp_eq_u32 s{sT}, 3'); a(f's_cselect_b32 s{s1}, s14, s{s1}'); a(f's_cselect_b32 s{s1+1}, s15, s{s1+1}')
    a(f's_mov_b32 s{s1+2}, {1 << 19}'); a(f's_cselect_b32 s{s1+2}, {1 << 20}, s{s1+2}'); a(f's_mov_b32 s{s1+3}, {SRD3}')
    a(f's_mov_b32 s{sS1}, 32768'); a(f's_cselect_b32 s{sS1}, 65536, s{sS1}')
    a(f's_cselect_b32 s{sT2}, 11, 10')
    a(f's_cmp_eq_u32 s{sF}, 1'); a(f's_cselect_b32 s{s2_}, s18, s12'); a(f's_cselect_b32 s{s2_+1}, s19, s13')
    a(f's_cmp_eq_u32 s{sT}, 0'); a(f's_cselect_b32 s{s2_}, s14, s{s2_}'); a(f's_cselect_b32 s{s2_+1}, s15, s{s2_+1}')
    a(f's_cmp_ge_u32 s{sT}, 2'); a(f's_cselect_b32 s{s2_}, s20, s{s2_}'); a(f's_cselect_b32 s{s2_+1}, s21, s{s2_+1}')
    a(f's_cmp_eq_u32 s{sT}, 1'); a(f's_mov_b32 s{s2_+2}, {1 << 20}'); a(f's_cselect_b32 s{s2_+2}, {1 << 19}, s{s2_+2}'); a(f's_mov_b32 s{s2_+3}, {SRD3}')
    L = v(LANE)
    t0, t1, t2, t3, t4 = (v(T0 + i) for i in range(5))
    a(f'v_lshrrev_b32 {t0}, 2, {L}')
    a(f'v_and_b32 {t1}, 3, {L}')
    a(f'v_lshrrev_b32 {t2}, 5, {L}')
    a(f'v_mul_u32_u24 {t3}, 3, {t2}'); a(f'v_xor_b32 {t3}, {t3}, {t1}'); a(f'v_lshlrev_b32 {t3}, 4, {t3}')
    a(f'v_lshlrev_b32 {t4}, 1, {t2}'); a(f'v_xor_b32 {t4}, {t4}, {t1}'); a(f'v_lshlrev_b32 {t4}, 4, {t4}')
    a(f's_lshr_b32 s{sT3}, s{sRT}, 3'); a(f's_mul_i32 s{sT3}, s{sT3}, 1000')
    a(f's_and_b32 s{sOX}, s{sRT}, 7'); a(f's_lshl_b32 s{sOX}, s{sOX}, 7'); a(f's_add_u32 s{sT3}, s{sT3}, s{sOX}')
    a(f's_lshl_b32 s{sOX}, s{sW8}, 4'); a(f's_add_u32 s{sT3}, s{sT3}, s{sOX}')
    a(f'v_add_u32 {v(VX)}, s{sT3}, {t0}'); a(f'v_lshlrev_b32 {v(VX)}, 10, {v(VX)}'); a(f'v_add_u32 {v(VX)}, {v(VX)}, {t3}')
    a(f's_and_b32 s{sT3}, s{sW8}, 1'); a(f's_lshl_b32 s{sT3}, s{sT3}, 4')
    a(f'v_add_u32 {v(V1)}, s{sT3}, {t0}'); a(f'v_lshlrev_b32 {v(V1)}, s{sT2}, {v(V1)}')
    a(f's_lshl_b32 s{sOX}, s{sCT}, 6')
    a(f'v_add_u32 {v(V1)}, s{sOX}, {v(V1)}'); a(f'v_add_u32 {v(V1)}, {v(V1)}, {t4}')
    lA, lB, lD = a.new('K1S2A'), a.new('K1S2B'), a.new('K1S2D')
    a(f's_cmp_eq_u32 s{sT}, 1'); a(f's_cbranch_scc1 {lA}')
    a(f's_cmp_ge_u32 s{sT}, 2'); a(f's_cbranch_scc1 {lB}')
    a(f'v_add_u32 {v(V2)}, s{sT3}, {t0}'); a(f'v_lshlrev_b32 {v(V2)}, 11, {v(V2)}')
    a(f's_add_u32 s{sOX}, s{sOX}, 1024')
    a(f'v_add_u32 {v(V2)}, s{sOX}, {v(V2)}'); a(f'v_add_u32 {v(V2)}, {v(V2)}, {t4}')
    a(f's_mov_b32 s{sS2}, 65536'); a(f's_branch {lD}')
    a.label(lA)
    a(f's_lshl_b32 s{sOX}, s{sIB}, 5'); a(f's_add_u32 s{sOX}, s{sOX}, s{sT3}')
    a(f'v_add_u32 {v(V2)}, s{sOX}, {t0}'); a(f'v_lshlrev_b32 {v(V2)}, 10, {v(V2)}'); a(f'v_add_u32 {v(V2)}, {v(V2)}, {t3}')
    a(f's_mov_b32 s{sS2}, 64'); a(f's_branch {lD}')
    a.label(lB)
    a(f's_lshl_b32 s{sOX}, s{sF}, 9'); a(f's_add_u32 s{sOX}, s{sOX}, s{sT3}')
    a(f'v_add_u32 {v(V2)}, s{sOX}, {t0}'); a(f'v_lshlrev_b32 {v(V2)}, 10, {v(V2)}')
    a(f's_lshl_b32 s{sOX}, s{sJB}, 7'); a(f's_lshr_b32 s{sT3}, s{sW8}, 1'); a(f's_and_b32 s{sT3}, s{sT3}, 1')
    a(f's_lshl_b32 s{sT3}, s{sT3}, 6'); a(f's_add_u32 s{sOX}, s{sOX}, s{sT3}')
    a(f'v_add_u32 {v(V2)}, s{sOX}, {v(V2)}'); a(f'v_add_u32 {v(V2)}, {v(V2)}, {t4}')
    a(f's_mov_b32 s{sS2}, 32768')
    a.label(lD)
    a(f's_mov_b32 s{sOX}, 0'); a(f's_mov_b32 s{sO1}, 0'); a(f's_mov_b32 s{sO2}, 0')

    def dma(st):
        base = (st % R) * STG
        a(f's_add_u32 m0, s{sM0}, {base}')
        a(f'buffer_load_dwordx4 {v(VX)}, s[{sX}:{sX+3}], s{sOX} offen lds')
        a(f's_add_u32 m0, s{sM0}, {base + 8192}')
        a(f'buffer_load_dwordx4 {v(V1)}, s[{s1}:{s1+3}], s{sO1} offen lds')
        a(f's_add_u32 m0, s{sM0}, {base + 16384}')
        a(f'buffer_load_dwordx4 {v(V2)}, s[{s2_}:{s2_+3}], s{sO2} offen lds')
        a(f's_add_u32 s{sOX}, s{sOX}, 64'); a(f's_add_u32 s{sO1}, s{sO1}, s{sS1}'); a(f's_add_u32 s{sO2}, s{sO2}, s{sS2}')
    for st in range(R): dma(st)

    a(f'v_and_b32 {t0}, 15, {L}')
    a(f'v_lshrrev_b32 {t1}, 4, {L}')
    a(f'v_lshrrev_b32 {t2}, 3, {t0}'); a(f'v_mul_u32_u24 {t2}, 3, {t2}'); a(f'v_xor_b32 {t2}, {t2}, {t1}')
    a(f'v_lshlrev_b32 {t2}, 4, {t2}'); a(f'v_lshl_add_u32 {t2}, {t0}, 6, {t2}')
    a(f's_lshl_b32 s{sT}, s{sWR}, 1'); a(f's_add_u32 s{sT2}, s{sT}, s{sWC}'); a(f's_lshl_b32 s{sT2}, s{sT2}, 10')
    a(f'v_add_u32 {v(AX0)}, s{sT2}, {t2}')
    a(f's_xor_b32 s{sT2}, s{sT2}, 1024')
    a(f'v_add_u32 {v(AX1)}, s{sT2}, {t2}')
    a(f's_and_b32 s{sT2}, s{sW8}, 1'); a(f's_lshl_b32 s{sT2}, s{sT2}, 10'); a(f's_add_u32 s{sT2}, s{sT2}, 18432')
    a(f'v_add_u32 {v(AFA)}, s{sT2}, {t2}')
    a(f'v_lshrrev_b32 {t2}, 1, {t1}'); a(f'v_lshlrev_b32 {t2}, 10, {t2}')
    a(f'v_and_b32 {t3}, 1, {t1}')
    a(f'v_lshl_add_u32 {t2}, {t3}, 9, {t2}')
    a(f'v_bfe_u32 {t4}, {L}, 2, 2'); a(f'v_lshl_add_u32 {t2}, {t4}, 6, {t2}')
    a(f'v_and_b32 {t4}, 1, {L}'); a(f'v_lshl_add_u32 {t2}, {t4}, 3, {t2}')
    a(f'v_bfe_u32 {t4}, {L}, 1, 1')
    a(f'v_lshlrev_b32 {t3}, 1, {t3}'); a(f'v_xor_b32 {t3}, {t3}, {t4}')
    a(f's_lshl_b32 s{sT2}, s{sWC}, 1')
    a(f'v_xor_b32 {t4}, s{sT2}, {t3}'); a(f'v_lshl_add_u32 {t4}, {t4}, 4, {t2}')
    a(f'v_add_u32 {v(AW)}, 8192, {t4}')
    a(f's_lshr_b32 s{sT}, s{sW8}, 1'); a(f's_and_b32 s{sT2}, s{sT}, 1'); a(f's_lshl_b32 s{sT2}, s{sT2}, 1')
    a(f'v_xor_b32 {t4}, s{sT2}, {t3}'); a(f'v_lshl_add_u32 {t4}, {t4}, 4, {t2}')
    a(f's_lshr_b32 s{sT}, s{sT}, 1'); a(f's_lshl_b32 s{sT}, s{sT}, 11'); a(f's_add_u32 s{sT}, s{sT}, 20480')
    a(f'v_add_u32 {v(AFB)}, s{sT}, {t4}')
    for base in (AX0, AX1, AW, AFA, AFB):
        a(f'v_add_u32 {v(base+1)}, {2*STG}, {v(base)}'); a(f'v_add_u32 {v(base+2)}, {4*STG}, {v(base)}')
    for i in range(4): a(f'v_mov_b32 {v(ONES+i)}, 0x3f803f80')
    for i in range(72): a(f'v_mov_b32 {v(ACC+i)}, 0')

    def reads(st):
        r = st % R; cp = r // 2; off = (r & 1) * STG; se = st & 1
        out = []
        out.append(f'ds_read_b128 {v(fr(se,"x",0),4)}, {v(AX0+cp)} offset:{off}')
        out.append(f'ds_read_b128 {v(fr(se,"x",1),4)}, {v(AX1+cp)} offset:{off}')
        for m in range(5):
            for e in range(2):
                out.append(f'ds_read_b64_tr_b16 {v(fr(se,"w",m)+2*e,2)}, {v(AW+cp)} offset:{off + m*2048 + e*256}')
        out.append(f'ds_read_b128 {v(fr(se,"fa"),4)}, {v(AFA+cp)} offset:{off}')
        for e in range(2):
            out.append(f'ds_read_b64_tr_b16 {v(fr(se,"fb")+2*e,2)}, {v(AFB+cp)} offset:{off + e*256}')
        return out
    def mfmas(st, wr):
        se = st & 1; out = []
        mm = lambda d, x, y: f'v_mfma_f32_16x16x32_bf16 {v(d,4)}, {v(x,4)}, {v(y,4)}, {v(d,4)}'
        for m in range(5):
            for sl in range(2):
                out.append(mm(ACC + (m*2+sl)*4, fr(se,'w',m), fr(se,'x',sl)))
        out.append(mm(AF, fr(se,'fa'), fr(se,'fb')))
        out.append(mm(AS, ONES, fr(se,'x',0)))
        out.append(mm(AG, fr(se,'x',0), fr(se,'x',0)))
        m1 = (wr + st) & 3
        out.append(mm(AC + 4*m1, fr(se,'w',m1), ONES))
        if (st & 3) == wr: out.append(mm(AC + 16, fr(se,'w',4), ONES))
        return out

    a(f's_waitcnt vmcnt({3*(R-1)})'); a('s_barrier')
    for l in reads(0): a(l)
    labs = [a.new('K1V') for _ in range(4)]
    lE = a.new('K1EPI')
    for wr in range(1, 4):
        a(f's_cmp_eq_u32 s{sWR}, {wr}'); a(f's_cbranch_scc1 {labs[wr]}')
    for wr in range(4):
        a.label(labs[wr])
        for st in range(NST):
            issued = min(st + R - 1, NST - 1)
            outst = max(0, issued - (st + 1)) * 3 if st + 1 < NST else 0
            a(f's_waitcnt vmcnt({outst}) lgkmcnt(0)')
            a('s_barrier')
            if st + R < NST: dma(st + R)
            rd = reads(st + 1) if st + 1 < NST else []
            mf = mfmas(st, wr)
            n = max(len(rd), len(mf))
            for i in range(n):
                if i < len(mf): a(mf[i])
                if i < len(rd): a(rd[i])
        if wr < 3: a(f's_branch {lE}')
    a.label(lE)

    ST, CS = 0, 1024
    TR = FR
    a(f'v_and_b32 {t0}, 15, {L}')
    a(f'v_lshrrev_b32 {t1}, 4, {L}')
    a(f'v_and_b32 {t2}, 3, {t0}')
    d = v(TR)
    a(f'v_cmp_eq_u32 vcc, 1, {t2}'); a(f'v_cndmask_b32 {d}, {v(AG)}, {v(AG+1)}, vcc')
    a(f'v_cmp_eq_u32 vcc, 2, {t2}'); a(f'v_cndmask_b32 {d}, {d}, {v(AG+2)}, vcc')
    a(f'v_cmp_eq_u32 vcc, 3, {t2}'); a(f'v_cndmask_b32 {d}, {d}, {v(AG+3)}, vcc')
    mean, var = v(TR+2), v(TR+3)
    a(f's_mov_b32 s{sT}, {f32(1/512)}'); a(f's_mov_b32 s{sT2}, {f32(1e-5)}')
    a(f'v_mul_f32 {mean}, s{sT}, {v(AS)}')
    a(f'v_mul_f32 {d}, s{sT}, {d}')
    a(f'v_fma_f32 {var}, -{mean}, {mean}, {d}')
    a(f'v_max_f32 {var}, 0, {var}'); a(f'v_add_f32 {var}, s{sT2}, {var}')
    a(f'v_rsq_f32 {var}, {var}')
    a(f's_lshl_b32 s{sT}, s{sWR}, 5'); a(f's_lshl_b32 s{sT3}, s{sWC}, 4'); a(f's_add_u32 s{sT}, s{sT}, s{sT3}')
    a(f'v_add_u32 {t2}, s{sT}, {t0}'); a(f'v_lshlrev_b32 {t2}, 3, {t2}')
    a(f'v_lshrrev_b32 {t3}, 2, {t0}')
    a(f'v_cmp_eq_u32 vcc, {t3}, {t1}')
    a(f's_and_saveexec_b64 s[60:61], vcc')
    a(f'ds_write_b64 {t2}, {v(TR+2,2)} offset:{ST}')
    a('s_mov_b64 exec, s[60:61]')
    a(f's_lshl_b32 s{sT}, s{sWR}, 1'); a(f's_add_u32 s{sT}, s{sT}, s{sWC}'); a(f's_mul_i32 s{sT}, s{sT}, 320')
    a(f'v_lshlrev_b32 {t3}, 4, {t1}'); a(f'v_add_u32 {t4}, s{sT}, {t3}')
    a(f'v_cmp_eq_u32 vcc, 0, {t0}')
    a(f's_and_saveexec_b64 s[60:61], vcc')
    for m in range(5): a(f'ds_write_b128 {t4}, {v(AC+4*m,4)} offset:{CS + m*64}')
    a('s_mov_b64 exec, s[60:61]')
    a('s_waitcnt lgkmcnt(0)'); a('s_barrier')
    a(f's_mul_i32 s{sT}, s{sWC}, 320'); a(f'v_add_u32 {t4}, s{sT}, {t3}')
    for m in range(5):
        for w in range(3):
            a(f'ds_read_b128 {v(TR + (m*3+w)*4, 4)}, {t4} offset:{CS + (w+1)*640 + m*64}')
        a(f'ds_read_b128 {v(AC+4*m,4)}, {t4} offset:{CS + m*64}')
    STA = 136
    a(f'ds_read_b64 {v(STA,2)}, {t2} offset:{ST}')
    a(f'v_xor_b32 {t2}, 128, {t2}')
    a(f'ds_read_b64 {v(STA+2,2)}, {t2} offset:{ST}')
    a('s_waitcnt lgkmcnt(0)')
    for m in range(5):
        for w in range(3):
            for r in range(4):
                a(f'v_add_f32 {v(AC+4*m+r)}, {v(AC+4*m+r)}, {v(TR+(m*3+w)*4+r)}')
    for m in range(5):
        for sl in range(2):
            for r in range(4):
                x = ACC + (m*2+sl)*4 + r
                a(f'v_fma_f32 {v(x)}, -{v(STA+2*sl)}, {v(AC+4*m+r)}, {v(x)}')
                a(f'v_mul_f32 {v(x)}, {v(x)}, {v(STA+2*sl+1)}')
    VA, VG, VS = TR, TR+1, TR+2
    a(f'v_and_b32 {t2}, 1, {t1}'); a(f'v_xor_b32 {t2}, s{sWC}, {t2}')
    a(f'v_lshrrev_b32 {t3}, 1, {t1}')
    a(f'v_lshl_add_u32 {t4}, {t2}, 4, {t0}')
    a(f'v_lshl_add_u32 {v(VA)}, {t3}, 5, {t4}'); a(f'v_lshlrev_b32 {v(VA)}, 4, {v(VA)}')
    a(f's_lshl_b32 s{sT}, s{sRT}, 2'); a(f's_add_u32 s{sT}, s{sT}, s{sWR}')
    a(f's_lshl_b32 s{sT2}, s{sCT}, 1'); a(f's_add_u32 s{sT2}, s{sT2}, s{sWC}')
    a(f's_lshl_b32 s{sT3}, s{sT}, 15'); a(f's_lshl_b32 s{sOX}, s{sT2}, 10'); a(f's_add_u32 s{sOX}, s{sOX}, s{sT3}')
    a(f's_lshl_b32 s{sT3}, s{sT}, 5')
    a(f'v_add_u32 {v(VS)}, s{sT3}, {t4}')
    a(f'v_lshlrev_b32 {v(VG)}, 10, {v(VS)}'); a(f'v_lshl_add_u32 {v(VG)}, {t3}, 4, {v(VG)}')
    a(f's_lshl_b32 s{sO1}, s{sT2}, 5'); a(f's_add_u32 s{sO1}, s{sO1}, {G}')
    a(f'v_lshlrev_b32 {v(VS)}, 3, {v(VS)}'); a(f'v_lshl_add_u32 {v(VS)}, {t3}, 2, {v(VS)}')
    a(f's_lshl_b32 s{sO2}, s{sT2}, 14'); a(f's_add_u32 s{sO2}, s{sO2}, {GS}')
    PK = TR + 4
    def pack_store(m, voff, soff):
        b = ACC + m*8
        p = PK + (m % 2) * 4
        a(f'v_cvt_pk_bf16_f32 {v(p)}, {v(b)}, {v(b+1)}'); a(f'v_cvt_pk_bf16_f32 {v(p+1)}, {v(b+2)}, {v(b+3)}')
        a(f'v_cvt_pk_bf16_f32 {v(p+2)}, {v(b+4)}, {v(b+5)}'); a(f'v_cvt_pk_bf16_f32 {v(p+3)}, {v(b+6)}, {v(b+7)}')
        a(f'v_permlane16_swap_b32 {v(p)}, {v(p+2)}'); a(f'v_permlane16_swap_b32 {v(p+1)}, {v(p+3)}')
        a(f'buffer_store_dwordx4 {v(p,4)}, {v(voff)}, s[{sW}:{sW+3}], s{soff} offen')
    for m, reg in ((0, QF), (1, KF), (2, VF)):
        a(f's_add_u32 s{sT3}, s{sOX}, {reg}')
        pack_store(m, VA, sT3)
    a(f'v_cvt_pk_bf16_f32 {v(PK+8)}, {v(AF)}, {v(AF+1)}'); a(f'v_cvt_pk_bf16_f32 {v(PK+9)}, {v(AF+2)}, {v(AF+3)}')
    a(f's_lshr_b32 s{sT}, s{sW8}, 1')
    a(f's_and_b32 s{sT2}, s{sT}, 1'); a(f's_lshl_b32 s{sT2}, s{sT2}, 4')
    a(f'v_add_u32 {t2}, s{sT2}, {t0}'); a(f'v_lshl_add_u32 {t2}, {t3}, 5, {t2}'); a(f'v_lshlrev_b32 {t2}, 4, {t2}')
    a(f'v_and_b32 {t4}, 1, {t1}'); a(f'v_lshl_add_u32 {t2}, {t4}, 3, {t2}')
    a(f's_lshr_b32 s{sT}, s{sT}, 1'); a(f's_lshl_b32 s{sT2}, s{sJB}, 1'); a(f's_add_u32 s{sT}, s{sT}, s{sT2}'); a(f's_lshl_b32 s{sT}, s{sT}, 15')
    a(f's_lshl_b32 s{sT2}, s{sIB}, 1'); a(f's_and_b32 s{sT3}, s{sW8}, 1'); a(f's_add_u32 s{sT2}, s{sT2}, s{sT3}'); a(f's_lshl_b32 s{sT2}, s{sT2}, 10')
    a(f's_add_u32 s{sT}, s{sT}, s{sT2}')
    a(f's_cmp_eq_u32 s{sF}, 1'); a(f's_mov_b32 s{sT2}, {WO1}'); a(f's_cselect_b32 s{sT2}, {WO2}, s{sT2}'); a(f's_add_u32 s{sT}, s{sT}, s{sT2}')
    a(f'buffer_store_dwordx2 {v(PK+8,2)}, {t2}, s[{sW}:{sW+3}], s{sT} offen')
    a(f's_mov_b32 s{sC1}, {f32(GC1)}'); a(f'v_mov_b32 {v(PK+11)}, {f32(GC0)}')
    a(f'v_mov_b32 {v(PK+13)}, {f32(GC0)}')
    for i in range(16):
        gelu(a, ACC + 24 + i, PK + 10 + 2*(i & 1), sC0, sC1)
    a(f's_add_u32 s{sT3}, s{sOX}, {UF}')
    pack_store(3, VA, sT3)
    gb = ACC + 32
    S0, S1, Q0, Q1 = PK+14, PK+15, PK+16, PK+17
    for sl, (S_, Q_) in enumerate(((S0, Q0), (S1, Q1))):
        b = gb + 4*sl
        a(f'v_add_f32 {v(S_)}, {v(b)}, {v(b+1)}'); a(f'v_mul_f32 {v(Q_)}, {v(b)}, {v(b)}')
        a(f'v_add_f32 {v(S_)}, {v(S_)}, {v(b+2)}'); a(f'v_fmac_f32 {v(Q_)}, {v(b+1)}, {v(b+1)}')
        a(f'v_add_f32 {v(S_)}, {v(S_)}, {v(b+3)}'); a(f'v_fmac_f32 {v(Q_)}, {v(b+2)}, {v(b+2)}')
        a(f'v_fmac_f32 {v(Q_)}, {v(b+3)}, {v(b+3)}')
    pack_store(4, VG, sO1)
    a(f'v_permlane16_swap_b32 {v(S0)}, {v(S1)}'); a(f'v_permlane16_swap_b32 {v(Q0)}, {v(Q1)}')
    a(f'v_add_f32 {v(S0)}, {v(S0)}, {v(S1)}'); a(f'v_add_f32 {v(Q0)}, {v(Q0)}, {v(Q1)}')
    a(f'v_permlane32_swap_b32 {v(S0)}, {v(Q0)}')
    a(f'v_add_f32 {v(S0)}, {v(S0)}, {v(Q0)}')
    a(f'buffer_store_dword {v(S0)}, {v(VS)}, s[{sW}:{sW+3}], s{sO2} offen')
    a.label('K1_END')
    a('s_endpgm')
    return dict(name=name, body=a.text(), grid=256, block=512, lds=R*STG, vgpr=184, agpr=0, sgpr=72)
```

```python
from common import *
from k1 import f32, LOG2E

SCALE = LOG2E / (512 ** 0.5)
KT_BYTES = 131072
CV_BASE = KT_BYTES
CV_W = 5120
TRS = 272

def build(name='k2_kernel'):
    a = Asm()
    LANE, T0 = 0, 2
    L = v(LANE); t0, t1, t2, t3, t4 = (v(T0 + i) for i in range(5))
    sW, sD = 8, 12
    sW8, sXC, sSL, sT, sT2, sT3 = 16, 17, 18, 19, 20, 21
    sA, sB, sOUT, sKT, sJOB, sM0, sOA, sOB, sML = 22, 23, 24, 25, 26, 27, 28, 29, 30
    a('s_cmp_ge_u32 s2, 256'); a('s_cbranch_scc1 K2_END')
    a('s_load_dwordx2 s[4:5], s[0:1], 88'); a('s_load_dwordx2 s[6:7], s[0:1], 48')
    a(f'v_lshrrev_b32 {t0}, 6, v0'); a(f'v_and_b32 {L}, 63, v0')
    a(f'v_readfirstlane_b32 s{sW8}, {t0}')
    a(f's_and_b32 s{sXC}, s2, 7'); a(f's_lshr_b32 s{sSL}, s2, 3')
    a('s_waitcnt lgkmcnt(0)')
    srd(a, sW, 4, 5, WS_BYTES); srd(a, sD, 6, 7, 31 * 1024)
    a(f's_cmp_ge_u32 s{sW8}, 4'); a('s_cbranch_scc1 K2_CONV')
    a(f's_cmp_ge_u32 s{sSL}, 24'); a('s_cbranch_scc1 K2_END')

    KB, QR, ACC = 32, 64, 192
    lV, lJ = a.new('K2V'), a.new('K2J')
    a(f's_cmp_ge_u32 s{sSL}, 16'); a(f's_cbranch_scc1 {lV}')
    a(f's_mov_b32 s{sJOB}, 0')
    a(f's_lshr_b32 s{sT}, s{sXC}, 2'); a(f's_lshl_b32 s{sT}, s{sT}, 5')
    a(f's_and_b32 s{sKT}, s{sXC}, 1'); a(f's_lshl_b32 s{sKT}, s{sKT}, 2'); a(f's_lshr_b32 s{sT2}, s{sSL}, 2'); a(f's_add_u32 s{sKT}, s{sKT}, s{sT2}')
    a(f's_lshr_b32 s{sT2}, s{sXC}, 1'); a(f's_and_b32 s{sT2}, s{sT2}, 1'); a(f's_lshl_b32 s{sT2}, s{sT2}, 2')
    a(f's_and_b32 s{sT3}, s{sSL}, 3'); a(f's_add_u32 s{sT2}, s{sT2}, s{sT3}')
    a(f's_lshl_b32 s{sT2}, s{sT2}, 2'); a(f's_add_u32 s{sT2}, s{sT2}, s{sT}'); a(f's_add_u32 s{sT2}, s{sT2}, s{sW8}')
    a(f's_lshl_b32 s{sA}, s{sKT}, 2'); a(f's_add_u32 s{sA}, s{sA}, s{sT}'); a(f's_lshl_b32 s{sA}, s{sA}, 15'); a(f's_add_u32 s{sA}, s{sA}, {KF}')
    a(f's_lshl_b32 s{sB}, s{sT2}, 15'); a(f's_add_u32 s{sB}, s{sB}, {QF}')
    a(f's_lshl_b32 s{sOUT}, s{sT2}, 16'); a(f's_lshl_b32 s{sT3}, s{sKT}, 13'); a(f's_add_u32 s{sOUT}, s{sOUT}, s{sT3}'); a(f's_add_u32 s{sOUT}, s{sOUT}, {PF}')
    a(f's_lshl_b32 s{sML}, s{sT2}, 3'); a(f's_add_u32 s{sML}, s{sML}, s{sKT}'); a(f's_lshl_b32 s{sML}, s{sML}, 8'); a(f's_add_u32 s{sML}, s{sML}, {ML}')
    a(f's_branch {lJ}')
    a.label(lV)
    a(f's_mov_b32 s{sJOB}, 1')
    a(f's_sub_u32 s{sT3}, s{sSL}, 16')
    a(f's_lshr_b32 s{sT}, s{sT3}, 2'); a(f's_lshl_b32 s{sT2}, s{sXC}, 1'); a(f's_add_u32 s{sT}, s{sT}, s{sT2}')
    a(f's_and_b32 s{sKT}, s{sT}, 7')
    a(f's_lshl_b32 s{sA}, s{sT}, 17'); a(f's_add_u32 s{sA}, s{sA}, {VF}')
    a(f's_and_b32 s{sT3}, s{sT3}, 3'); a(f's_lshl_b32 s{sT3}, s{sT3}, 2'); a(f's_add_u32 s{sT3}, s{sT3}, s{sW8}')
    a(f's_lshl_b32 s{sB}, s{sT3}, 15'); a(f's_add_u32 s{sB}, s{sB}, {WO1}')
    a(f's_lshr_b32 s{sT}, s{sT}, 3'); a(f's_lshl_b32 s{sT}, s{sT}, 4'); a(f's_add_u32 s{sT}, s{sT}, s{sT3}')
    a(f's_lshl_b32 s{sOUT}, s{sT}, 16'); a(f's_lshl_b32 s{sT3}, s{sKT}, 13'); a(f's_add_u32 s{sOUT}, s{sOUT}, s{sT3}'); a(f's_add_u32 s{sOUT}, s{sOUT}, {VT}')
    a.label(lJ)
    VL16, RA, RB = 8, 9, 10
    a(f'v_lshlrev_b32 {v(VL16)}, 4, {L}')
    a(f'v_mov_b32 {v(RA)}, {v(VL16)}'); a(f'v_add_u32 {v(RB)}, 65536, {v(VL16)}')
    a(f's_lshl_b32 s{sM0}, s{sW8}, 15')
    a(f's_add_u32 s{sOA}, s{sA}, s{sM0}'); a(f's_mov_b32 s{sOB}, s{sB}')
    def chunk_loads(c):
        a(f's_add_u32 m0, s{sM0}, {c*4096}')
        for i in range(4):
            a(f'buffer_load_dwordx4 {v(VL16)}, s[{sW}:{sW+3}], s{sOA} offen offset:{i*1024} lds')
        for i in range(4):
            a(f'buffer_load_dwordx4 {v(QR + 4*(4*c+i), 4)}, {v(VL16)}, s[{sW}:{sW+3}], s{sOB} offen offset:{i*1024}')
        a(f's_add_u32 s{sOA}, s{sOA}, 4096'); a(f's_add_u32 s{sOB}, s{sOB}, 4096')
    for c in range(7): chunk_loads(c)
    for i in range(64): a(f'v_mov_b32 {v(ACC+i)}, 0')
    def kreads(ks):
        se = ks & 1
        for kb in range(4):
            base = RA if kb < 2 else RB
            a(f'ds_read_b128 {v(KB + se*16 + kb*4, 4)}, {v(base)} offset:{(kb & 1)*32768 + ks*1024}')
    a('s_waitcnt vmcnt(48)'); a('s_barrier')
    chunk_loads(7)
    kreads(0)
    for ks in range(32):
        if ks + 1 < 32:
            if (ks + 1) % 4 == 0:
                c = (ks + 1) // 4
                a(f's_waitcnt vmcnt({64 - 8*(c+1)})'); a('s_barrier')
            kreads(ks + 1)
            a('s_waitcnt lgkmcnt(4)')
        else:
            a('s_waitcnt lgkmcnt(0)')
        se = ks & 1
        for kb in range(4):
            d = ACC + 16*kb
            a(f'v_mfma_f32_32x32x16_bf16 {v(d,16)}, {v(KB + se*16 + kb*4, 4)}, {v(QR + 4*ks, 4)}, {v(d,16)}')
    lSE, lVE = a.new('K2SE'), a.new('K2VE')
    PK = 32
    def store_frags():
        for kb in range(4):
            for h in range(2):
                p = PK + ((kb*2+h) % 4) * 4
                b = ACC + 16*kb + 8*h
                for i in range(4):
                    a(f'v_cvt_pk_bf16_f32 {v(p+i)}, {v(b+2*i)}, {v(b+2*i+1)}')
                f = kb*2 + h
                a(f's_add_u32 s{sT}, s{sOUT}, {(f//4)*4096}') if f % 4 == 0 else None
                a(f'buffer_store_dwordx4 {v(p,4)}, {v(VL16)}, s[{sW}:{sW+3}], s{sT} offen offset:{(f%4)*1024}')
    a(f's_cmp_eq_u32 s{sJOB}, 0'); a(f's_cbranch_scc1 {lSE}')
    store_frags()
    a('s_endpgm')
    a.label(lSE)
    lNM = a.new('K2NM')
    a('s_nop 7'); a('s_nop 7')
    a(f's_cmp_lg_u32 s{sKT}, 7'); a(f's_cbranch_scc1 {lNM}')
    for j in range(4, 16): a(f'v_mov_b32 {v(ACC+48+j)}, 0xff800000')
    a.label(lNM)
    M, M2, SUM, SC = 12, 13, 14, 15
    a(f'v_max3_f32 {v(M)}, {v(ACC)}, {v(ACC+1)}, {v(ACC+2)}')
    a(f'v_max3_f32 {v(M2)}, {v(ACC+3)}, {v(ACC+4)}, {v(ACC+5)}')
    i = 6
    while i + 3 < 64:
        a(f'v_max3_f32 {v(M)}, {v(M)}, {v(ACC+i)}, {v(ACC+i+1)}')
        a(f'v_max3_f32 {v(M2)}, {v(M2)}, {v(ACC+i+2)}, {v(ACC+i+3)}')
        i += 4
    a(f'v_max3_f32 {v(M)}, {v(M)}, {v(ACC+62)}, {v(ACC+63)}')
    a(f'v_max_f32 {v(M)}, {v(M)}, {v(M2)}')
    a(f'v_mov_b32 {v(M2)}, {v(M)}')
    a(f'v_permlane32_swap_b32 {v(M)}, {v(M2)}')
    a(f'v_max_f32 {v(M)}, {v(M)}, {v(M2)}')
    a(f's_mov_b32 s{sT2}, {f32(SCALE)}')
    a(f'v_mul_f32 {v(M)}, s{sT2}, {v(M)}')
    for i in range(64):
        a(f'v_fma_f32 {v(ACC+i)}, {v(ACC+i)}, s{sT2}, -{v(M)}')
    for i in range(64):
        a(f'v_exp_f32 {v(ACC+i)}, {v(ACC+i)}')
    a(f'v_add_f32 {v(SUM)}, {v(ACC)}, {v(ACC+1)}'); a(f'v_add_f32 {v(M2)}, {v(ACC+2)}, {v(ACC+3)}')
    for i in range(4, 64, 2):
        a(f'v_add_f32 {v(SUM)}, {v(SUM)}, {v(ACC+i)}'); a(f'v_add_f32 {v(M2)}, {v(M2)}, {v(ACC+i+1)}')
    a(f'v_add_f32 {v(SUM)}, {v(SUM)}, {v(M2)}')
    store_frags()
    a(f'v_mov_b32 {v(M2)}, {v(SUM)}')
    a(f'v_permlane32_swap_b32 {v(SUM)}, {v(M2)}')
    a(f'v_add_f32 {v(SUM)}, {v(SUM)}, {v(M2)}')
    a(f'v_cmp_gt_u32 vcc, 32, {L}')
    a(f'v_cndmask_b32 {v(SUM)}, {v(SUM)}, {v(M)}, vcc')
    a(f'v_lshlrev_b32 {t0}, 2, {L}')
    a(f'buffer_store_dword {v(SUM)}, {t0}, s[{sW}:{sW+3}], s{sML} offen')
    a('s_endpgm')

    a.label('K2_CONV')
    sCW, sTH, sCH, sRB, sR0, sLB, sBB = 22, 23, 24, 25, 26, 27, 28
    GI, WR, OUT = 16, 64, 96
    SP = 112
    VC, VR, VSA = 8, 9, 10
    a(f's_sub_u32 s{sCW}, s{sW8}, 4'); a(f's_and_b32 s{sTH}, s{sCW}, 1'); a(f's_lshr_b32 s{sCH}, s{sCW}, 1')
    a(f's_lshl_b32 s{sRB}, s{sXC}, 3'); a(f's_and_b32 s{sT}, s{sSL}, 7'); a(f's_add_u32 s{sRB}, s{sRB}, s{sT}')
    a(f's_lshr_b32 s{sT}, s{sSL}, 3'); a(f's_lshl_b32 s{sT}, s{sT}, 1'); a(f's_add_u32 s{sCH}, s{sCH}, s{sT}')
    a(f's_lshl_b32 s{sR0}, s{sRB}, 5'); a(f's_lshl_b32 s{sT}, s{sTH}, 4'); a(f's_add_u32 s{sR0}, s{sR0}, s{sT}')
    a(f's_sub_u32 s{sR0}, s{sR0}, 15')
    a(f's_lshr_b32 s{sBB}, s{sRB}, 5'); a(f's_lshl_b32 s{sBB}, s{sBB}, 10')
    a(f's_mul_i32 s{sLB}, s{sCW}, {CV_W}'); a(f's_add_u32 s{sLB}, s{sLB}, {CV_BASE}')
    a(f'v_add_u32 {v(VR)}, s{sR0}, {L}')
    a(f'v_max_i32 {t0}, 0, {v(VR)}'); a(f'v_min_i32 {t0}, 2047, {t0}'); a(f'v_lshlrev_b32 {t0}, 3, {t0}')
    for p in range(32):
        a(f's_mov_b32 s{sT}, {GS + p*16384}')
        a(f'buffer_load_dwordx2 {v(SP+2*p,2)}, {t0}, s[{sW}:{sW+3}], s{sT} offen')
    a(f's_lshl_b32 s{sT}, s{sCH}, 7')
    a(f'v_lshl_add_u32 {v(VC)}, {L}, 1, s{sT}')
    a(f's_lshl_b32 s{sT3}, s{sR0}, 10')
    def inrow(i):
        a(f's_add_i32 s{sT}, s{sT3}, {i*1024}'); a(f's_max_i32 s{sT}, s{sT}, 0'); a(f's_min_i32 s{sT}, s{sT}, {2047*1024}')
        a(f's_add_u32 s{sT}, s{sT}, {G}')
        a(f'buffer_load_ushort {v(GI+i)}, {v(VC)}, s[{sW}:{sW+3}], s{sT} offen')
    for i in range(30): inrow(i)
    a('s_barrier')
    a('s_waitcnt vmcnt(30)')
    for i in range(30, 46): inrow(i)
    S_, Q_ = SP, SP+1
    for p in range(1, 32):
        a(f'v_add_f32 {v(S_)}, {v(S_)}, {v(SP+2*p)}'); a(f'v_add_f32 {v(Q_)}, {v(Q_)}, {v(SP+2*p+1)}')
    a('s_waitcnt vmcnt(16)')
    for i in range(31):
        if i % 4 == 0: a(f's_mov_b32 s{sT}, {i*1024}')
        a(f'buffer_load_ushort {v(WR+i)}, {v(VC)}, s[{sD}:{sD+3}], s{sT} offen offset:{(i%4)*1024}')
    a(f's_mov_b32 s{sT}, {f32(1/512)}'); a(f's_mov_b32 s{sT2}, {f32(1e-5)}')
    a(f'v_mul_f32 {v(S_)}, s{sT}, {v(S_)}'); a(f'v_mul_f32 {v(Q_)}, s{sT}, {v(Q_)}')
    a(f'v_fma_f32 {v(Q_)}, -{v(S_)}, {v(S_)}, {v(Q_)}')
    a(f'v_max_f32 {v(Q_)}, 0, {v(Q_)}'); a(f'v_add_f32 {v(Q_)}, s{sT2}, {v(Q_)}')
    a(f'v_rsq_f32 {v(SP+2)}, {v(Q_)}')
    a(f'v_mul_f32 {v(SP+3)}, {v(S_)}, {v(SP+2)}'); a(f'v_sub_f32 {v(SP+3)}, 0, {v(SP+3)}')
    a(f'v_subrev_u32 {t0}, s{sBB}, {v(VR)}')
    a(f'v_cmp_gt_u32 vcc, 1000, {t0}')
    a(f'v_cndmask_b32 {v(SP+2)}, 0, {v(SP+2)}, vcc'); a(f'v_cndmask_b32 {v(SP+3)}, 0, {v(SP+3)}, vcc')
    a(f'v_lshl_add_u32 {v(VSA)}, {L}, 3, s{sLB}')
    a(f'ds_write_b64 {v(VSA)}, {v(SP+2,2)}')
    a(f'v_mov_b32 {v(VSA)}, s{sLB}')
    a('s_waitcnt lgkmcnt(0)')
    AB = SP + 8
    for i in range(23): a(f'ds_read_b128 {v(AB+4*i,4)}, {v(VSA)} offset:{i*16}') if i < 14 else None
    a('s_barrier')
    a('s_waitcnt vmcnt(31)')
    for i in range(46): a(f'v_lshlrev_b32 {v(GI+i)}, 16, {v(GI+i)}')
    a('s_waitcnt lgkmcnt(0)')
    for i in range(28):
        q = AB + 4*(i//2) + 2*(i & 1)
        a(f'v_fma_f32 {v(GI+i)}, {v(GI+i)}, {v(q)}, {v(q+1)}')
    for i in range(14, 23): a(f'ds_read_b128 {v(AB+4*(i-14),4)}, {v(VSA)} offset:{i*16}')
    a('s_waitcnt lgkmcnt(0)')
    for i in range(28, 46):
        q = AB + 4*(i//2 - 14) + 2*(i & 1)
        a(f'v_fma_f32 {v(GI+i)}, {v(GI+i)}, {v(q)}, {v(q+1)}')
    a('s_barrier')
    a('s_waitcnt vmcnt(0)')
    for i in range(31): a(f'v_lshlrev_b32 {v(WR+i)}, 16, {v(WR+i)}')
    UR, VU = 176, 11
    a(f'v_and_b32 {t0}, 15, {L}'); a(f'v_lshrrev_b32 {t1}, 4, {L}')
    a(f'v_lshrrev_b32 {t2}, 1, {t1}'); a(f'v_and_b32 {t3}, 1, {t1}')
    a(f'v_lshlrev_b32 {t2}, 10, {t2}'); a(f'v_lshl_add_u32 {t2}, {t3}, 9, {t2}'); a(f'v_lshl_add_u32 {v(VU)}, {t0}, 4, {t2}')
    a(f's_lshl_b32 s{sT}, s{sRB}, 15'); a(f's_lshl_b32 s{sT2}, s{sCH}, 12'); a(f's_add_u32 s{sT}, s{sT}, s{sT2}')
    a(f's_lshl_b32 s{sT2}, s{sTH}, 8'); a(f's_add_u32 s{sR0}, s{sT}, s{sT2}')
    a(f's_add_u32 s{sT}, s{sR0}, {UF}')
    for j in range(2):
        a(f'buffer_load_dwordx4 {v(UR+4*j,4)}, {v(VU)}, s[{sW}:{sW+3}], s{sT} offen offset:{j*2048}')
    nb = 3
    for o in range(16):
        a(f'v_mul_f32 {v(OUT+o)}, {v(GI+o)}, {v(WR)}')
    cnt = 0
    for i in range(1, 31):
        for o in range(16):
            a(f'v_fmac_f32 {v(OUT+o)}, {v(GI+o+i)}, {v(WR+i)}')
        if i % 6 == 0 and nb < 8:
            a('s_barrier'); nb += 1
    while nb < 8:
        a('s_barrier'); nb += 1
    a(f'v_lshl_add_u32 {t2}, {L}, 2, s{sLB}')
    for o in range(16):
        a(f'ds_write_b32 {t2}, {v(OUT+o)} offset:{512 + o*TRS}')
    a(f'v_mul_u32_u24 {t2}, {TRS}, {t0}'); a(f'v_lshl_add_u32 {t2}, {t1}, 5, {t2}'); a(f'v_add_u32 {t2}, s{sLB}, {t2}')
    a('s_waitcnt lgkmcnt(0)')
    CR = 16
    for j in range(2):
        for q in range(2):
            a(f'ds_read_b128 {v(CR+8*j+4*q,4)}, {t2} offset:{512 + j*128 + q*16}')
    a('s_waitcnt vmcnt(0) lgkmcnt(0)')
    a(f's_add_u32 s{sT}, s{sR0}, {UC}')
    for j in range(2):
        for d in range(4):
            u = UR + 4*j + d; c = CR + 8*j + 2*d
            a(f'v_lshlrev_b32 {t3}, 16, {v(u)}'); a(f'v_and_b32 {t4}, 0xffff0000, {v(u)}')
            a(f'v_mul_f32 {v(c)}, {v(c)}, {t3}'); a(f'v_mul_f32 {v(c+1)}, {v(c+1)}, {t4}')
            a(f'v_cvt_pk_bf16_f32 {v(u)}, {v(c)}, {v(c+1)}')
        a(f'buffer_store_dwordx4 {v(UR+4*j,4)}, {v(VU)}, s[{sW}:{sW+3}], s{sT} offen offset:{j*2048}')
    a.label('K2_END')
    a('s_endpgm')
    return dict(name=name, body=a.text(), grid=256, block=512, lds=CV_BASE + 4*CV_W, vgpr=256, agpr=0, sgpr=64)
```

```python
from common import *
from k1 import f32

def build(name='k3_kernel'):
    a = Asm()
    LANE, T0 = 0, 2
    L = v(LANE); t0, t1, t2, t3, t4 = (v(T0 + i) for i in range(5))
    sW, sX, sO = 8, 12, 16
    sW8, sXC, sSL, sT, sT2, sT3 = 20, 21, 22, 23, 24, 25
    sB, sRT, sJT = 26, 27, 28
    sP0, sP1, sV0, sV1, sU0, sU1, sW0, sW1 = 30, 31, 32, 33, 34, 35, 36, 37
    A0, A1, A2 = 64, 128, 192
    NS = 14
    VL16, VML = 8, 9
    MLR = 16
    C0 = 10
    XR = 48
    VXO = 14
    a('s_cmp_ge_u32 s2, 256'); a('s_cbranch_scc1 K3_END')
    a('s_load_dwordx2 s[4:5], s[0:1], 88'); a('s_load_dwordx2 s[6:7], s[0:1], 0'); a('s_load_dwordx2 s[18:19], s[0:1], 72')
    a(f'v_lshrrev_b32 {t0}, 6, v0'); a(f'v_and_b32 {L}, 63, v0')
    a(f'v_readfirstlane_b32 s{sW8}, {t0}')
    a(f's_and_b32 s{sXC}, s2, 7'); a(f's_lshr_b32 s{sSL}, s2, 3')
    a(f's_lshr_b32 s{sB}, s{sXC}, 2')
    a(f's_and_b32 s{sRT}, s{sXC}, 3'); a(f's_lshl_b32 s{sRT}, s{sRT}, 2'); a(f's_and_b32 s{sT}, s{sSL}, 3'); a(f's_add_u32 s{sRT}, s{sRT}, s{sT}')
    a(f's_lshr_b32 s{sJT}, s{sSL}, 2')
    a('s_waitcnt lgkmcnt(0)')
    srd(a, sW, 4, 5, WS_BYTES); srd(a, sX, 6, 7, OUT_BYTES)
    a(f's_mov_b32 s{sO}, s18'); a(f's_mov_b32 s{sO+1}, s19'); a(f's_mov_b32 s{sO+2}, {OUT_BYTES}'); a(f's_mov_b32 s{sO+3}, {SRD3}')
    a(f'v_lshlrev_b32 {v(VL16)}, 4, {L}')
    a(f's_lshl_b32 s{sT}, s{sB}, 5'); a(f's_lshl_b32 s{sT2}, s{sRT}, 1'); a(f's_add_u32 s{sT}, s{sT}, s{sT2}')
    a(f'v_and_b32 {t0}, 31, {L}'); a(f'v_lshlrev_b32 {v(VML)}, 2, {t0}')
    a(f's_lshl_b32 s{sT2}, s{sT}, 11'); a(f's_add_u32 s{sT2}, s{sT2}, {ML}')
    for rb in range(2):
        for t in range(8):
            for q in range(2):
                a(f'buffer_load_dword {v(MLR + rb*16 + q*8 + t)}, {v(VML)}, s[{sW}:{sW+3}], s{sT2} offen offset:{rb*2048 + t*256 + q*128}')
    a(f's_lshl_b32 s{sP0}, s{sT}, 16'); a(f's_lshl_b32 s{sT2}, s{sW8}, 14'); a(f's_add_u32 s{sP0}, s{sP0}, s{sT2}'); a(f's_add_u32 s{sP0}, s{sP0}, {PF}')
    a(f's_add_u32 s{sP1}, s{sP0}, 65536')
    a(f's_lshl_b32 s{sV0}, s{sB}, 4'); a(f's_lshl_b32 s{sT3}, s{sJT}, 1'); a(f's_add_u32 s{sV0}, s{sV0}, s{sT3}'); a(f's_lshl_b32 s{sV0}, s{sV0}, 16')
    a(f's_add_u32 s{sV0}, s{sV0}, s{sT2}'); a(f's_add_u32 s{sV0}, s{sV0}, {VT}'); a(f's_add_u32 s{sV1}, s{sV0}, 65536')
    a(f's_lshl_b32 s{sT2}, s{sW8}, 13')
    a(f's_lshl_b32 s{sU0}, s{sT}, 15'); a(f's_add_u32 s{sU0}, s{sU0}, s{sT2}'); a(f's_add_u32 s{sU0}, s{sU0}, {UC}'); a(f's_add_u32 s{sU1}, s{sU0}, 32768')
    a(f's_lshl_b32 s{sW0}, s{sT3}, 15'); a(f's_add_u32 s{sW0}, s{sW0}, s{sT2}'); a(f's_add_u32 s{sW0}, s{sW0}, {WO2}'); a(f's_add_u32 s{sW1}, s{sW0}, 32768')
    NSTEP = 24
    def loads(t):
        b = (t % NS) * 16
        srcs = (sV0, sV1, sP0, sP1) if t < 16 else (sW0, sW1, sU0, sU1)
        tt = t if t < 16 else t - 16
        for i, sr in enumerate(srcs):
            a(f'buffer_load_dwordx4 {ag(b+4*i,4)}, {v(VL16)}, s[{sW}:{sW+3}], s{sr} offen offset:{(tt%4)*1024}')
        if tt % 4 == 3:
            for sr in srcs: a(f's_add_u32 s{sr}, s{sr}, 4096')
    for t in range(7): loads(t)
    a(f's_and_b32 s{sT}, s{sW8}, 1'); a(f's_lshl_b32 s{sT}, s{sT}, 5'); a(f's_lshl_b32 s{sT2}, s{sRT}, 6'); a(f's_add_u32 s{sT}, s{sT}, s{sT2}')
    a(f'v_and_b32 {t0}, 31, {L}'); a(f'v_add_u32 {t0}, s{sT}, {t0}')
    a(f's_mul_i32 s{sT}, s{sB}, 1000')
    a(f'v_add_u32 {t1}, s{sT}, {t0}'); a(f'v_lshlrev_b32 {t1}, 10, {t1}')
    a(f'v_lshrrev_b32 {t2}, 5, {L}'); a(f'v_lshl_add_u32 {t1}, {t2}, 4, {t1}')
    a(f's_lshr_b32 s{sT}, s{sW8}, 1'); a(f's_lshl_b32 s{sT}, s{sT}, 6'); a(f's_lshl_b32 s{sT2}, s{sJT}, 7'); a(f's_add_u32 s{sT}, s{sT}, s{sT2}')
    a(f'v_add_u32 {t1}, s{sT}, {t1}')
    a(f'v_cmp_gt_u32 vcc, 1000, {t0}')
    a(f'v_mov_b32 {t2}, 0x7ffffff0')
    a(f'v_cndmask_b32 {v(VXO)}, {t2}, {t1}, vcc')
    a('s_waitcnt vmcnt(28)')
    for t in range(7, NS): loads(t)
    for rb in range(2):
        m = MLR + rb*16; l = m + 8
        a(f'v_max3_f32 {t0}, {v(m)}, {v(m+1)}, {v(m+2)}'); a(f'v_max3_f32 {t0}, {t0}, {v(m+3)}, {v(m+4)}')
        a(f'v_max3_f32 {t0}, {t0}, {v(m+5)}, {v(m+6)}'); a(f'v_max_f32 {t0}, {t0}, {v(m+7)}')
        for t in range(8): a(f'v_sub_f32 {v(m+t)}, {v(m+t)}, {t0}')
        for t in range(8): a(f'v_exp_f32 {v(m+t)}, {v(m+t)}')
        a(f'v_mul_f32 {t1}, {v(m)}, {v(l)}')
        for t in range(1, 8): a(f'v_fmac_f32 {t1}, {v(m+t)}, {v(l+t)}')
        a(f'v_rcp_f32 {t1}, {t1}')
        for k in range(2):
            a(f'v_mov_b32 {t2}, {v(m+k)}')
            for w in range(1, 4):
                a(f's_cmp_eq_u32 s{sW8}, {w}'); a(f's_cselect_b64 vcc, -1, 0')
                a(f'v_cndmask_b32 {t2}, {t2}, {v(m+2*w+k)}, vcc')
            a(f'v_mul_f32 {v(C0 + 2*k + rb)}, {t2}, {t1}')
    for i in range(192): a(f'v_mov_b32 {v(A0+i)}, 0')
    issued = NS
    for t in range(NSTEP):
        outst = (issued - (t + 1)) * 4
        a(f's_waitcnt vmcnt({outst})')
        b = (t % NS) * 16
        acc = A0 if t < 8 else (A1 if t < 16 else A2)
        for jb in range(2):
            for rb in range(2):
                d = acc + (jb*2 + rb) * 16
                a(f'v_mfma_f32_32x32x16_bf16 {v(d,16)}, {ag(b+4*jb,4)}, {ag(b+8+4*rb,4)}, {v(d,16)}')
        if issued < NSTEP:
            loads(issued); issued += 1
    a(f'buffer_load_dwordx4 {v(XR,4)}, {v(VXO)}, s[{sX}:{sX+3}], 0 offen')
    a(f'buffer_load_dwordx4 {v(XR+4,4)}, {v(VXO)}, s[{sX}:{sX+3}], 0 offen offset:32')
    for jb in range(2):
        for rb in range(2):
            for j in range(16):
                o = (jb*2 + rb)*16 + j
                a(f'v_fmac_f32 {v(A2+o)}, {v(A0+o)}, {v(C0+rb)}')
                a(f'v_fmac_f32 {v(A2+o)}, {v(A1+o)}, {v(C0+2+rb)}')
    a(f's_lshl_b32 s{sT}, s{sW8}, 12')
    a(f'v_add_u32 {t0}, s{sT}, {v(VL16)}')
    for T in range(4):
        for q in range(4):
            a(f'ds_write_b128 {t0}, {v(A2 + T*16 + q*4, 4)} offset:{T*16384 + q*1024}')
    a('s_waitcnt lgkmcnt(0)'); a('s_barrier')
    a(f's_lshl_b32 s{sT}, s{sW8}, 14')
    a(f'v_add_u32 {t0}, s{sT}, {v(VL16)}')
    for w in range(4):
        for q in range(4):
            a(f'ds_read_b128 {v(A0 + w*16 + q*4, 4)}, {t0} offset:{w*4096 + q*1024}')
    a('s_waitcnt lgkmcnt(0)')
    for j in range(16):
        a(f'v_add_f32 {v(A0+j)}, {v(A0+j)}, {v(A0+16+j)}'); a(f'v_add_f32 {v(A0+32+j)}, {v(A0+32+j)}, {v(A0+48+j)}')
    for j in range(16):
        a(f'v_add_f32 {v(A0+j)}, {v(A0+j)}, {v(A0+32+j)}')
    for hh in range(2):
        for r in range(4):
            a(f'v_permlane32_swap_b32 {v(A0 + 8*hh + r)}, {v(A0 + 8*hh + 4 + r)}')
    a('s_waitcnt vmcnt(0)')
    for hh in range(2):
        for d in range(4):
            x = XR + 4*hh + d; c = A0 + 8*hh + 2*d
            a(f'v_lshlrev_b32 {t3}, 16, {v(x)}'); a(f'v_and_b32 {t4}, 0xffff0000, {v(x)}')
            a(f'v_add_f32 {v(c)}, {v(c)}, {t3}'); a(f'v_add_f32 {v(c+1)}, {v(c+1)}, {t4}')
            a(f'v_cvt_pk_bf16_f32 {v(x)}, {v(c)}, {v(c+1)}')
        a(f'buffer_store_dwordx4 {v(XR+4*hh,4)}, {v(VXO)}, s[{sO}:{sO+3}], 0 offen offset:{hh*32}')
    a.label('K3_END')
    a('s_endpgm')
    return dict(name=name, body=a.text(), grid=256, block=256, lds=65536, vgpr=256, agpr=NS*16, sgpr=64)
```

```python
import sys
sys.path.insert(0, 'gen')
from asm import module
import k1, k2, k3
def text():
    return module([k1.build(), k2.build(), k3.build()])
if __name__ == '__main__':
    out = sys.argv[1] if len(sys.argv) > 1 else 'standalone__conformer_family_branchformer__speech.s'
    open(out, 'w').write(text())
    print('wrote', out)
```

```python
from asm import *
MB = 1 << 20
S32 = 33 * 1024
S64 = 65 * 1024
REG = 64 * S32
QF = 0
KF = QF + REG
VF = KF + REG
UF = VF + REG
UC = UF + REG
G  = UC + REG
GS = G + 2048 * 1024
WO1 = GS + 2048 * 64
WO2 = WO1 + 16 * S32
ML = WO2 + 16 * S32
PF = ML + 64 * 2048
VT = PF + 64 * S64
WS_BYTES = VT + 32 * S64
OUT_BYTES = 2048000
SRD3 = 0x20000

def srd(a, s, lo, hi, nbytes):
    a(f's_mov_b32 s{s}, s{lo}'); a(f's_mov_b32 s{s+1}, s{hi}')
    a(f's_mov_b32 s{s+2}, {nbytes}'); a(f's_mov_b32 s{s+3}, {SRD3}')

def v(r, n=1): return f'v{r}' if n == 1 else f'v[{r}:{r+n-1}]'
def ag(r, n=1): return f'a{r}' if n == 1 else f'a[{r}:{r+n-1}]'
def s(r, n=1): return f's{r}' if n == 1 else f's[{r}:{r+n-1}]'

PROF = 24 * MB
class Prof:
    def __init__(self, a, enabled, kidx, sb=64):
        self.a, self.on, self.k, self.sb, self.n = a, enabled, kidx, sb, 0
    def stamp(self, wait=True):
        if not self.on: return
        i = self.n; self.n += 1
        self.a(f's_memtime s[{self.sb+2*i}:{self.sb+2*i+1}]')
        if wait: self.a('s_waitcnt lgkmcnt(0)')
    def real(self):
        if not self.on: return
        i = self.n; self.n += 1
        self.a(f's_memrealtime s[{self.sb+2*i}:{self.sb+2*i+1}]'); self.a('s_waitcnt lgkmcnt(0)')
    def finish(self, swave, srdbase_lo, srdbase_hi, n=None):
        if not self.on: return
        a = self.a; n = n or self.n
        a('s_waitcnt vmcnt(0) lgkmcnt(0)')
        a(f's_mov_b32 s96, s{srdbase_lo}'); a(f's_mov_b32 s97, s{srdbase_hi}'); a(f's_mov_b32 s98, {32*MB}'); a(f's_mov_b32 s99, {SRD3}')
        a(f's_lshl_b32 s60, s2, 3'); a(f's_add_u32 s60, s60, s{swave}'); a(f's_lshl_b32 s60, s60, 7'); a(f's_add_u32 s60, s60, {PROF + self.k*256*8*128}')
        a('v_mov_b32 v2, 0')
        a('s_mov_b64 exec, 1')
        for i in range(n):
            a(f'v_mov_b32 v1, s{self.sb+2*i}')
            a(f'buffer_store_dword v1, v2, s[96:99], s60 offen offset:{4*i}')
        a('s_getreg_b32 s61, hwreg(HW_REG_HW_ID)'); a('s_getreg_b32 s62, hwreg(HW_REG_XCC_ID)')
        a('v_mov_b32 v1, s61'); a('buffer_store_dword v1, v2, s[96:99], s60 offen offset:120')
        a('v_mov_b32 v1, s62'); a('buffer_store_dword v1, v2, s[96:99], s60 offen offset:124')
        a('s_waitcnt vmcnt(0)')

import struct
LOG2E = 1.4426950408889634
def f32(x):
    return '0x%08x' % struct.unpack('<I', struct.pack('<f', x))[0]

class VM:
    def __init__(self, a):
        self.a, self.q = a, []
    def issue(self, text, tag):
        self.a(text); self.q.append(tag)
    def count(self, tag):
        last = max(i for i, t in enumerate(self.q) if t == tag)
        return len(self.q) - 1 - last
    def wait(self, tag, extra=''):
        n = self.count(tag)
        assert n <= 63, n
        self.a(f's_waitcnt vmcnt({n}){extra}')
ST_FLAGS = ' sc1'
```

```python
from common import *

R = 3
STG = 40960
NST = 8
GC0 = -2.0 * 0.7978845608028654 * LOG2E
GC1 = GC0 * 0.044715

def gelu_block(a, ys, tmps, vC0, sC1):
    for y, q in zip(ys, tmps): a(f'v_mul_f32 {v(q)}, {v(y)}, {v(y)}')
    for y, q in zip(ys, tmps): a(f'v_fma_f32 {v(q)}, {v(q)}, s{sC1}, {v(vC0)}')
    for y, q in zip(ys, tmps): a(f'v_mul_f32 {v(q)}, {v(q)}, {v(y)}')
    for y, q in zip(ys, tmps): a(f'v_exp_f32 {v(q)}, {v(q)}')
    for y, q in zip(ys, tmps): a(f'v_add_f32 {v(q)}, 1.0, {v(q)}')
    for y, q in zip(ys, tmps): a(f'v_rcp_f32 {v(q)}, {v(q)}')
    for y, q in zip(ys, tmps): a(f'v_mul_f32 {v(y)}, {v(y)}, {v(q)}')

def build(name='k1_kernel', prof=False):
    a = Asm()
    P = Prof(a, prof, 0)
    ACC = 0
    AS, AG, AC = 48, 52, 56
    FR = 68
    ONES = 132
    AX, AXS, AW = 136, 140, 144
    VX0, VX1, VW = 146, 147, 148
    LANE, T0 = 151, 152
    def fr(st, what, i=0):
        b = FR + st * 32
        return {'x': b + 4 * i, 'xs': b + 16, 'w': b + 20 + 4 * i}[what]
    sX, sWs = 24, 28
    sB = [32, 36, 40]
    sW8, sWR, sWC, sRT, sCT, sFOLD = 44, 45, 46, 47, 48, 49
    sOX, sOW, sSW, sM0 = 50, [51, 52, 53], [54, 55, 56], 57
    sTY, sOB = [58, 59, 60], [61, 62, 63]
    sT, sT2, sT3, sC1 = 20, 21, 22, 23
    L = v(LANE); t0, t1, t2, t3, t4 = (v(T0 + i) for i in range(5))

    a('s_cmp_ge_u32 s2, 248'); a('s_cbranch_scc0 K1_GO')
    a('s_branch K1_END')
    a.label('K1_GO')
    P.real(); P.stamp()
    a('s_load_dwordx16 s[4:19], s[0:1], 0')
    a('s_load_dwordx2 s[100:101], s[0:1], 64')
    a('s_load_dwordx2 s[98:99], s[0:1], 88')
    a(f'v_lshrrev_b32 {t0}, 6, v0'); a(f'v_and_b32 {L}, 63, v0')
    a(f'v_readfirstlane_b32 s{sW8}, {t0}')
    a(f's_and_b32 s{sT}, s2, 7'); a(f's_lshr_b32 s{sT2}, s2, 3')
    a(f's_cmp_ge_u32 s{sT2}, 28'); a(f's_cselect_b32 s{sFOLD}, 1, 0')
    a(f's_lshr_b32 s{sWR}, s{sW8}, 2'); a(f's_and_b32 s{sWC}, s{sW8}, 3')
    a(f's_lshl_b32 s{sM0}, s{sW8}, 10')
    lF, lD = a.new('K1F'), a.new('K1D')
    a(f's_cmp_eq_u32 s{sFOLD}, 1'); a(f's_cbranch_scc1 {lF}')
    a(f's_and_b32 s{sRT}, s{sT}, 3'); a(f's_lshl_b32 s{sRT}, s{sRT}, 2'); a(f's_and_b32 s{sT3}, s{sT2}, 3'); a(f's_add_u32 s{sRT}, s{sRT}, s{sT3}')
    a(f's_lshr_b32 s{sCT}, s{sT}, 2'); a(f's_mul_i32 s{sCT}, s{sCT}, 7'); a(f's_lshr_b32 s{sT3}, s{sT2}, 2'); a(f's_add_u32 s{sCT}, s{sCT}, s{sT3}')
    a('s_waitcnt lgkmcnt(0)')
    srd(a, sX, 4, 5, OUT_BYTES)
    for j in range(3):
        bi = sOB[j]
        if j == 0:
            a(f's_lshl_b32 s{bi}, s{sCT}, 1'); a(f's_cmp_ge_u32 s{sCT}, 12'); a(f's_cselect_b32 s{bi}, 0, s{bi}')
        elif j == 1:
            a(f's_lshl_b32 s{bi}, s{sCT}, 1'); a(f's_add_u32 s{sT}, s{bi}, 1'); a(f's_add_u32 s{sT2}, s{bi}, 12')
            a(f's_cmp_ge_u32 s{sCT}, 12'); a(f's_cselect_b32 s{bi}, s{sT2}, s{sT}')
        else:
            a(f's_add_u32 s{sT}, s{sCT}, 24'); a(f's_lshl_b32 s{sT2}, s{sCT}, 1'); a(f's_add_u32 s{sT2}, s{sT2}, 13')
            a(f's_cmp_ge_u32 s{sCT}, 12'); a(f's_cselect_b32 s{bi}, s{sT2}, s{sT}')
        a(f's_lshr_b32 s{sT}, s{bi}, 3'); a(f's_and_b32 s{sT2}, s{bi}, 7')
        b = sB[j]
        a(f's_cmp_eq_u32 s{sT}, 1'); a(f's_cselect_b32 s{b}, s8, s6'); a(f's_cselect_b32 s{b+1}, s9, s7')
        a(f's_cmp_eq_u32 s{sT}, 2'); a(f's_cselect_b32 s{b}, s10, s{b}'); a(f's_cselect_b32 s{b+1}, s11, s{b+1}')
        a(f's_cmp_ge_u32 s{sT}, 3'); a(f's_cselect_b32 s{b}, s14, s{b}'); a(f's_cselect_b32 s{b+1}, s15, s{b+1}')
        a(f's_mov_b32 s{b+2}, {1 << 19}'); a(f's_cselect_b32 s{b+2}, {1 << 20}, s{b+2}'); a(f's_mov_b32 s{b+3}, {SRD3}')
        a(f's_cselect_b32 s{sSW[j]}, 11, 10')
        a(f's_sub_u32 s{sTY[j]}, s{sT}, 2'); a(f's_max_i32 s{sTY[j]}, s{sTY[j]}, 0')
        if j == 0:
            a(f's_cmp_ge_u32 s{sCT}, 12'); a(f's_cselect_b32 s{sTY[j]}, 3, s{sTY[j]}')
        a(f's_lshl_b32 s{sOW[j]}, s{sT2}, 7'); a(f's_cmp_eq_u32 s{sT}, 4'); a(f's_cselect_b32 s{sT3}, 1024, 0'); a(f's_add_u32 s{sOW[j]}, s{sOW[j]}, s{sT3}')
    a(f's_lshr_b32 s{sT3}, s{sRT}, 3'); a(f's_mul_i32 s{sT3}, s{sT3}, 1000')
    a(f's_and_b32 s{sT}, s{sRT}, 7'); a(f's_lshl_b32 s{sT}, s{sT}, 7'); a(f's_add_u32 s{sOX}, s{sT3}, s{sT}'); a(f's_lshl_b32 s{sOX}, s{sOX}, 10')
    a(f's_branch {lD}')
    a.label(lF)
    a(f's_mul_i32 s{sT}, s{sT}, 3'); a(f's_sub_u32 s{sT2}, s{sT2}, 28'); a(f's_add_u32 s{sT}, s{sT}, s{sT2}')
    a(f's_mov_b32 s{sCT}, s{sT2}')
    a(f's_sub_u32 s{sT}, s{sT}, s{sT2}'); a(f's_mul_i32 s{sT}, s{sT}, 43691'); a(f's_lshr_b32 s{sT}, s{sT}, 17')
    a(f's_and_b32 s{sRT}, s{sT}, 3')
    a(f's_lshr_b32 s{sT3}, s{sT}, 2')
    a('s_waitcnt lgkmcnt(0)')
    a(f's_cmp_eq_u32 s{sT3}, 1'); a(f's_cselect_b32 s{sX}, s18, s12'); a(f's_cselect_b32 s{sX+1}, s19, s13')
    a(f's_mov_b32 s{sX+2}, {1 << 19}'); a(f's_mov_b32 s{sX+3}, {SRD3}')
    a(f's_lshl_b32 s{sOX}, s{sRT}, 17')
    for j in range(3):
        b = sB[j]
        a(f's_mov_b32 s{b}, s100'); a(f's_mov_b32 s{b+1}, s101'); a(f's_mov_b32 s{b+2}, {1 << 20}'); a(f's_mov_b32 s{b+3}, {SRD3}')
        a(f's_mov_b32 s{sSW[j]}, 10')
        a(f's_mul_i32 s{sOB[j]}, s{sCT}, 3'); a(f's_add_u32 s{sOB[j]}, s{sOB[j]}, {j}')
        a(f's_cmp_ge_u32 s{sOB[j]}, 8'); a(f's_cselect_b32 s{sTY[j]}, 3, 0'); a(f's_min_u32 s{sOB[j]}, s{sOB[j]}, 7')
        a(f's_lshl_b32 s{sOW[j]}, s{sOB[j]}, 7'); a(f's_lshl_b32 s{sT}, s{sT3}, 19'); a(f's_add_u32 s{sOW[j]}, s{sOW[j]}, s{sT}')
    a(f's_mov_b32 s{sFOLD}, s{sT3}'); a(f's_add_u32 s{sFOLD}, s{sFOLD}, 1')
    a.label(lD)
    a(f's_mov_b32 s{sWs}, s98'); a(f's_mov_b32 s{sWs+1}, s99'); a(f's_mov_b32 s{sWs+2}, {WS_BYTES}'); a(f's_mov_b32 s{sWs+3}, {SRD3}')
    a(f'v_lshrrev_b32 {t0}, 3, {L}')
    a(f'v_and_b32 {t1}, 7, {L}')
    a(f'v_lshrrev_b32 {t2}, 1, {t0}')
    a(f'v_xor_b32 {t3}, {t2}, {t1}')
    a(f's_lshl_b32 s{sT}, s{sW8}, 4')
    a(f'v_add_u32 {t4}, s{sT}, {t0}'); a(f'v_lshlrev_b32 {t4}, 10, {t4}'); a(f'v_add_u32 {t4}, s{sOX}, {t4}')
    a(f's_mov_b32 s{sOX}, 0')
    a(f'v_lshl_add_u32 {v(VX0)}, {t3}, 4, {t4}')
    a(f'v_xor_b32 {t3}, 4, {t3}'); a(f'v_add_u32 {t4}, 8192, {t4}')
    a(f'v_lshl_add_u32 {v(VX1)}, {t3}, 4, {t4}')
    a(f'v_and_b32 {t2}, 1, {t2}'); a(f's_and_b32 s{sT}, s{sW8}, 1'); a(f's_lshl_b32 s{sT}, s{sT}, 1')
    a(f'v_or_b32 {t2}, s{sT}, {t2}'); a(f'v_lshlrev_b32 {t2}, 1, {t2}'); a(f'v_xor_b32 {t2}, {t2}, {t1}'); a(f'v_lshlrev_b32 {t2}, 4, {t2}')
    a(f's_lshl_b32 s{sT}, s{sW8}, 3'); a(f'v_add_u32 {t0}, s{sT}, {t0}')
    for j in range(3):
        a(f'v_lshlrev_b32 {v(VW+j)}, s{sSW[j]}, {t0}'); a(f'v_add_u32 {v(VW+j)}, {v(VW+j)}, {t2}')
        a(f's_add_u32 s{sSW[j]}, s{sSW[j]}, 6'); a(f's_lshl_b32 s{sSW[j]}, 1, s{sSW[j]}')

    def dma_groups(st):
        base = (st % R) * STG
        g = []
        g.append(([f's_lshl_b32 s{sT}, s{sM0}, 1', f's_add_u32 m0, s{sT}, {base}'],
                  [f'buffer_load_dwordx4 {v(VX0)}, s[{sX}:{sX+3}], s{sOX} offen lds']))
        g.append(([f's_add_u32 m0, m0, 1024'],
                  [f'buffer_load_dwordx4 {v(VX1)}, s[{sX}:{sX+3}], s{sOX} offen lds', f's_add_u32 s{sOX}, s{sOX}, 128']))
        for j in range(3):
            g.append(([f's_add_u32 m0, s{sM0}, {base + 16384 + j*8192}'],
                      [f'buffer_load_dwordx4 {v(VW+j)}, s[{sB[j]}:{sB[j]+3}], s{sOW[j]} offen lds', f's_add_u32 s{sOW[j]}, s{sOW[j]}, s{sSW[j]}']))
        return g
    def dma(st):
        for pre, post in dma_groups(st):
            for l in pre + post: a(l)
    dma(0); a('s_barrier'); dma(1)
    P.stamp()

    a(f'v_and_b32 {t0}, 15, {L}'); a(f'v_lshrrev_b32 {t1}, 4, {L}')
    a(f'v_lshrrev_b32 {t2}, 1, {t0}'); a(f'v_xor_b32 {t2}, {t2}, {t1}')
    a(f'v_lshlrev_b32 {t2}, 4, {t2}'); a(f'v_lshl_add_u32 {t2}, {t0}, 7, {t2}')
    a(f's_lshl_b32 s{sT}, s{sWR}, 13')
    a(f'v_add_u32 {v(AX)}, s{sT}, {t2}'); a(f'v_xor_b32 {v(AX+1)}, 64, {v(AX)}')
    a(f's_lshl_b32 s{sT}, s{sWC}, 11')
    a(f'v_add_u32 {v(AXS)}, s{sT}, {v(AX)}'); a(f'v_add_u32 {v(AXS+1)}, s{sT}, {v(AX+1)}')
    for b in (AX, AXS):
        a(f'v_add_u32 {v(b+2)}, {2*STG}, {v(b)}'); a(f'v_add_u32 {v(b+3)}, {2*STG}, {v(b+1)}')
    a(f'v_bfe_u32 {t2}, {L}, 2, 2')
    a(f'v_lshl_add_u32 {t3}, {t1}, 3, {t2}'); a(f'v_lshlrev_b32 {t3}, 7, {t3}')
    a(f'v_lshrrev_b32 {t2}, 1, {t2}'); a(f'v_and_b32 {t4}, 1, {t1}'); a(f'v_lshl_or_b32 {t2}, {t4}, 1, {t2}'); a(f'v_lshlrev_b32 {t2}, 1, {t2}')
    a(f'v_bfe_u32 {t4}, {L}, 1, 1'); a(f's_lshl_b32 s{sT}, s{sWC}, 1'); a(f'v_or_b32 {t4}, s{sT}, {t4}')
    a(f'v_xor_b32 {t2}, {t2}, {t4}'); a(f'v_lshl_add_u32 {t3}, {t2}, 4, {t3}')
    a(f'v_and_b32 {t4}, 1, {L}'); a(f'v_lshl_add_u32 {t3}, {t4}, 3, {t3}')
    a(f'v_add_u32 {v(AW)}, 16384, {t3}'); a(f'v_add_u32 {v(AW+1)}, {16384 + 2*STG}, {t3}')
    for i in range(4): a(f'v_mov_b32 {v(ONES+i)}, 0x3f803f80')
    for i in range(AC, AC+12): a(f'v_mov_b32 {v(i)}, 0')

    def reads(u, stats):
        st, h = u >> 1, u & 1
        r = st % R; hi = 1 if r == 2 else 0; off = (r & 1) * STG if r < 2 else 0; se = u & 1
        out = []
        for s_ in range(4):
            out.append(f'ds_read_b128 {v(fr(se,"x",s_),4)}, {v(AX + 2*hi + h)} offset:{off + s_*2048}')
        if stats: out.append(f'ds_read_b128 {v(fr(se,"xs"),4)}, {v(AXS + 2*hi + h)} offset:{off}')
        for j in range(3):
            for e in range(2):
                out.append(f'ds_read_b64_tr_b16 {v(fr(se,"w",j)+2*e,2)}, {v(AW + hi)} offset:{off + j*8192 + h*4096 + e*512}')
        return out
    def mfmas(u, wr):
        se = u & 1; out = []
        first = (u == 0)
        mm = lambda d, x, y, z=False: f'v_mfma_f32_16x16x32_bf16 {v(d,4)}, {v(x,4)}, {v(y,4)}, {"0" if z else v(d,4)}'
        for j in range(3):
            for s_ in range(4):
                d = ACC + (j*4+s_)*4
                out.append(mm(d, fr(se,'w',j), fr(se,'x',s_), first) if wr < 2 else mm(d, fr(se,'x',s_), fr(se,'w',j), first))
        if wr < 2:
            out.insert(4, mm(AS, ONES, fr(se,'xs'), first))
            out.insert(9, mm(AG, fr(se,'xs'), fr(se,'xs'), first))
            for j in range(3):
                if (j + u + wr) % 2 == 0: out.append(mm(AC + 4*j, fr(se,'w',j), ONES))
        return out

    a('s_waitcnt vmcnt(5)'); a('s_barrier')
    P.stamp()
    labs = [a.new('K1V') for _ in range(3)]
    lE, lEF = a.new('K1EPI'), a.new('K1EPF')
    a(f's_cmp_lg_u32 s{sFOLD}, 0'); a(f's_cbranch_scc1 {labs[2]}')
    a(f's_cmp_eq_u32 s{sWR}, 1'); a(f's_cbranch_scc1 {labs[1]}')
    for var in range(3):
        a.label(labs[var])
        stats = var < 2
        for l in reads(0, stats): a(l)
        pend = dma_groups(2)
        issued = 3
        for u in range(2*NST):
            st = u >> 1
            if u & 1 and st + 1 < NST:
                assert not pend
                a(f's_waitcnt vmcnt({5*(issued - (st+2))}) lgkmcnt(0)')
                a('s_barrier')
                if st in (1, 3, 5):
                    n0 = P.n; P.n = 4 + st // 2; P.stamp(); P.n = n0
                if issued < NST:
                    pend = dma_groups(issued); issued += 1
            else:
                a('s_waitcnt lgkmcnt(0)')
            rd = reads(u + 1, stats) if u + 1 < 2*NST else []
            mf = mfmas(u, var)
            quota = len(pend) if (u == 0 or not (u & 1)) else min(3, len(pend))
            n = max(len(rd), len(mf))
            slots = [1 + (k * (len(mf) - 1)) // quota for k in range(quota)] if quota else []
            post = None
            for i in range(n):
                if i in slots:
                    pre, post = pend.pop(0)
                    for l in pre: a(l)
                if i < len(mf): a(mf[i])
                if post:
                    for l in post: a(l)
                    post = None
                if i < len(rd): a(rd[i])
        if var == 0: a(f's_branch {lE}')
        if var == 1: a(f's_branch {lE}')
    P.n = 7; P.stamp()
    PK = FR
    a(f'v_and_b32 {t0}, 15, {L}'); a(f'v_lshrrev_b32 {t1}, 4, {L}')
    a(f's_and_b32 s{sT}, s{sWC}, 1'); a(f's_lshl_b32 s{sT}, s{sT}, 4')
    a(f'v_add_u32 {t2}, s{sT}, {t0}'); a(f'v_lshrrev_b32 {t3}, 1, {t1}'); a(f'v_lshl_add_u32 {t2}, {t3}, 5, {t2}'); a(f'v_lshlrev_b32 {t2}, 4, {t2}')
    a(f'v_and_b32 {t4}, 1, {t1}'); a(f'v_lshl_add_u32 {t2}, {t4}, 3, {t2}')
    a(f's_cmp_eq_u32 s{sFOLD}, 2'); a(f's_mov_b32 s{sT3}, {WO1}'); a(f's_cselect_b32 s{sT3}, {WO2}, s{sT3}')
    a(f's_lshl_b32 s{sT}, s{sRT}, 3'); a(f's_lshl_b32 s{sT2}, s{sWR}, 2'); a(f's_add_u32 s{sT}, s{sT}, s{sT2}'); a(f's_lshl_b32 s{sT}, s{sT}, 10')
    a(f's_add_u32 s{sT3}, s{sT3}, s{sT}')
    for j in range(3):
        lS = a.new('K1FS')
        a(f's_cmp_eq_u32 s{sTY[j]}, 3'); a(f's_cbranch_scc1 {lS}')
        a(f's_lshl_b32 s{sT}, s{sOB[j]}, 1'); a(f's_lshr_b32 s{sT2}, s{sWC}, 1'); a(f's_add_u32 s{sT}, s{sT}, s{sT2}'); a(f's_mul_i32 s{sT}, s{sT}, {S32}')
        a(f's_add_u32 s{sT}, s{sT}, s{sT3}')
        for s_ in range(4):
            b = ACC + (j*4+s_)*4; p = PK + 2*s_
            a(f'v_cvt_pk_bf16_f32 {v(p)}, {v(b)}, {v(b+1)}'); a(f'v_cvt_pk_bf16_f32 {v(p+1)}, {v(b+2)}, {v(b+3)}')
            a(f'buffer_store_dwordx2 {v(p,2)}, {t2}, s[{sWs}:{sWs+3}], s{sT} offen offset:{s_*1024}{ST_FLAGS}')
        a.label(lS)
    a('s_branch K1_FIN')

    a.label(lE)
    P.n = 7; P.stamp()
    ST, CS, GSL = 0, 1024, 4096
    TR = FR
    a('s_nop 7')
    a(f'v_and_b32 {t0}, 15, {L}'); a(f'v_lshrrev_b32 {t1}, 4, {L}')
    a(f'v_and_b32 {t2}, 3, {t0}')
    d = v(TR)
    a(f'v_cmp_eq_u32 vcc, 1, {t2}'); a(f'v_cndmask_b32 {d}, {v(AG)}, {v(AG+1)}, vcc')
    a(f'v_cmp_eq_u32 vcc, 2, {t2}'); a(f'v_cndmask_b32 {d}, {d}, {v(AG+2)}, vcc')
    a(f'v_cmp_eq_u32 vcc, 3, {t2}'); a(f'v_cndmask_b32 {d}, {d}, {v(AG+3)}, vcc')
    mean, var_ = v(TR+2), v(TR+3)
    a(f's_mov_b32 s{sT}, {f32(1/512)}'); a(f's_mov_b32 s{sT2}, {f32(1e-5)}')
    a(f'v_mul_f32 {mean}, s{sT}, {v(AS)}')
    a(f'v_mul_f32 {d}, s{sT}, {d}')
    a(f'v_fma_f32 {var_}, -{mean}, {mean}, {d}')
    a(f'v_max_f32 {var_}, 0, {var_}'); a(f'v_add_f32 {var_}, s{sT2}, {var_}')
    a(f'v_rsq_f32 {var_}, {var_}')
    a(f's_lshl_b32 s{sT}, s{sW8}, 4')
    a(f'v_add_u32 {t2}, s{sT}, {t0}'); a(f'v_lshlrev_b32 {t2}, 3, {t2}')
    a(f'v_lshrrev_b32 {t3}, 2, {t0}')
    a(f'v_cmp_eq_u32 vcc, {t3}, {t1}')
    a(f's_and_saveexec_b64 s[96:97], vcc')
    a(f'ds_write_b64 {t2}, {v(TR+2,2)} offset:{ST}')
    a('s_mov_b64 exec, s[96:97]')
    a(f's_mul_i32 s{sT}, s{sW8}, 192')
    a(f'v_lshlrev_b32 {t3}, 4, {t1}'); a(f'v_add_u32 {t4}, s{sT}, {t3}')
    a(f'v_cmp_eq_u32 vcc, 0, {t0}')
    a(f's_and_saveexec_b64 s[96:97], vcc')
    for j in range(3): a(f'ds_write_b128 {t4}, {v(AC+4*j,4)} offset:{CS + j*64}')
    a('s_mov_b64 exec, s[96:97]')
    a('s_waitcnt lgkmcnt(0)'); a('s_barrier')
    P.stamp()
    a(f's_mul_i32 s{sT}, s{sWC}, 192'); a(f'v_add_u32 {t4}, s{sT}, {t3}')
    for j in range(3):
        a(f'ds_read_b128 {v(AC+4*j,4)}, {t4} offset:{CS + j*64}')
        a(f'ds_read_b128 {v(TR+4*j,4)}, {t4} offset:{CS + 768 + j*64}')
    STA = TR + 12
    a(f's_lshl_b32 s{sT}, s{sWR}, 9'); a(f'v_lshl_add_u32 {t2}, {t0}, 3, s{sT}')
    for s_ in range(4): a(f'ds_read_b64 {v(STA+2*s_,2)}, {t2} offset:{ST + s_*128}')
    a('s_waitcnt lgkmcnt(0)')
    for i in range(12): a(f'v_add_f32 {v(AC+i)}, {v(AC+i)}, {v(TR+i)}')
    VA, VG = TR, TR+1
    PK = TR + 24
    GT = TR + 40
    a(f'v_lshlrev_b32 {v(VA)}, 4, {L}')
    a(f'v_and_b32 {t2}, 1, {t1}'); a(f'v_lshl_add_u32 {t2}, {t2}, 4, {t0}'); a(f'v_lshlrev_b32 {v(VG)}, 10, {t2}')
    a(f'v_lshrrev_b32 {t3}, 1, {t1}'); a(f'v_lshl_add_u32 {v(VG)}, {t3}, 4, {v(VG)}')
    a(f's_lshl_b32 s{sT}, s{sWC}, 5'); a(f'v_add_u32 {v(VG)}, s{sT}, {v(VG)}')
    VS = TR + 2
    a(f'v_lshlrev_b32 {v(VS)}, 3, {t2}'); a(f'v_lshl_add_u32 {v(VS)}, {t3}, 2, {v(VS)}')
    a(f's_lshl_b32 s{sT}, s{sWC}, 10'); a(f's_lshl_b32 s{sT2}, s{sWR}, 9'); a(f's_add_u32 s{sT}, s{sT}, s{sT2}'); a(f'v_add_u32 {v(VS)}, s{sT}, {v(VS)}')
    a(f's_mov_b32 s{sC1}, {f32(GC1)}'); a(f'v_mov_b32 {v(GT+8)}, {f32(GC0)}')
    sRB = sM0
    a(f's_lshl_b32 s{sRB}, s{sRT}, 2'); a(f's_lshl_b32 s{sT}, s{sWR}, 1'); a(f's_add_u32 s{sRB}, s{sRB}, s{sT}')
    def pack(j, pair, p):
        b = ACC + (j*4 + 2*pair)*4
        a(f'v_cvt_pk_bf16_f32 {v(p)}, {v(b)}, {v(b+1)}'); a(f'v_cvt_pk_bf16_f32 {v(p+1)}, {v(b+2)}, {v(b+3)}')
        a(f'v_cvt_pk_bf16_f32 {v(p+2)}, {v(b+4)}, {v(b+5)}'); a(f'v_cvt_pk_bf16_f32 {v(p+3)}, {v(b+6)}, {v(b+7)}')
        a(f'v_permlane16_swap_b32 {v(p)}, {v(p+2)}'); a(f'v_permlane16_swap_b32 {v(p+1)}, {v(p+3)}')
    for j in range(3):
        lN, lG, lFS = a.new('K1N'), a.new('K1G'), a.new('K1FS')
        ty, bi = sTY[j], sOB[j]
        if j == 0:
            a(f's_cmp_eq_u32 s{ty}, 3'); a(f's_cbranch_scc1 {lN}')
        for s_ in range(4):
            for r in range(4):
                x = ACC + (j*4+s_)*4 + r
                a(f'v_fma_f32 {v(x)}, -{v(STA+2*s_)}, {v(AC+4*j+r)}, {v(x)}')
            for r in range(4):
                x = ACC + (j*4+s_)*4 + r
                a(f'v_mul_f32 {v(x)}, {v(x)}, {v(STA+2*s_+1)}')
        if j > 0:
            if j == 1:
                a(f's_cmp_eq_u32 s{ty}, 0'); a(f's_cbranch_scc1 {lFS}')
            for h in range(2):
                gelu_block(a, [ACC + j*16 + 8*h + i for i in range(8)], [GT + i for i in range(8)], GT + 8, sC1)
            a(f's_cmp_eq_u32 s{ty}, 2'); a(f's_cbranch_scc1 {lG}')
        a.label(lFS)
        a(f's_lshr_b32 s{sT}, s{bi}, 3'); a(f's_mul_i32 s{sT}, s{sT}, {REG}')
        a(f's_and_b32 s{sT2}, s{bi}, 7'); a(f's_lshl_b32 s{sT2}, s{sT2}, 2'); a(f's_add_u32 s{sT2}, s{sT2}, s{sWC}'); a(f's_lshl_b32 s{sT2}, s{sT2}, 10')
        a(f's_add_u32 s{sT}, s{sT}, s{sT2}'); a(f's_mul_i32 s{sT2}, s{sRB}, {S32}'); a(f's_add_u32 s{sT}, s{sT}, s{sT2}')
        for pair in range(2):
            p = PK + 4*pair
            pack(j, pair, p)
            if pair: a(f's_add_u32 s{sT}, s{sT}, {S32}')
            a(f'buffer_store_dwordx4 {v(p,4)}, {v(VA)}, s[{sWs}:{sWs+3}], s{sT} offen{ST_FLAGS}')
        if j > 0:
            a(f's_branch {lN}')
            a.label(lG)
            a(f's_and_b32 s{sT3}, s{bi}, 7')
            a(f's_lshl_b32 s{sT}, s{sRB}, 15'); a(f's_lshl_b32 s{sT2}, s{sT3}, 7'); a(f's_add_u32 s{sT}, s{sT}, s{sT2}'); a(f's_add_u32 s{sT}, s{sT}, {G}')
            SQ = PK + 8
            for pair in range(2):
                for sl in range(2):
                    b = ACC + (j*4 + 2*pair + sl)*4; S_, Q_ = SQ + sl, SQ + 2 + sl
                    a(f'v_add_f32 {v(S_)}, {v(b)}, {v(b+1)}'); a(f'v_mul_f32 {v(Q_)}, {v(b)}, {v(b)}')
                    a(f'v_add_f32 {v(S_)}, {v(S_)}, {v(b+2)}'); a(f'v_fmac_f32 {v(Q_)}, {v(b+1)}, {v(b+1)}')
                    a(f'v_add_f32 {v(S_)}, {v(S_)}, {v(b+3)}'); a(f'v_fmac_f32 {v(Q_)}, {v(b+2)}, {v(b+2)}')
                    a(f'v_fmac_f32 {v(Q_)}, {v(b+3)}, {v(b+3)}')
                p = PK + 4*pair
                pack(j, pair, p)
                if pair: a(f's_add_u32 s{sT}, s{sT}, 32768')
                a(f'buffer_store_dwordx4 {v(p,4)}, {v(VG)}, s[{sWs}:{sWs+3}], s{sT} offen{ST_FLAGS}')
                a(f'v_permlane16_swap_b32 {v(SQ)}, {v(SQ+1)}'); a(f'v_permlane16_swap_b32 {v(SQ+2)}, {v(SQ+3)}')
                a(f'v_add_f32 {v(SQ)}, {v(SQ)}, {v(SQ+1)}'); a(f'v_add_f32 {v(SQ+2)}, {v(SQ+2)}, {v(SQ+3)}')
                a(f'v_permlane32_swap_b32 {v(SQ)}, {v(SQ+2)}')
                a(f'v_add_f32 {v(SQ)}, {v(SQ)}, {v(SQ+2)}')
                a(f'ds_write_b32 {v(VS)}, {v(SQ)} offset:{GSL + pair*256}')
            a('s_waitcnt lgkmcnt(0)'); a('s_barrier')
            lK = a.new('K1GK')
            a(f's_cmp_ge_u32 s{sW8}, 4'); a(f's_cbranch_scc1 {lK}')
            a(f's_lshl_b32 s{sT}, s{sW8}, 6'); a(f'v_add_u32 {t2}, s{sT}, {L}')
            a(f'v_lshlrev_b32 {t3}, 2, {t2}')
            for w in range(4): a(f'ds_read_b32 {v(SQ+w)}, {t3} offset:{GSL + w*1024}')
            a(f's_lshl_b32 s{sT}, s{sRT}, 10'); a(f's_lshl_b32 s{sT2}, s{sT3}, 14'); a(f's_add_u32 s{sT}, s{sT}, s{sT2}'); a(f's_add_u32 s{sT}, s{sT}, {GS}')
            a('s_waitcnt lgkmcnt(0)')
            a(f'v_add_f32 {v(SQ)}, {v(SQ)}, {v(SQ+1)}'); a(f'v_add_f32 {v(SQ+2)}, {v(SQ+2)}, {v(SQ+3)}'); a(f'v_add_f32 {v(SQ)}, {v(SQ)}, {v(SQ+2)}')
            a(f'buffer_store_dword {v(SQ)}, {t3}, s[{sWs}:{sWs+3}], s{sT} offen{ST_FLAGS}')
            a.label(lK)
            if j == 1: a('s_barrier')
        a.label(lN)
    a.label('K1_FIN')
    P.stamp()
    if prof: a('s_waitcnt vmcnt(0)')
    P.stamp(); P.real()
    P.finish(sW8, sWs, sWs+1)
    a.label('K1_END')
    a('s_endpgm')
    return dict(name=name, body=a.text(), grid=256, block=512, lds=R*STG, vgpr=160, agpr=0, sgpr=102)
```

```python
from common import *

SCALE = LOG2E / (512 ** 0.5)
KT_BYTES = 131072
CV_W = 9216
TRS = 272
NPART = 32

def build(name='k2_kernel', prof=False):
    a = Asm()
    P = Prof(a, prof, 1)
    LANE, T0 = 0, 2
    L = v(LANE); t0, t1, t2, t3, t4 = (v(T0 + i) for i in range(5))
    sW, sD = 8, 12
    sW8, sXC, sSL, sT, sT2, sT3 = 16, 17, 18, 19, 20, 21
    sA, sB, sOUT, sKT, sJOB, sM0, sOA, sOB, sML = 22, 23, 24, 25, 26, 27, 28, 29, 30
    a('s_cmp_ge_u32 s2, 256'); a('s_cbranch_scc1 K2_END')
    P.real(); P.stamp()
    a('s_load_dwordx2 s[4:5], s[0:1], 88'); a('s_load_dwordx2 s[6:7], s[0:1], 48')
    a(f'v_lshrrev_b32 {t0}, 6, v0'); a(f'v_and_b32 {L}, 63, v0')
    a(f'v_readfirstlane_b32 s{sW8}, {t0}')
    a(f's_and_b32 s{sXC}, s2, 7'); a(f's_lshr_b32 s{sSL}, s2, 3')
    a(f's_cmp_ge_u32 s{sSL}, 24'); a('s_cbranch_scc1 K2_CONV')
    a(f's_cmp_ge_u32 s{sW8}, 4'); a('s_cbranch_scc1 K2_END')

    KB, QR, ACC = 32, 64, 192
    lV, lJ = a.new('K2V'), a.new('K2J')
    a(f's_cmp_ge_u32 s{sSL}, 16'); a(f's_cbranch_scc1 {lV}')
    a(f's_mov_b32 s{sJOB}, 0')
    a(f's_lshr_b32 s{sT}, s{sXC}, 2'); a(f's_lshl_b32 s{sT}, s{sT}, 5')
    a(f's_and_b32 s{sKT}, s{sXC}, 1'); a(f's_lshl_b32 s{sKT}, s{sKT}, 2'); a(f's_lshr_b32 s{sT2}, s{sSL}, 2'); a(f's_add_u32 s{sKT}, s{sKT}, s{sT2}')
    a(f's_lshr_b32 s{sT2}, s{sXC}, 1'); a(f's_and_b32 s{sT2}, s{sT2}, 1'); a(f's_lshl_b32 s{sT2}, s{sT2}, 2')
    a(f's_and_b32 s{sT3}, s{sSL}, 3'); a(f's_add_u32 s{sT2}, s{sT2}, s{sT3}')
    a(f's_lshl_b32 s{sT2}, s{sT2}, 2'); a(f's_add_u32 s{sT2}, s{sT2}, s{sT}'); a(f's_add_u32 s{sT2}, s{sT2}, s{sW8}')
    a(f's_lshl_b32 s{sA}, s{sKT}, 2'); a(f's_add_u32 s{sA}, s{sA}, s{sT}'); a(f's_mul_i32 s{sA}, s{sA}, {S32}'); a(f's_add_u32 s{sA}, s{sA}, {KF}')
    a(f's_mul_i32 s{sB}, s{sT2}, {S32}'); a(f's_add_u32 s{sB}, s{sB}, {QF}')
    a(f's_mul_i32 s{sOUT}, s{sT2}, {S64}'); a(f's_lshl_b32 s{sT3}, s{sKT}, 13'); a(f's_add_u32 s{sOUT}, s{sOUT}, s{sT3}'); a(f's_add_u32 s{sOUT}, s{sOUT}, {PF}')
    a(f's_lshl_b32 s{sML}, s{sT2}, 3'); a(f's_add_u32 s{sML}, s{sML}, s{sKT}'); a(f's_lshl_b32 s{sML}, s{sML}, 8'); a(f's_add_u32 s{sML}, s{sML}, {ML}')
    a(f's_branch {lJ}')
    a.label(lV)
    a(f's_mov_b32 s{sJOB}, 1')
    a(f's_sub_u32 s{sT3}, s{sSL}, 16')
    a(f's_lshr_b32 s{sT}, s{sT3}, 2'); a(f's_lshl_b32 s{sT2}, s{sXC}, 1'); a(f's_add_u32 s{sT}, s{sT}, s{sT2}')
    a(f's_and_b32 s{sKT}, s{sT}, 7')
    a(f's_mul_i32 s{sA}, s{sT}, {4*S32}'); a(f's_add_u32 s{sA}, s{sA}, {VF}')
    a(f's_and_b32 s{sT3}, s{sT3}, 3'); a(f's_lshl_b32 s{sT3}, s{sT3}, 2'); a(f's_add_u32 s{sT3}, s{sT3}, s{sW8}')
    a(f's_mul_i32 s{sB}, s{sT3}, {S32}'); a(f's_add_u32 s{sB}, s{sB}, {WO1}')
    a(f's_lshr_b32 s{sT}, s{sT}, 3'); a(f's_lshl_b32 s{sT}, s{sT}, 4'); a(f's_add_u32 s{sT}, s{sT}, s{sT3}')
    a(f's_mul_i32 s{sOUT}, s{sT}, {S64}'); a(f's_lshl_b32 s{sT3}, s{sKT}, 13'); a(f's_add_u32 s{sOUT}, s{sOUT}, s{sT3}'); a(f's_add_u32 s{sOUT}, s{sOUT}, {VT}')
    a.label(lJ)
    VL16, RA, RB = 8, 9, 10
    a(f'v_lshlrev_b32 {v(VL16)}, 4, {L}')
    a(f'v_mov_b32 {v(RA)}, {v(VL16)}'); a(f'v_add_u32 {v(RB)}, 65536, {v(VL16)}')
    a(f's_lshl_b32 s{sM0}, s{sW8}, 15')
    a(f's_mul_i32 s{sOA}, s{sW8}, {S32}'); a(f's_add_u32 s{sOA}, s{sOA}, s{sA}'); a(f's_mov_b32 s{sOB}, s{sB}')
    a('s_waitcnt lgkmcnt(0)')
    srd(a, sW, 4, 5, WS_BYTES)
    def kload(k):
        if k % 4 == 0: a(f's_add_u32 m0, s{sM0}, {k*1024}')
        a(f'buffer_load_dwordx4 {v(VL16)}, s[{sW}:{sW+3}], s{sOA} offen offset:{(k%4)*1024} lds')
        a(f'buffer_load_dwordx4 {v(QR + 4*k, 4)}, {v(VL16)}, s[{sW}:{sW+3}], s{sOB} offen offset:{(k%4)*1024}')
        if k % 4 == 3:
            a(f's_add_u32 s{sOA}, s{sOA}, 4096'); a(f's_add_u32 s{sOB}, s{sOB}, 4096')
    CH, LA = 2, 6
    for k in range(LA): kload(k)
    P.stamp()
    def kreads(ks):
        se = ks & 1
        for kb in range(4):
            base = RA if kb < 2 else RB
            a(f'ds_read_b128 {v(KB + se*16 + kb*4, 4)}, {v(base)} offset:{(kb & 1)*32768 + ks*1024}')
    issued = LA
    a(f's_waitcnt vmcnt({2*(issued - CH)})'); a('s_barrier')
    P.stamp()
    kreads(0)
    for ks in range(32):
        if ks + 1 < 32:
            if (ks + 1) % CH == 0:
                a(f's_waitcnt vmcnt({2*(issued - (ks + 1 + CH))})'); a('s_barrier')
                if ks + 1 in (8, 16, 24): P.stamp()
            kreads(ks + 1)
            a('s_waitcnt lgkmcnt(4)')
        else:
            a('s_waitcnt lgkmcnt(0)')
        se = ks & 1
        for kb in range(4):
            d = ACC + 16*kb
            a(f'v_mfma_f32_32x32x16_bf16 {v(d,16)}, {v(KB + se*16 + kb*4, 4)}, {v(QR + 4*ks, 4)}, {"0" if ks == 0 else v(d,16)}')
            if kb == 0 and issued < 32:
                kload(issued); issued += 1
    P.stamp()
    lSE, lVE = a.new('K2SE'), a.new('K2VE')
    PK = 32
    def store_frags():
        for kb in range(4):
            for h in range(2):
                p = PK + ((kb*2+h) % 4) * 4
                b = ACC + 16*kb + 8*h
                for i in range(4):
                    a(f'v_cvt_pk_bf16_f32 {v(p+i)}, {v(b+2*i)}, {v(b+2*i+1)}')
                f = kb*2 + h
                a(f's_add_u32 s{sT}, s{sOUT}, {(f//4)*4096}') if f % 4 == 0 else None
                a(f'buffer_store_dwordx4 {v(p,4)}, {v(VL16)}, s[{sW}:{sW+3}], s{sT} offen offset:{(f%4)*1024}{ST_FLAGS}')
    a(f's_cmp_eq_u32 s{sJOB}, 0'); a(f's_cbranch_scc1 {lSE}')
    store_frags()
    P.stamp()
    if prof: a('s_waitcnt vmcnt(0)')
    P.stamp(); P.real(); P.finish(sW8, 4, 5); P.n = 8
    a('s_endpgm')
    a.label(lSE)
    lNM = a.new('K2NM')
    a('s_nop 7'); a('s_nop 7')
    a(f's_cmp_lg_u32 s{sKT}, 7'); a(f's_cbranch_scc1 {lNM}')
    for j in range(4, 16): a(f'v_mov_b32 {v(ACC+48+j)}, 0xff800000')
    a.label(lNM)
    M, M2, SUM = 12, 13, 14
    a(f'v_max3_f32 {v(M)}, {v(ACC)}, {v(ACC+1)}, {v(ACC+2)}')
    a(f'v_max3_f32 {v(M2)}, {v(ACC+3)}, {v(ACC+4)}, {v(ACC+5)}')
    i = 6
    while i + 3 < 64:
        a(f'v_max3_f32 {v(M)}, {v(M)}, {v(ACC+i)}, {v(ACC+i+1)}')
        a(f'v_max3_f32 {v(M2)}, {v(M2)}, {v(ACC+i+2)}, {v(ACC+i+3)}')
        i += 4
    a(f'v_max3_f32 {v(M)}, {v(M)}, {v(ACC+62)}, {v(ACC+63)}')
    a(f'v_max_f32 {v(M)}, {v(M)}, {v(M2)}')
    a(f'v_mov_b32 {v(M2)}, {v(M)}')
    a(f'v_permlane32_swap_b32 {v(M)}, {v(M2)}')
    a(f'v_max_f32 {v(M)}, {v(M)}, {v(M2)}')
    a(f's_mov_b32 s{sT2}, {f32(SCALE)}')
    a(f'v_mul_f32 {v(M)}, s{sT2}, {v(M)}')
    a(f'v_mov_b32 {v(SUM)}, 0'); a(f'v_mov_b32 {v(M2)}, 0')
    for kb in range(4):
        for h in range(2):
            b = ACC + 16*kb + 8*h
            for i in range(8): a(f'v_fma_f32 {v(b+i)}, {v(b+i)}, s{sT2}, -{v(M)}')
            for i in range(8): a(f'v_exp_f32 {v(b+i)}, {v(b+i)}')
            p = PK + ((kb*2+h) % 4) * 4
            for i in range(4):
                a(f'v_add_f32 {v(SUM)}, {v(SUM)}, {v(b+2*i)}'); a(f'v_add_f32 {v(M2)}, {v(M2)}, {v(b+2*i+1)}')
                a(f'v_cvt_pk_bf16_f32 {v(p+i)}, {v(b+2*i)}, {v(b+2*i+1)}')
            f = kb*2 + h
            if f % 4 == 0: a(f's_add_u32 s{sT}, s{sOUT}, {(f//4)*4096}')
            a(f'buffer_store_dwordx4 {v(p,4)}, {v(VL16)}, s[{sW}:{sW+3}], s{sT} offen offset:{(f%4)*1024}{ST_FLAGS}')
    a(f'v_add_f32 {v(SUM)}, {v(SUM)}, {v(M2)}')
    a(f'v_mov_b32 {v(M2)}, {v(SUM)}')
    a(f'v_permlane32_swap_b32 {v(SUM)}, {v(M2)}')
    a(f'v_add_f32 {v(SUM)}, {v(SUM)}, {v(M2)}')
    a(f'v_cmp_gt_u32 vcc, 32, {L}')
    a(f'v_cndmask_b32 {v(SUM)}, {v(SUM)}, {v(M)}, vcc')
    a(f'v_lshlrev_b32 {t0}, 2, {L}')
    a(f'buffer_store_dword {v(SUM)}, {t0}, s[{sW}:{sW+3}], s{sML} offen{ST_FLAGS}')
    P.stamp()
    if prof: a('s_waitcnt vmcnt(0)')
    P.stamp(); P.real(); P.finish(sW8, 4, 5); P.n = 2
    a('s_endpgm')

    a.label('K2_CONV')
    sTQ, sCHH, sCG, sRT, sR0, sLB, sBB, sUO = 22, 23, 24, 25, 26, 27, 28, 29
    NI = 62
    GT_, WT_, ST_, TR_ = 0, 40960, 49152, 51200
    GI, WR, OUT = 16, 80, 112
    SP, UR = 144, 208
    VC, VSA, VU = 8, 10, 11
    a(f's_and_b32 s{sTQ}, s{sW8}, 3'); a(f's_lshr_b32 s{sCHH}, s{sW8}, 2')
    a(f's_sub_u32 s{sT}, s{sSL}, 24')
    a(f's_lshl_b32 s{sRT}, s{sXC}, 1'); a(f's_and_b32 s{sT2}, s{sT}, 1'); a(f's_add_u32 s{sRT}, s{sRT}, s{sT2}')
    a(f's_lshr_b32 s{sCG}, s{sT}, 1')
    a(f's_lshl_b32 s{sR0}, s{sRT}, 7'); a(f's_sub_u32 s{sR0}, s{sR0}, 16')
    a(f's_lshr_b32 s{sBB}, s{sRT}, 3'); a(f's_lshl_b32 s{sBB}, s{sBB}, 10')
    a(f'v_lshrrev_b32 {t0}, 4, {L}'); a(f'v_and_b32 {t1}, 15, {L}'); a(f'v_lshlrev_b32 {t1}, 4, {t1}')
    a(f's_lshl_b32 s{sT}, s{sCG}, 8'); a(f'v_add_u32 {t1}, s{sT}, {t1}')
    a(f's_mul_i32 s{sT}, s{sW8}, 20'); a(f's_add_u32 s{sT}, s{sT}, s{sR0}'); a(f'v_add_u32 {t2}, s{sT}, {t0}')
    for i in range(5):
        a(f'v_add_u32 {t3}, {4*i}, {t2}'); a(f'v_max_i32 {t3}, 0, {t3}'); a(f'v_min_i32 {t3}, 2047, {t3}')
        a(f'v_lshl_add_u32 {v(GI+i)}, {t3}, 10, {t1}')
    a(f's_lshl_b32 s{sT}, s{sW8}, 2'); a(f'v_add_u32 {t3}, s{sT}, {t0}'); a(f'v_lshl_add_u32 {v(GI+5)}, {t3}, 10, {t1}')
    a(f's_mul_i32 s{sT}, s{sW8}, 20'); a(f'v_min_u32 {t3}, 19, {L}'); a(f'v_add_u32 {v(GI+6)}, s{sT}, {t3}')
    a(f'v_add_u32 {v(GI+8)}, s{sR0}, {v(GI+6)}')
    a(f'v_max_i32 {t3}, 0, {v(GI+8)}'); a(f'v_min_i32 {t3}, 2047, {t3}'); a(f'v_lshlrev_b32 {v(GI+10)}, 3, {t3}')
    a('s_waitcnt lgkmcnt(0)')
    srd(a, sW, 4, 5, WS_BYTES); srd(a, sD, 6, 7, 31 * 1024)
    for p_ in range(8):
        a(f's_mov_b32 s{sT}, {GS + p_*16384}')
        a(f'buffer_load_dwordx2 {v(SP+2*p_,2)}, {v(GI+10)}, s[{sW}:{sW+3}], s{sT} offen')
    a(f's_mul_i32 s{sT2}, s{sW8}, 5120'); a(f's_mov_b32 s{sT}, {G}')
    for i in range(5):
        a(f's_add_u32 m0, s{sT2}, {GT_ + i*1024}')
        a(f'buffer_load_dwordx4 {v(GI+i)}, s[{sW}:{sW+3}], s{sT} offen lds')
    a(f's_lshl_b32 s{sT2}, s{sW8}, 10'); a(f's_add_u32 m0, s{sT2}, {WT_}')
    a(f'buffer_load_dwordx4 {v(GI+5)}, s[{sD}:{sD+3}], 0 offen lds')
    a(f'v_lshlrev_b32 {v(VU)}, 4, {L}')
    a(f's_lshl_b32 s{sT}, s{sRT}, 2'); a(f's_add_u32 s{sT}, s{sT}, s{sTQ}'); a(f's_mul_i32 s{sT}, s{sT}, {S32}')
    a(f's_lshl_b32 s{sT2}, s{sCG}, 1'); a(f's_add_u32 s{sT2}, s{sT2}, s{sCHH}'); a(f's_lshl_b32 s{sT2}, s{sT2}, 12'); a(f's_add_u32 s{sUO}, s{sT}, s{sT2}')
    a(f's_add_u32 s{sT}, s{sUO}, {UF}')
    for j in range(4):
        a(f'buffer_load_dwordx4 {v(UR+4*j,4)}, {v(VU)}, s[{sW}:{sW+3}], s{sT} offen offset:{j*1024}')
    P.stamp()
    SR = 224
    a(f'v_mov_b32 {v(SR)}, {v(GI+6)}'); a(f'v_mov_b32 {v(SR+2)}, {v(GI+8)}')
    for i in range(NI): a(f'v_mov_b32 {v(GI+i)}, 0')
    for i in range(31): a(f'v_mov_b32 {v(WR+i)}, 0')
    a('s_waitcnt vmcnt(10)')
    P.stamp()
    a(f's_mov_b32 s{sT}, {f32(1/512)}'); a(f's_mov_b32 s{sT2}, {f32(1e-5)}')
    b = SP
    for step in (8, 4, 2):
        for i in range(step): a(f'v_add_f32 {v(b+i)}, {v(b+i)}, {v(b+step+i)}')
    a(f'v_mul_f32 {v(b)}, s{sT}, {v(b)}'); a(f'v_mul_f32 {v(b+1)}, s{sT}, {v(b+1)}')
    a(f'v_fma_f32 {v(b+1)}, -{v(b)}, {v(b)}, {v(b+1)}')
    a(f'v_max_f32 {v(b+1)}, 0, {v(b+1)}'); a(f'v_add_f32 {v(b+1)}, s{sT2}, {v(b+1)}')
    a(f'v_rsq_f32 {v(b+2)}, {v(b+1)}')
    a(f'v_mul_f32 {v(b+3)}, {v(b)}, {v(b+2)}'); a(f'v_sub_f32 {v(b+3)}, 0, {v(b+3)}')
    a(f'v_subrev_u32 {t0}, s{sBB}, {v(SR+2)}')
    a(f'v_cmp_gt_u32 vcc, 1000, {t0}')
    a(f'v_cndmask_b32 {v(b+2)}, 0, {v(b+2)}, vcc'); a(f'v_cndmask_b32 {v(b+3)}, 0, {v(b+3)}, vcc')
    a(f'v_lshlrev_b32 {t0}, 3, {v(SR)}')
    a(f'ds_write_b64 {t0}, {v(b+2,2)} offset:{ST_ + 8}')
    a(f's_lshl_b32 s{sT}, s{sTQ}, 13'); a(f's_lshl_b32 s{sT2}, s{sCHH}, 7'); a(f's_add_u32 s{sT}, s{sT}, s{sT2}')
    a(f'v_lshl_add_u32 {v(VC)}, {L}, 1, s{sT}')
    a(f'v_lshl_add_u32 {t1}, {L}, 1, s{sT2}')
    a(f's_lshl_b32 s{sT}, s{sTQ}, 8'); a(f'v_mov_b32 {v(VSA)}, s{sT}')
    a('s_waitcnt vmcnt(4) lgkmcnt(0)'); a('s_barrier')
    P.stamp()
    AB = SP
    groups = [(i, min(8, NI - i)) for i in range(0, NI, 8)]
    def greads(gi):
        i0, n = groups[gi]
        for i in range(i0, i0 + n): a(f'ds_read_u16_d16_hi {v(GI+i)}, {v(VC)} offset:{GT_ + (i+1)*256}')
        for p_ in range((n + 1)//2): a(f'ds_read_b128 {v(AB + (gi & 1)*16 + 4*p_, 4)}, {v(VSA)} offset:{ST_ + 16 + (i0//2 + p_)*16}')
        return n + (n + 1)//2
    greads(0)
    for gi in range(len(groups)):
        if gi + 1 < len(groups):
            cnt = greads(gi + 1); a(f's_waitcnt lgkmcnt({cnt})')
        else:
            for i in range(14): a(f'ds_read_u16_d16_hi {v(WR+i)}, {t1} offset:{WT_ + i*256}')
            a('s_waitcnt lgkmcnt(14)')
        i0, n = groups[gi]
        for i in range(n):
            q = AB + (gi & 1)*16 + 4*(i//2) + 2*(i & 1)
            a(f'v_fma_f32 {v(GI+i0+i)}, {v(GI+i0+i)}, {v(q)}, {v(q+1)}')
    for i in range(14, 31): a(f'ds_read_u16_d16_hi {v(WR+i)}, {t1} offset:{WT_ + i*256}')
    a('s_waitcnt lgkmcnt(0)')
    P.stamp()
    for o in range(32):
        a(f'v_mul_f32 {v(OUT+o)}, {v(GI+o)}, {v(WR)}')
    for i in range(1, 31):
        for o in range(32):
            a(f'v_fmac_f32 {v(OUT+o)}, {v(GI+o+i)}, {v(WR+i)}')
    P.stamp()
    a(f's_mul_i32 s{sLB}, s{sW8}, {32*TRS}'); a(f's_add_u32 s{sLB}, s{sLB}, {TR_}')
    a(f'v_lshl_add_u32 {t2}, {L}, 2, s{sLB}')
    for o in range(32):
        a(f'ds_write_b32 {t2}, {v(OUT+o)} offset:{o*TRS}')
    a(f'v_and_b32 {t0}, 31, {L}'); a(f'v_lshrrev_b32 {t1}, 5, {L}')
    a(f'v_mul_u32_u24 {t2}, {TRS}, {t0}'); a(f'v_lshl_add_u32 {t2}, {t1}, 5, {t2}'); a(f'v_add_u32 {t2}, s{sLB}, {t2}')
    a('s_waitcnt lgkmcnt(0)')
    CR = 16
    for j in range(4):
        for q in range(2):
            a(f'ds_read_b128 {v(CR+8*j+4*q,4)}, {t2} offset:{j*64 + q*16}')
    a('s_waitcnt vmcnt(0) lgkmcnt(0)')
    a(f's_add_u32 s{sT}, s{sUO}, {UC}')
    for j in range(4):
        for d in range(4):
            u = UR + 4*j + d; c = CR + 8*j + 2*d
            a(f'v_lshlrev_b32 {t3}, 16, {v(u)}'); a(f'v_and_b32 {t4}, 0xffff0000, {v(u)}')
            a(f'v_mul_f32 {v(c)}, {v(c)}, {t3}'); a(f'v_mul_f32 {v(c+1)}, {v(c+1)}, {t4}')
            a(f'v_cvt_pk_bf16_f32 {v(u)}, {v(c)}, {v(c+1)}')
        a(f'buffer_store_dwordx4 {v(UR+4*j,4)}, {v(VU)}, s[{sW}:{sW+3}], s{sT} offen offset:{j*1024}{ST_FLAGS}')
    P.n = 8; P.stamp()
    if prof: a('s_waitcnt vmcnt(0)')
    P.stamp(); P.real(); P.finish(sW8, 4, 5)
    a.label('K2_END')
    a('s_endpgm')
    return dict(name=name, body=a.text(), grid=256, block=512, lds=KT_BYTES, vgpr=256, agpr=0, sgpr=102 if prof else 64)
```

```python
from common import *

def build(name='k3_kernel', prof=False, NS=5):
    a = Asm()
    P = Prof(a, prof, 2)
    vm = VM(a)
    LANE, T0 = 0, 2
    L = v(LANE); t0, t1, t2, t3, t4 = (v(T0 + i) for i in range(5))
    sW, sX, sO = 8, 12, 16
    sW8, sXC, sSL, sT, sT2, sT3 = 20, 21, 22, 23, 24, 25
    sB, sRT, sJT, sML = 26, 27, 28, 29
    sP0, sP1, sV0, sV1, sU0, sU1, sW0, sW1 = 30, 31, 32, 33, 34, 35, 36, 37
    X0, X1 = 64, 128
    VL16, VML = 8, 9
    MLR = 16
    C0 = 10
    XR = 48
    VXO = 14
    a('s_cmp_ge_u32 s2, 256'); a('s_cbranch_scc1 K3_END')
    P.real(); P.stamp()
    a('s_load_dwordx2 s[4:5], s[0:1], 88'); a('s_load_dwordx2 s[6:7], s[0:1], 0'); a('s_load_dwordx2 s[18:19], s[0:1], 72')
    a(f'v_lshrrev_b32 {t0}, 6, v0'); a(f'v_and_b32 {L}, 63, v0')
    a(f'v_readfirstlane_b32 s{sW8}, {t0}')
    a(f's_and_b32 s{sXC}, s2, 7'); a(f's_lshr_b32 s{sSL}, s2, 3')
    a(f's_lshr_b32 s{sB}, s{sXC}, 2')
    a(f's_and_b32 s{sRT}, s{sXC}, 3'); a(f's_lshl_b32 s{sRT}, s{sRT}, 2'); a(f's_and_b32 s{sT}, s{sSL}, 3'); a(f's_add_u32 s{sRT}, s{sRT}, s{sT}')
    a(f's_lshr_b32 s{sJT}, s{sSL}, 2')
    a(f'v_lshlrev_b32 {v(VL16)}, 4, {L}')
    a(f's_lshl_b32 s{sT}, s{sB}, 5'); a(f's_lshl_b32 s{sT2}, s{sRT}, 1'); a(f's_add_u32 s{sT}, s{sT}, s{sT2}')
    a(f's_lshl_b32 s{sML}, s{sT}, 11'); a(f's_add_u32 s{sML}, s{sML}, {ML}')
    a(f's_mul_i32 s{sP0}, s{sT}, {S64}'); a(f's_lshl_b32 s{sT2}, s{sW8}, 14'); a(f's_add_u32 s{sP0}, s{sP0}, s{sT2}'); a(f's_add_u32 s{sP0}, s{sP0}, {PF}')
    a(f's_add_u32 s{sP1}, s{sP0}, {S64}')
    a(f's_lshl_b32 s{sV0}, s{sB}, 4'); a(f's_lshl_b32 s{sT3}, s{sJT}, 1'); a(f's_add_u32 s{sV0}, s{sV0}, s{sT3}'); a(f's_mul_i32 s{sV0}, s{sV0}, {S64}')
    a(f's_add_u32 s{sV0}, s{sV0}, s{sT2}'); a(f's_add_u32 s{sV0}, s{sV0}, {VT}'); a(f's_add_u32 s{sV1}, s{sV0}, {S64}')
    a(f's_lshl_b32 s{sT2}, s{sW8}, 13')
    a(f's_mul_i32 s{sU0}, s{sT}, {S32}'); a(f's_add_u32 s{sU0}, s{sU0}, s{sT2}'); a(f's_add_u32 s{sU0}, s{sU0}, {UC}'); a(f's_add_u32 s{sU1}, s{sU0}, {S32}')
    a(f's_mul_i32 s{sW0}, s{sT3}, {S32}'); a(f's_add_u32 s{sW0}, s{sW0}, s{sT2}'); a(f's_add_u32 s{sW0}, s{sW0}, {WO2}'); a(f's_add_u32 s{sW1}, s{sW0}, {S32}')
    a(f'v_and_b32 {t0}, 31, {L}'); a(f'v_lshrrev_b32 {t2}, 5, {L}')
    a(f'v_lshlrev_b32 {v(VML)}, 2, {t0}'); a(f'v_lshl_add_u32 {v(VML)}, {t2}, 11, {v(VML)}')
    a('s_waitcnt lgkmcnt(0)')
    srd(a, sW, 4, 5, WS_BYTES)
    NSTEP = 24
    def load1(t, i):
        b = (t % NS) * 16
        srcs = (sV0, sV1, sP0, sP1) if t < 16 else (sW0, sW1, sU0, sU1)
        tt = t if t < 16 else t - 16
        vm.issue(f'buffer_load_dwordx4 {ag(b+4*i,4)}, {v(VL16)}, s[{sW}:{sW+3}], s{srcs[i]} offen offset:{(tt%4)*1024}', ('f', t))
        if tt % 4 == 3: a(f's_add_u32 s{srcs[i]}, s{srcs[i]}, 4096')
    for t in range(NS):
        for i in range(4): load1(t, i)
    P.stamp()
    srd(a, sX, 6, 7, OUT_BYTES)
    a(f's_mov_b32 s{sO}, s18'); a(f's_mov_b32 s{sO+1}, s19'); a(f's_mov_b32 s{sO+2}, {OUT_BYTES}'); a(f's_mov_b32 s{sO+3}, {SRD3}')
    a(f's_and_b32 s{sT}, s{sW8}, 1'); a(f's_lshl_b32 s{sT}, s{sT}, 5'); a(f's_lshl_b32 s{sT2}, s{sRT}, 6'); a(f's_add_u32 s{sT}, s{sT}, s{sT2}')
    a(f'v_add_u32 {t0}, s{sT}, {t0}')
    a(f's_mul_i32 s{sT}, s{sB}, 1000')
    a(f'v_add_u32 {t1}, s{sT}, {t0}'); a(f'v_lshlrev_b32 {t1}, 10, {t1}')
    a(f'v_lshl_add_u32 {t1}, {t2}, 4, {t1}')
    a(f's_lshr_b32 s{sT}, s{sW8}, 1'); a(f's_lshl_b32 s{sT}, s{sT}, 6'); a(f's_lshl_b32 s{sT2}, s{sJT}, 7'); a(f's_add_u32 s{sT}, s{sT}, s{sT2}')
    a(f'v_add_u32 {t1}, s{sT}, {t1}')
    a(f'v_cmp_gt_u32 vcc, 1000, {t0}')
    a(f'v_mov_b32 {t2}, 0x7ffffff0')
    a(f'v_cndmask_b32 {v(VXO)}, {t2}, {t1}, vcc')

    def factors():
        o = []
        m = MLR; l = m + 8
        o += [f'v_max3_f32 {t0}, {v(m)}, {v(m+1)}, {v(m+2)}', f'v_max3_f32 {t1}, {v(m+3)}, {v(m+4)}, {v(m+5)}',
              f'v_max3_f32 {t0}, {t0}, {v(m+6)}, {v(m+7)}', f'v_max_f32 {t0}, {t0}, {t1}']
        o += [f'v_sub_f32 {v(m+t)}, {v(m+t)}, {t0}' for t in range(8)]
        o += [f'v_exp_f32 {v(m+t)}, {v(m+t)}' for t in range(8)]
        o += [f'v_mul_f32 {t1}, {v(m)}, {v(l)}', f'v_mul_f32 {t0}, {v(m+1)}, {v(l+1)}']
        for t in range(2, 8, 2):
            o += [f'v_fmac_f32 {t1}, {v(m+t)}, {v(l+t)}', f'v_fmac_f32 {t0}, {v(m+t+1)}, {v(l+t+1)}']
        o += [f'v_add_f32 {t1}, {t1}, {t0}', f'v_rcp_f32 {t1}, {t1}']
        for k in range(2):
            o.append(f'v_mov_b32 {t2}, {v(m+k)}')
            for w in range(1, 4):
                o += [f's_cmp_eq_u32 s{sW8}, {w}\ns_cselect_b64 vcc, -1, 0\nv_cndmask_b32 {t2}, {t2}, {v(m+2*w+k)}, vcc']
            o += [f'v_mul_f32 {v(C0 + 2*k)}, {t2}, {t1}', f'v_mov_b32 {v(C0 + 2*k + 1)}, {v(C0 + 2*k)}']
        for k in range(2):
            o.append(f'v_permlane32_swap_b32 {v(C0 + 2*k)}, {v(C0 + 2*k + 1)}')
        return o
    side = []
    issued = NS
    for t in range(NSTEP):
        vm.wait(('f', t))
        if t in (0, 4, 8, 12, 16, 20): P.stamp()
        b = (t % NS) * 16
        acc = X0 if (t < 8 or t >= 16) else X1
        first = t in (0, 8)
        if t == 1:
            for tt in range(8):
                for q in range(2):
                    vm.issue(f'buffer_load_dword {v(MLR + q*8 + tt)}, {v(VML)}, s[{sW}:{sW+3}], s{sML} offen offset:{tt*256 + q*128}', 'ml')
        if t == 4:
            vm.wait('ml'); side = factors()
        if t == 9:
            assert not side
            side = [f'v_mul_f32 {v(X0 + (jb*2+rb)*16 + j)}, {v(X0 + (jb*2+rb)*16 + j)}, {v(C0+rb)}' for jb in range(2) for rb in range(2) for j in range(16)]
        if t == 16:
            assert not side
            for jb in range(2):
                for rb in range(2):
                    for j in range(16):
                        o = (jb*2 + rb)*16 + j
                        a(f'v_fmac_f32 {v(X0+o)}, {v(X1+o)}, {v(C0+2+rb)}')
        if t == 14:
            vm.issue(f'buffer_load_dwordx4 {v(XR,4)}, {v(VXO)}, s[{sX}:{sX+3}], 0 offen', 'x')
            vm.issue(f'buffer_load_dwordx4 {v(XR+4,4)}, {v(VXO)}, s[{sX}:{sX+3}], 0 offen offset:32', 'x')
        nxt = issued < NSTEP and t >= 1
        per = (len(side) + 3) // 4 if t in (7, 15) else min(4, len(side))
        for jb in range(2):
            for rb in range(2):
                d = acc + (jb*2 + rb) * 16
                a(f'v_mfma_f32_32x32x16_bf16 {v(d,16)}, {ag(b+4*jb,4)}, {ag(b+8+4*rb,4)}, {"0" if first else v(d,16)}')
                if nxt: load1(issued, jb*2 + rb)
                for _ in range(min(per, len(side))): a(side.pop(0))
        if nxt: issued += 1
    assert not side
    P.stamp()
    labs = [a.new('K3R') for _ in range(4)]
    lF = a.new('K3F')
    a(f's_lshl_b32 s{sT}, s{sW8}, 12'); a(f'v_add_u32 {t0}, s{sT}, {v(VL16)}')
    a(f's_lshl_b32 s{sT}, s{sW8}, 14'); a(f'v_add_u32 {t1}, s{sT}, {v(VL16)}')
    for w in range(1, 4):
        a(f's_cmp_eq_u32 s{sW8}, {w}'); a(f's_cbranch_scc1 {labs[w]}')
    R0 = X1
    for w in range(4):
        a.label(labs[w])
        a('s_nop 7'); a('s_nop 3')
        for T in range(4):
            if T == w: continue
            for q in range(4):
                a(f'ds_write_b128 {t0}, {v(X0 + T*16 + q*4, 4)} offset:{T*16384 + q*1024}')
        a('s_waitcnt lgkmcnt(0)'); a('s_barrier')
        k = 0
        for src in range(4):
            if src == w: continue
            for q in range(4):
                a(f'ds_read_b128 {v(R0 + k*16 + q*4, 4)}, {t1} offset:{src*4096 + q*1024}')
            k += 1
        own = X0 + w*16
        a('s_waitcnt lgkmcnt(8)')
        for j in range(16): a(f'v_add_f32 {v(R0+48+j)}, {v(own+j)}, {v(R0+j)}')
        a('s_waitcnt lgkmcnt(0)')
        if w < 3: a(f's_branch {lF}')
    a.label(lF)
    P.stamp()
    A0 = R0 + 48
    for j in range(16): a(f'v_add_f32 {v(R0+16+j)}, {v(R0+16+j)}, {v(R0+32+j)}')
    for j in range(16): a(f'v_add_f32 {v(A0+j)}, {v(A0+j)}, {v(R0+16+j)}')
    for hh in range(2):
        for r in range(4):
            a(f'v_permlane32_swap_b32 {v(A0 + 8*hh + r)}, {v(A0 + 8*hh + 4 + r)}')
    vm.wait('x')
    for hh in range(2):
        for d in range(4):
            x = XR + 4*hh + d; c = A0 + 8*hh + 2*d
            a(f'v_lshlrev_b32 {t3}, 16, {v(x)}'); a(f'v_and_b32 {t4}, 0xffff0000, {v(x)}')
            a(f'v_add_f32 {v(c)}, {v(c)}, {t3}'); a(f'v_add_f32 {v(c+1)}, {v(c+1)}, {t4}')
            a(f'v_cvt_pk_bf16_f32 {v(x)}, {v(c)}, {v(c+1)}')
        a(f'buffer_store_dwordx4 {v(XR+4*hh,4)}, {v(VXO)}, s[{sO}:{sO+3}], 0 offen offset:{hh*32}')
    P.stamp()
    if prof: a('s_waitcnt vmcnt(0)')
    P.stamp(); P.real(); P.finish(sW8, 4, 5)
    a.label('K3_END')
    a('s_endpgm')
    return dict(name=name, body=a.text(), grid=256, block=256, lds=65536, vgpr=192, agpr=NS*16, sgpr=102 if prof else 64)
```

```python
from common import *

R = 3
STG = 40960
NST = 8
GC0 = -2.0 * 0.7978845608028654 * LOG2E
GC1 = GC0 * 0.044715

def gelu_block(a, ys, tmps, vC0, sC1):
    for y, q in zip(ys, tmps): a(f'v_mul_f32 {v(q)}, {v(y)}, {v(y)}')
    for y, q in zip(ys, tmps): a(f'v_fma_f32 {v(q)}, {v(q)}, s{sC1}, {v(vC0)}')
    for y, q in zip(ys, tmps): a(f'v_mul_f32 {v(q)}, {v(q)}, {v(y)}')
    for y, q in zip(ys, tmps): a(f'v_exp_f32 {v(q)}, {v(q)}')
    for y, q in zip(ys, tmps): a(f'v_add_f32 {v(q)}, 1.0, {v(q)}')
    for y, q in zip(ys, tmps): a(f'v_rcp_f32 {v(q)}, {v(q)}')
    for y, q in zip(ys, tmps): a(f'v_mul_f32 {v(y)}, {v(y)}, {v(q)}')

def build(name='k1_kernel', prof=False, touch=False, xf=' nt', wf='', prio=0, stf=' sc1'):
    a = Asm()
    P = Prof(a, prof, 0)
    ACC = 0
    AS, AG, AC = 48, 52, 56
    FR = 68
    ONES = 132
    AX, AXS, AW = 136, 140, 144
    VX0, VX1, VW = 146, 147, 148
    LANE, T0 = 151, 152
    def fr(st, what, i=0):
        b = FR + st * 32
        return {'x': b + 4 * i, 'xs': b + 16, 'w': b + 20 + 4 * i}[what]
    sX, sWs = 24, 28
    sB = [32, 36, 40]
    sW8, sWR, sWC, sRT, sCT, sFOLD = 44, 45, 46, 47, 48, 49
    sOX, sOW, sSW, sM0 = 50, [51, 52, 53], [54, 55, 56], 57
    sTY, sOB = [58, 59, 60], [61, 62, 63]
    sT, sT2, sT3, sC1 = 20, 21, 22, 23
    L = v(LANE); t0, t1, t2, t3, t4 = (v(T0 + i) for i in range(5))

    a('s_cmp_ge_u32 s2, 248'); a('s_cbranch_scc0 K1_GO')
    a('s_branch K1_END')
    a.label('K1_GO')
    if prio: a('s_setprio 3')
    P.real(); P.stamp()
    a('s_load_dwordx16 s[4:19], s[0:1], 0')
    a('s_load_dwordx2 s[100:101], s[0:1], 64')
    a('s_load_dwordx2 s[98:99], s[0:1], 88')
    a(f'v_lshrrev_b32 {t0}, 6, v0'); a(f'v_and_b32 {L}, 63, v0')
    a(f'v_readfirstlane_b32 s{sW8}, {t0}')
    a(f's_and_b32 s{sT}, s2, 7'); a(f's_lshr_b32 s{sT2}, s2, 3')
    a(f's_cmp_ge_u32 s{sT2}, 28'); a(f's_cselect_b32 s{sFOLD}, 1, 0')
    a(f's_lshr_b32 s{sWR}, s{sW8}, 2'); a(f's_and_b32 s{sWC}, s{sW8}, 3')
    a(f's_lshl_b32 s{sM0}, s{sW8}, 10')
    lF, lD = a.new('K1F'), a.new('K1D')
    a(f's_cmp_eq_u32 s{sFOLD}, 1'); a(f's_cbranch_scc1 {lF}')
    a(f's_and_b32 s{sRT}, s{sT}, 3'); a(f's_lshl_b32 s{sRT}, s{sRT}, 2'); a(f's_and_b32 s{sT3}, s{sT2}, 3'); a(f's_add_u32 s{sRT}, s{sRT}, s{sT3}')
    a(f's_lshr_b32 s{sCT}, s{sT}, 2'); a(f's_mul_i32 s{sCT}, s{sCT}, 7'); a(f's_lshr_b32 s{sT3}, s{sT2}, 2'); a(f's_add_u32 s{sCT}, s{sCT}, s{sT3}')
    a('s_waitcnt lgkmcnt(0)')
    srd(a, sX, 4, 5, OUT_BYTES)
    for j in range(3):
        bi = sOB[j]
        if j == 0:
            a(f's_lshl_b32 s{bi}, s{sCT}, 1'); a(f's_cmp_ge_u32 s{sCT}, 12'); a(f's_cselect_b32 s{bi}, 0, s{bi}')
        elif j == 1:
            a(f's_lshl_b32 s{bi}, s{sCT}, 1'); a(f's_add_u32 s{sT}, s{bi}, 1'); a(f's_add_u32 s{sT2}, s{bi}, 4')
            a(f's_cmp_ge_u32 s{sCT}, 12'); a(f's_cselect_b32 s{bi}, s{sT2}, s{sT}')
        else:
            a(f's_add_u32 s{sT}, s{sCT}, 32'); a(f's_add_u32 s{sT2}, s{sCT}, 16')
            a(f's_cmp_ge_u32 s{sCT}, 8'); a(f's_cselect_b32 s{sT}, s{sT2}, s{sT}')
            a(f's_lshl_b32 s{sT2}, s{sCT}, 1'); a(f's_add_u32 s{sT2}, s{sT2}, 5')
            a(f's_cmp_ge_u32 s{sCT}, 12'); a(f's_cselect_b32 s{bi}, s{sT2}, s{sT}')
        a(f's_lshr_b32 s{sT}, s{bi}, 3'); a(f's_and_b32 s{sT2}, s{bi}, 7')
        b = sB[j]
        a(f's_cmp_eq_u32 s{sT}, 1'); a(f's_cselect_b32 s{b}, s8, s6'); a(f's_cselect_b32 s{b+1}, s9, s7')
        a(f's_cmp_eq_u32 s{sT}, 2'); a(f's_cselect_b32 s{b}, s10, s{b}'); a(f's_cselect_b32 s{b+1}, s11, s{b+1}')
        a(f's_cmp_ge_u32 s{sT}, 3'); a(f's_cselect_b32 s{b}, s14, s{b}'); a(f's_cselect_b32 s{b+1}, s15, s{b+1}')
        a(f's_mov_b32 s{b+2}, {1 << 19}'); a(f's_cselect_b32 s{b+2}, {1 << 20}, s{b+2}'); a(f's_mov_b32 s{b+3}, {SRD3}')
        a(f's_cselect_b32 s{sSW[j]}, 11, 10')
        a(f's_sub_u32 s{sTY[j]}, s{sT}, 2'); a(f's_max_i32 s{sTY[j]}, s{sTY[j]}, 0')
        if j == 0:
            a(f's_cmp_ge_u32 s{sCT}, 12'); a(f's_cselect_b32 s{sTY[j]}, 3, s{sTY[j]}')
        a(f's_lshl_b32 s{sOW[j]}, s{sT2}, 7'); a(f's_cmp_eq_u32 s{sT}, 4'); a(f's_cselect_b32 s{sT3}, 1024, 0'); a(f's_add_u32 s{sOW[j]}, s{sOW[j]}, s{sT3}')
    a(f's_lshr_b32 s{sT3}, s{sRT}, 3'); a(f's_mul_i32 s{sT3}, s{sT3}, 1000')
    a(f's_and_b32 s{sT}, s{sRT}, 7'); a(f's_lshl_b32 s{sT}, s{sT}, 7'); a(f's_add_u32 s{sOX}, s{sT3}, s{sT}'); a(f's_lshl_b32 s{sOX}, s{sOX}, 10')
    a(f's_branch {lD}')
    a.label(lF)
    a(f's_mul_i32 s{sT}, s{sT}, 3'); a(f's_sub_u32 s{sT2}, s{sT2}, 28'); a(f's_add_u32 s{sT}, s{sT}, s{sT2}')
    a(f's_mov_b32 s{sCT}, s{sT2}')
    a(f's_sub_u32 s{sT}, s{sT}, s{sT2}'); a(f's_mul_i32 s{sT}, s{sT}, 43691'); a(f's_lshr_b32 s{sT}, s{sT}, 17')
    a(f's_and_b32 s{sRT}, s{sT}, 3')
    a(f's_lshr_b32 s{sT3}, s{sT}, 2')
    a('s_waitcnt lgkmcnt(0)')
    a(f's_cmp_eq_u32 s{sT3}, 1'); a(f's_cselect_b32 s{sX}, s18, s12'); a(f's_cselect_b32 s{sX+1}, s19, s13')
    a(f's_mov_b32 s{sX+2}, {1 << 19}'); a(f's_mov_b32 s{sX+3}, {SRD3}')
    a(f's_lshl_b32 s{sOX}, s{sRT}, 17')
    for j in range(3):
        b = sB[j]
        a(f's_mov_b32 s{b}, s100'); a(f's_mov_b32 s{b+1}, s101'); a(f's_mov_b32 s{b+2}, {1 << 20}'); a(f's_mov_b32 s{b+3}, {SRD3}')
        a(f's_mov_b32 s{sSW[j]}, 10')
        a(f's_mul_i32 s{sOB[j]}, s{sCT}, 3'); a(f's_add_u32 s{sOB[j]}, s{sOB[j]}, {j}')
        a(f's_cmp_ge_u32 s{sOB[j]}, 8'); a(f's_cselect_b32 s{sTY[j]}, 3, 0'); a(f's_min_u32 s{sOB[j]}, s{sOB[j]}, 7')
        a(f's_lshl_b32 s{sOW[j]}, s{sOB[j]}, 7'); a(f's_lshl_b32 s{sT}, s{sT3}, 19'); a(f's_add_u32 s{sOW[j]}, s{sOW[j]}, s{sT}')
    a(f's_mov_b32 s{sFOLD}, s{sT3}'); a(f's_add_u32 s{sFOLD}, s{sFOLD}, 1')
    a.label(lD)
    a(f's_mov_b32 s{sWs}, s98'); a(f's_mov_b32 s{sWs+1}, s99'); a(f's_mov_b32 s{sWs+2}, {WS_BYTES}'); a(f's_mov_b32 s{sWs+3}, {SRD3}')
    a(f'v_lshrrev_b32 {t0}, 3, {L}')
    a(f'v_and_b32 {t1}, 7, {L}')
    a(f'v_lshrrev_b32 {t2}, 1, {t0}')
    a(f'v_xor_b32 {t3}, {t2}, {t1}')
    a(f's_lshl_b32 s{sT}, s{sW8}, 4')
    a(f'v_add_u32 {t4}, s{sT}, {t0}'); a(f'v_lshlrev_b32 {t4}, 10, {t4}'); a(f'v_add_u32 {t4}, s{sOX}, {t4}')
    a(f's_mov_b32 s{sOX}, 0')
    a(f'v_lshl_add_u32 {v(VX0)}, {t3}, 4, {t4}')
    a(f'v_xor_b32 {t3}, 4, {t3}'); a(f'v_add_u32 {t4}, 8192, {t4}')
    a(f'v_lshl_add_u32 {v(VX1)}, {t3}, 4, {t4}')
    a(f'v_and_b32 {t2}, 1, {t2}'); a(f's_and_b32 s{sT}, s{sW8}, 1'); a(f's_lshl_b32 s{sT}, s{sT}, 1')
    a(f'v_or_b32 {t2}, s{sT}, {t2}'); a(f'v_lshlrev_b32 {t2}, 1, {t2}'); a(f'v_xor_b32 {t2}, {t2}, {t1}'); a(f'v_lshlrev_b32 {t2}, 4, {t2}')
    a(f's_lshl_b32 s{sT}, s{sW8}, 3'); a(f'v_add_u32 {t0}, s{sT}, {t0}')
    for j in range(3):
        a(f'v_lshlrev_b32 {v(VW+j)}, s{sSW[j]}, {t0}'); a(f'v_add_u32 {v(VW+j)}, {v(VW+j)}, {t2}')
        a(f's_add_u32 s{sSW[j]}, s{sSW[j]}, 6'); a(f's_lshl_b32 s{sSW[j]}, 1, s{sSW[j]}')

    def dma_groups(st):
        base = (st % R) * STG
        g = []
        g.append(([f's_lshl_b32 s{sT}, s{sM0}, 1', f's_add_u32 m0, s{sT}, {base}'],
                  [f'buffer_load_dwordx4 {v(VX0)}, s[{sX}:{sX+3}], s{sOX} offen{xf} lds']))
        g.append(([f's_add_u32 m0, m0, 1024'],
                  [f'buffer_load_dwordx4 {v(VX1)}, s[{sX}:{sX+3}], s{sOX} offen{xf} lds', f's_add_u32 s{sOX}, s{sOX}, 128']))
        for j in range(3):
            g.append(([f's_add_u32 m0, s{sM0}, {base + 16384 + j*8192}'],
                      [f'buffer_load_dwordx4 {v(VW+j)}, s[{sB[j]}:{sB[j]+3}], s{sOW[j]} offen{wf} lds', f's_add_u32 s{sOW[j]}, s{sOW[j]}, s{sSW[j]}']))
        return g
    def dma(st):
        for pre, post in dma_groups(st):
            for l in pre + post: a(l)
    TCH = T0 + 5
    if touch:
        lW, lT = a.new('K1TW'), a.new('K1TD')
        a(f's_mov_b32 s92, s{sX}'); a(f's_mov_b32 s93, s{sX+1}'); a(f's_mov_b32 s94, s{sX+2}'); a(f's_mov_b32 s95, {SRD3}')
        a(f'v_mov_b32 {v(TCH)}, {v(VX0)}')
        a(f's_lshr_b32 s{sT2}, s2, 3')
        a(f's_cmp_ge_u32 s{sW8}, 2'); a(f's_cbranch_scc1 {lW}')
        a(f's_lshr_b32 s{sT2}, s{sT2}, 2'); a(f's_cmp_lg_u32 s{sFOLD}, 0'); a(f's_cselect_b32 s{sT2}, s{sCT}, s{sT2}')
        a(f's_add_u32 s{sT2}, s{sT2}, 1'); a(f's_lshl_b32 s{sT2}, s{sT2}, 7')
        a(f'v_and_b32 {t0}, 0xfffffc00, {v(VX0)}')
        a(f'v_lshrrev_b32 {t1}, 3, {L}'); a(f's_lshl_b32 s{sT}, s{sW8}, 4'); a(f'v_add_u32 {t1}, s{sT}, {t1}'); a(f'v_lshlrev_b32 {t1}, 10, {t1}')
        a(f'v_sub_u32 {t0}, {t0}, {t1}')
        a(f's_lshl_b32 s{sT}, s{sW8}, 6'); a(f'v_add_u32 {t1}, s{sT}, {L}'); a(f'v_lshl_add_u32 {t0}, {t1}, 10, {t0}')
        a(f'v_add_u32 {v(TCH)}, s{sT2}, {t0}')
        a(f's_branch {lT}')
        a.label(lW)
        a(f's_and_b32 s{sT2}, s{sT2}, 3'); a(f's_cmp_lg_u32 s{sFOLD}, 0'); a(f's_cselect_b32 s{sT2}, s{sRT}, s{sT2}'); a(f's_and_b32 s{sT2}, s{sT2}, 3')
        a(f's_mul_i32 s{sT2}, s{sT2}, 96'); a(f's_and_b32 s{sT}, s{sW8}, 1'); a(f's_mul_i32 s{sT}, s{sT}, 48'); a(f's_add_u32 s{sT2}, s{sT2}, s{sT}'); a(f's_add_u32 s{sT2}, s{sT2}, 128')
        a(f'v_min_u32 {t0}, 47, {L}'); a(f'v_add_u32 {t0}, s{sT2}, {t0}')
        a(f's_sub_u32 s{sT}, s{sW8}, 2'); a(f's_lshr_b32 s{sT}, s{sT}, 1')
        for j in range(3):
            lj = a.new('K1TJ')
            a(f's_cmp_lg_u32 s{sT}, {j}'); a(f's_cbranch_scc1 {lj}')
            a(f's_lshr_b32 s{sT2}, s{sSW[j]}, 6'); a(f'v_mul_lo_u32 {t0}, {t0}, s{sT2}'); a(f'v_add_u32 {v(TCH)}, s{sOW[j]}, {t0}')
            a(f's_mov_b32 s92, s{sB[j]}'); a(f's_mov_b32 s93, s{sB[j]+1}'); a(f's_mov_b32 s94, s{sB[j]+2}'); a(f's_mov_b32 s95, {SRD3}')
            a.label(lj)
        a.label(lT)
    dma(0); a('s_barrier'); dma(1)
    if touch: a(f'buffer_load_dword {v(TCH+1)}, {v(TCH)}, s[92:95], 0 offen')
    if prio:
        a('s_setprio 0')
        if prio == 1:
            lp = a.new('K1P')
            a(f's_cmp_lt_u32 s{sW8}, 4'); a(f's_cbranch_scc1 {lp}'); a('s_setprio 1'); a.label(lp)
    P.stamp()

    a(f'v_and_b32 {t0}, 15, {L}'); a(f'v_lshrrev_b32 {t1}, 4, {L}')
    a(f'v_lshrrev_b32 {t2}, 1, {t0}'); a(f'v_xor_b32 {t2}, {t2}, {t1}')
    a(f'v_lshlrev_b32 {t2}, 4, {t2}'); a(f'v_lshl_add_u32 {t2}, {t0}, 7, {t2}')
    a(f's_lshl_b32 s{sT}, s{sWR}, 13')
    a(f'v_add_u32 {v(AX)}, s{sT}, {t2}'); a(f'v_xor_b32 {v(AX+1)}, 64, {v(AX)}')
    a(f's_lshl_b32 s{sT}, s{sWC}, 11')
    a(f'v_add_u32 {v(AXS)}, s{sT}, {v(AX)}'); a(f'v_add_u32 {v(AXS+1)}, s{sT}, {v(AX+1)}')
    for b in (AX, AXS):
        a(f'v_add_u32 {v(b+2)}, {2*STG}, {v(b)}'); a(f'v_add_u32 {v(b+3)}, {2*STG}, {v(b+1)}')
    a(f'v_bfe_u32 {t2}, {L}, 2, 2')
    a(f'v_lshl_add_u32 {t3}, {t1}, 3, {t2}'); a(f'v_lshlrev_b32 {t3}, 7, {t3}')
    a(f'v_lshrrev_b32 {t2}, 1, {t2}'); a(f'v_and_b32 {t4}, 1, {t1}'); a(f'v_lshl_or_b32 {t2}, {t4}, 1, {t2}'); a(f'v_lshlrev_b32 {t2}, 1, {t2}')
    a(f'v_bfe_u32 {t4}, {L}, 1, 1'); a(f's_lshl_b32 s{sT}, s{sWC}, 1'); a(f'v_or_b32 {t4}, s{sT}, {t4}')
    a(f'v_xor_b32 {t2}, {t2}, {t4}'); a(f'v_lshl_add_u32 {t3}, {t2}, 4, {t3}')
    a(f'v_and_b32 {t4}, 1, {L}'); a(f'v_lshl_add_u32 {t3}, {t4}, 3, {t3}')
    a(f'v_add_u32 {v(AW)}, 16384, {t3}'); a(f'v_add_u32 {v(AW+1)}, {16384 + 2*STG}, {t3}')
    for i in range(4): a(f'v_mov_b32 {v(ONES+i)}, 0x3f803f80')
    for i in range(AC, AC+12): a(f'v_mov_b32 {v(i)}, 0')

    def reads(u, stats):
        st, h = u >> 1, u & 1
        r = st % R; hi = 1 if r == 2 else 0; off = (r & 1) * STG if r < 2 else 0; se = u & 1
        out = []
        for s_ in range(4):
            out.append(f'ds_read_b128 {v(fr(se,"x",s_),4)}, {v(AX + 2*hi + h)} offset:{off + s_*2048}')
        if stats: out.append(f'ds_read_b128 {v(fr(se,"xs"),4)}, {v(AXS + 2*hi + h)} offset:{off}')
        for j in range(3):
            for e in range(2):
                out.append(f'ds_read_b64_tr_b16 {v(fr(se,"w",j)+2*e,2)}, {v(AW + hi)} offset:{off + j*8192 + h*4096 + e*512}')
        return out
    def mfmas(u, wr):
        se = u & 1; out = []
        first = (u == 0)
        mm = lambda d, x, y, z=False: f'v_mfma_f32_16x16x32_bf16 {v(d,4)}, {v(x,4)}, {v(y,4)}, {"0" if z else v(d,4)}'
        for j in range(3):
            for s_ in range(4):
                d = ACC + (j*4+s_)*4
                out.append(mm(d, fr(se,'w',j), fr(se,'x',s_), first) if wr < 2 else mm(d, fr(se,'x',s_), fr(se,'w',j), first))
        if wr < 2:
            out.insert(4, mm(AS, ONES, fr(se,'xs'), first))
            out.insert(9, mm(AG, fr(se,'xs'), fr(se,'xs'), first))
            for j in range(3):
                if (j + u + wr) % 2 == 0: out.append(mm(AC + 4*j, fr(se,'w',j), ONES))
        return out

    a(f's_waitcnt vmcnt({6 if touch else 5})'); a('s_barrier')
    P.stamp()
    labs = [a.new('K1V') for _ in range(3)]
    lE, lEF = a.new('K1EPI'), a.new('K1EPF')
    a(f's_cmp_lg_u32 s{sFOLD}, 0'); a(f's_cbranch_scc1 {labs[2]}')
    a(f's_cmp_eq_u32 s{sWR}, 1'); a(f's_cbranch_scc1 {labs[1]}')
    for var in range(3):
        a.label(labs[var])
        stats = var < 2
        for l in reads(0, stats): a(l)
        pend = dma_groups(2)
        issued = 3
        for u in range(2*NST):
            st = u >> 1
            if u & 1 and st + 1 < NST:
                assert not pend
                a(f's_waitcnt vmcnt({5*(issued - (st+2)) + (1 if touch and st == 0 else 0)}) lgkmcnt(0)')
                a('s_barrier')
                if st in (1, 3, 5):
                    n0 = P.n; P.n = 4 + st // 2; P.stamp(); P.n = n0
                if issued < NST:
                    pend = dma_groups(issued); issued += 1
            else:
                a('s_waitcnt lgkmcnt(0)')
            rd = reads(u + 1, stats) if u + 1 < 2*NST else []
            mf = mfmas(u, var)
            quota = len(pend) if (u == 0 or not (u & 1)) else min(3, len(pend))
            n = max(len(rd), len(mf))
            slots = [1 + (k * (len(mf) - 1)) // quota for k in range(quota)] if quota else []
            post = None
            for i in range(n):
                if i in slots:
                    pre, post = pend.pop(0)
                    for l in pre: a(l)
                if i < len(mf): a(mf[i])
                if post:
                    for l in post: a(l)
                    post = None
                if i < len(rd): a(rd[i])
        if var == 0: a(f's_branch {lE}')
        if var == 1: a(f's_branch {lE}')
    P.n = 7; P.stamp()
    PK = FR
    a(f'v_and_b32 {t0}, 15, {L}'); a(f'v_lshrrev_b32 {t1}, 4, {L}')
    a(f's_and_b32 s{sT}, s{sWC}, 1'); a(f's_lshl_b32 s{sT}, s{sT}, 4')
    a(f'v_add_u32 {t2}, s{sT}, {t0}'); a(f'v_lshrrev_b32 {t3}, 1, {t1}'); a(f'v_lshl_add_u32 {t2}, {t3}, 5, {t2}'); a(f'v_lshlrev_b32 {t2}, 4, {t2}')
    a(f'v_and_b32 {t4}, 1, {t1}'); a(f'v_lshl_add_u32 {t2}, {t4}, 3, {t2}')
    a(f's_cmp_eq_u32 s{sFOLD}, 2'); a(f's_mov_b32 s{sT3}, {WO1}'); a(f's_cselect_b32 s{sT3}, {WO2}, s{sT3}')
    a(f's_lshl_b32 s{sT}, s{sRT}, 3'); a(f's_lshl_b32 s{sT2}, s{sWR}, 2'); a(f's_add_u32 s{sT}, s{sT}, s{sT2}'); a(f's_lshl_b32 s{sT}, s{sT}, 10')
    a(f's_add_u32 s{sT3}, s{sT3}, s{sT}')
    for j in range(3):
        lS = a.new('K1FS')
        a(f's_cmp_eq_u32 s{sTY[j]}, 3'); a(f's_cbranch_scc1 {lS}')
        a(f's_lshl_b32 s{sT}, s{sOB[j]}, 1'); a(f's_lshr_b32 s{sT2}, s{sWC}, 1'); a(f's_add_u32 s{sT}, s{sT}, s{sT2}'); a(f's_mul_i32 s{sT}, s{sT}, {S32}')
        a(f's_add_u32 s{sT}, s{sT}, s{sT3}')
        for s_ in range(4):
            b = ACC + (j*4+s_)*4; p = PK + 2*s_
            a(f'v_cvt_pk_bf16_f32 {v(p)}, {v(b)}, {v(b+1)}'); a(f'v_cvt_pk_bf16_f32 {v(p+1)}, {v(b+2)}, {v(b+3)}')
            a(f'buffer_store_dwordx2 {v(p,2)}, {t2}, s[{sWs}:{sWs+3}], s{sT} offen offset:{s_*1024}{stf}')
        a.label(lS)
    a('s_branch K1_FIN')

    a.label(lE)
    P.n = 7; P.stamp()
    ST, CS, GSL, GTL = 0, 1024, 4096, 8192
    TR = FR
    a('s_nop 7')
    a(f'v_and_b32 {t0}, 15, {L}'); a(f'v_lshrrev_b32 {t1}, 4, {L}')
    a(f'v_and_b32 {t2}, 3, {t0}')
    d = v(TR)
    a(f'v_cmp_eq_u32 vcc, 1, {t2}'); a(f'v_cndmask_b32 {d}, {v(AG)}, {v(AG+1)}, vcc')
    a(f'v_cmp_eq_u32 vcc, 2, {t2}'); a(f'v_cndmask_b32 {d}, {d}, {v(AG+2)}, vcc')
    a(f'v_cmp_eq_u32 vcc, 3, {t2}'); a(f'v_cndmask_b32 {d}, {d}, {v(AG+3)}, vcc')
    mean, var_ = v(TR+2), v(TR+3)
    a(f's_mov_b32 s{sT}, {f32(1/512)}'); a(f's_mov_b32 s{sT2}, {f32(1e-5)}')
    a(f'v_mul_f32 {mean}, s{sT}, {v(AS)}')
    a(f'v_mul_f32 {d}, s{sT}, {d}')
    a(f'v_fma_f32 {var_}, -{mean}, {mean}, {d}')
    a(f'v_max_f32 {var_}, 0, {var_}'); a(f'v_add_f32 {var_}, s{sT2}, {var_}')
    a(f'v_rsq_f32 {var_}, {var_}')
    a(f's_lshl_b32 s{sT}, s{sW8}, 4')
    a(f'v_add_u32 {t2}, s{sT}, {t0}'); a(f'v_lshlrev_b32 {t2}, 3, {t2}')
    a(f'v_lshrrev_b32 {t3}, 2, {t0}')
    a(f'v_cmp_eq_u32 vcc, {t3}, {t1}')
    a(f's_and_saveexec_b64 s[96:97], vcc')
    a(f'ds_write_b64 {t2}, {v(TR+2,2)} offset:{ST}')
    a('s_mov_b64 exec, s[96:97]')
    a(f's_mul_i32 s{sT}, s{sW8}, 192')
    a(f'v_lshlrev_b32 {t3}, 4, {t1}'); a(f'v_add_u32 {t4}, s{sT}, {t3}')
    a(f'v_cmp_eq_u32 vcc, 0, {t0}')
    a(f's_and_saveexec_b64 s[96:97], vcc')
    for j in range(3): a(f'ds_write_b128 {t4}, {v(AC+4*j,4)} offset:{CS + j*64}')
    a('s_mov_b64 exec, s[96:97]')
    a('s_waitcnt lgkmcnt(0)'); a('s_barrier')
    P.stamp()
    a(f's_mul_i32 s{sT}, s{sWC}, 192'); a(f'v_add_u32 {t4}, s{sT}, {t3}')
    for j in range(3):
        a(f'ds_read_b128 {v(AC+4*j,4)}, {t4} offset:{CS + j*64}')
        a(f'ds_read_b128 {v(TR+4*j,4)}, {t4} offset:{CS + 768 + j*64}')
    STA = TR + 12
    a(f's_lshl_b32 s{sT}, s{sWR}, 9'); a(f'v_lshl_add_u32 {t2}, {t0}, 3, s{sT}')
    for s_ in range(4): a(f'ds_read_b64 {v(STA+2*s_,2)}, {t2} offset:{ST + s_*128}')
    a('s_waitcnt lgkmcnt(0)')
    for i in range(12): a(f'v_add_f32 {v(AC+i)}, {v(AC+i)}, {v(TR+i)}')
    for s_ in range(4): a(f'v_sub_f32 {v(STA+2*s_)}, 0, {v(STA+2*s_)}')
    VA, VG = TR, TR+1
    PK = TR + 24
    GT = TR + 40
    a(f'v_lshlrev_b32 {v(VA)}, 4, {L}')
    a(f'v_and_b32 {t2}, 1, {t1}'); a(f'v_lshl_add_u32 {t2}, {t2}, 4, {t0}')
    a(f'v_lshrrev_b32 {t3}, 1, {t1}')
    a(f's_lshl_b32 s{sT}, s{sWC}, 1'); a(f'v_or_b32 {t4}, s{sT}, {t3}'); a(f'v_and_b32 {v(VG)}, 7, {t0}'); a(f'v_xor_b32 {t4}, {t4}, {v(VG)}')
    a(f'v_lshlrev_b32 {t4}, 4, {t4}'); a(f'v_lshl_add_u32 {v(VG)}, {t2}, 7, {t4}')
    a(f's_lshl_b32 s{sT}, s{sWR}, 13'); a(f'v_add_u32 {v(VG)}, s{sT}, {v(VG)}')
    VS = TR + 2
    a(f'v_lshlrev_b32 {v(VS)}, 3, {t2}'); a(f'v_lshl_add_u32 {v(VS)}, {t3}, 2, {v(VS)}')
    a(f's_lshl_b32 s{sT}, s{sWC}, 10'); a(f's_lshl_b32 s{sT2}, s{sWR}, 9'); a(f's_add_u32 s{sT}, s{sT}, s{sT2}'); a(f'v_add_u32 {v(VS)}, s{sT}, {v(VS)}')
    a(f's_mov_b32 s{sC1}, {f32(GC1)}'); a(f'v_mov_b32 {v(GT+8)}, {f32(GC0)}')
    sRB = sM0
    a(f's_lshl_b32 s{sRB}, s{sRT}, 2'); a(f's_lshl_b32 s{sT}, s{sWR}, 1'); a(f's_add_u32 s{sRB}, s{sRB}, s{sT}')
    def pack(j, pair, p):
        b = ACC + (j*4 + 2*pair)*4
        a(f'v_cvt_pk_bf16_f32 {v(p)}, {v(b)}, {v(b+1)}'); a(f'v_cvt_pk_bf16_f32 {v(p+1)}, {v(b+2)}, {v(b+3)}')
        a(f'v_cvt_pk_bf16_f32 {v(p+2)}, {v(b+4)}, {v(b+5)}'); a(f'v_cvt_pk_bf16_f32 {v(p+3)}, {v(b+6)}, {v(b+7)}')
        a(f'v_permlane16_swap_b32 {v(p)}, {v(p+2)}'); a(f'v_permlane16_swap_b32 {v(p+1)}, {v(p+3)}')
    for j in range(3):
        lN, lG, lFS = a.new('K1N'), a.new('K1G'), a.new('K1FS')
        ty, bi = sTY[j], sOB[j]
        if j == 0:
            a(f's_cmp_eq_u32 s{ty}, 3'); a(f's_cbranch_scc1 {lN}')
        for s_ in range(4):
            for r in range(4):
                x = ACC + (j*4+s_)*4 + r
                a(f'v_fmac_f32 {v(x)}, {v(STA+2*s_)}, {v(AC+4*j+r)}')
            for r in range(4):
                x = ACC + (j*4+s_)*4 + r
                a(f'v_mul_f32 {v(x)}, {v(x)}, {v(STA+2*s_+1)}')
        if j > 0:
            if j == 1:
                a(f's_cmp_eq_u32 s{ty}, 0'); a(f's_cbranch_scc1 {lFS}')
            for h in range(2):
                gelu_block(a, [ACC + j*16 + 8*h + i for i in range(8)], [GT + i for i in range(8)], GT + 8, sC1)
            if j == 2:
                P.stamp()
                a(f's_cmp_eq_u32 s{ty}, 2'); a(f's_cbranch_scc1 {lG}')
        a.label(lFS)
        a(f's_lshr_b32 s{sT}, s{bi}, 3'); a(f's_mul_i32 s{sT}, s{sT}, {REG}')
        a(f's_and_b32 s{sT2}, s{bi}, 7'); a(f's_lshl_b32 s{sT2}, s{sT2}, 2'); a(f's_add_u32 s{sT2}, s{sT2}, s{sWC}'); a(f's_lshl_b32 s{sT2}, s{sT2}, 10')
        a(f's_add_u32 s{sT}, s{sT}, s{sT2}'); a(f's_mul_i32 s{sT2}, s{sRB}, {S32}'); a(f's_add_u32 s{sT}, s{sT}, s{sT2}')
        for pair in range(2):
            p = PK + 4*pair
            pack(j, pair, p)
            if pair: a(f's_add_u32 s{sT}, s{sT}, {S32}')
            a(f'buffer_store_dwordx4 {v(p,4)}, {v(VA)}, s[{sWs}:{sWs+3}], s{sT} offen{stf}')
        if j == 2:
            a(f's_branch {lN}')
            a.label(lG)
            a(f's_and_b32 s{sT3}, s{bi}, 7')
            SQ = PK + 8
            for pair in range(2):
                for sl in range(2):
                    b = ACC + (j*4 + 2*pair + sl)*4; S_, Q_ = SQ + sl, SQ + 2 + sl
                    a(f'v_add_f32 {v(S_)}, {v(b)}, {v(b+1)}'); a(f'v_mul_f32 {v(Q_)}, {v(b)}, {v(b)}')
                    a(f'v_add_f32 {v(S_)}, {v(S_)}, {v(b+2)}'); a(f'v_fmac_f32 {v(Q_)}, {v(b+1)}, {v(b+1)}')
                    a(f'v_add_f32 {v(S_)}, {v(S_)}, {v(b+3)}'); a(f'v_fmac_f32 {v(Q_)}, {v(b+2)}, {v(b+2)}')
                    a(f'v_fmac_f32 {v(Q_)}, {v(b+3)}, {v(b+3)}')
                p = PK + 4*pair
                pack(j, pair, p)
                a(f'ds_write_b128 {v(VG)}, {v(p,4)} offset:{GTL + pair*4096}')
                a(f'v_permlane16_swap_b32 {v(SQ)}, {v(SQ+1)}'); a(f'v_permlane16_swap_b32 {v(SQ+2)}, {v(SQ+3)}')
                a(f'v_add_f32 {v(SQ)}, {v(SQ)}, {v(SQ+1)}'); a(f'v_add_f32 {v(SQ+2)}, {v(SQ+2)}, {v(SQ+3)}')
                a(f'v_permlane32_swap_b32 {v(SQ)}, {v(SQ+2)}')
                a(f'v_add_f32 {v(SQ)}, {v(SQ)}, {v(SQ+2)}')
                a(f'ds_write_b32 {v(VS)}, {v(SQ)} offset:{GSL + pair*256}')
            a('s_waitcnt lgkmcnt(0)'); a('s_barrier')
            a(f'v_lshrrev_b32 {t2}, 3, {L}'); a(f'v_and_b32 {t3}, 7, {L}'); a(f'v_xor_b32 {t4}, {t3}, {t2}')
            a(f'v_lshlrev_b32 {t4}, 4, {t4}'); a(f'v_lshl_add_u32 {t4}, {t2}, 7, {t4}'); a(f's_lshl_b32 s{sT}, s{sW8}, 11'); a(f'v_add_u32 {t4}, s{sT}, {t4}')
            a(f'ds_read_b128 {v(PK,4)}, {t4} offset:{GTL}'); a(f'ds_read_b128 {v(PK+4,4)}, {t4} offset:{GTL + 1024}')
            a(f'v_lshlrev_b32 {t2}, 10, {t2}'); a(f'v_lshl_add_u32 {t2}, {t3}, 4, {t2}')
            a(f's_lshl_b32 s{sT}, s{sRT}, 7'); a(f's_lshl_b32 s{sT2}, s{sW8}, 4'); a(f's_add_u32 s{sT}, s{sT}, s{sT2}'); a(f's_lshl_b32 s{sT}, s{sT}, 10')
            a(f's_lshl_b32 s{sT2}, s{sT3}, 7'); a(f's_add_u32 s{sT}, s{sT}, s{sT2}'); a(f's_add_u32 s{sT}, s{sT}, {G}')
            a('s_waitcnt lgkmcnt(0)')
            a(f'buffer_store_dwordx4 {v(PK,4)}, {t2}, s[{sWs}:{sWs+3}], s{sT} offen{stf}')
            a(f's_add_u32 s{sT}, s{sT}, 8192')
            a(f'buffer_store_dwordx4 {v(PK+4,4)}, {t2}, s[{sWs}:{sWs+3}], s{sT} offen{stf}')
            lK = a.new('K1GK')
            a(f's_cmp_ge_u32 s{sW8}, 4'); a(f's_cbranch_scc1 {lK}')
            a(f's_lshl_b32 s{sT}, s{sW8}, 6'); a(f'v_add_u32 {t2}, s{sT}, {L}')
            a(f'v_lshlrev_b32 {t3}, 2, {t2}')
            for w in range(4): a(f'ds_read_b32 {v(SQ+w)}, {t3} offset:{GSL + w*1024}')
            a(f's_lshl_b32 s{sT}, s{sRT}, 10'); a(f's_lshl_b32 s{sT2}, s{sT3}, 14'); a(f's_add_u32 s{sT}, s{sT}, s{sT2}'); a(f's_add_u32 s{sT}, s{sT}, {GS}')
            a('s_waitcnt lgkmcnt(0)')
            a(f'v_add_f32 {v(SQ)}, {v(SQ)}, {v(SQ+1)}'); a(f'v_add_f32 {v(SQ+2)}, {v(SQ+2)}, {v(SQ+3)}'); a(f'v_add_f32 {v(SQ)}, {v(SQ)}, {v(SQ+2)}')
            a(f'buffer_store_dword {v(SQ)}, {t3}, s[{sWs}:{sWs+3}], s{sT} offen{stf}')
            a.label(lK)
            if j == 1: a('s_barrier')
        a.label(lN)
        if j < 2: P.stamp()
    a.label('K1_FIN')
    P.n = 12; P.stamp()
    if prof: a('s_waitcnt vmcnt(0)')
    P.stamp(); P.real()
    P.finish(sW8, sWs, sWs+1)
    a.label('K1_END')
    a('s_endpgm')
    return dict(name=name, body=a.text(), grid=256, block=512, lds=R*STG, vgpr=160, agpr=0, sgpr=102)
```

```python
from common import *

SCALE = LOG2E / (512 ** 0.5)
KT_BYTES = 131072
CV_W = 9216
TRS = 272
NPART = 32

def build(name='k2_kernel', prof=False, prio=0, stf=' sc1'):
    a = Asm()
    P = Prof(a, prof, 1)
    LANE, T0 = 0, 2
    L = v(LANE); t0, t1, t2, t3, t4 = (v(T0 + i) for i in range(5))
    sW, sD = 8, 12
    sW8, sXC, sSL, sT, sT2, sT3 = 16, 17, 18, 19, 20, 21
    sA, sB, sOUT, sKT, sJOB, sM0, sOA, sOB, sML = 22, 23, 24, 25, 26, 27, 28, 29, 30
    a('s_cmp_ge_u32 s2, 256'); a('s_cbranch_scc1 K2_END')
    P.real(); P.stamp()
    a('s_load_dwordx2 s[4:5], s[0:1], 88'); a('s_load_dwordx2 s[6:7], s[0:1], 48')
    a(f'v_lshrrev_b32 {t0}, 6, v0'); a(f'v_and_b32 {L}, 63, v0')
    a(f'v_readfirstlane_b32 s{sW8}, {t0}')
    a(f's_and_b32 s{sXC}, s2, 7'); a(f's_lshr_b32 s{sSL}, s2, 3')
    a(f's_cmp_ge_u32 s{sSL}, 24'); a('s_cbranch_scc1 K2_CONV')
    a(f's_cmp_ge_u32 s{sW8}, 4'); a('s_cbranch_scc1 K2_END')

    KB, QR, ACC = 32, 64, 192
    lV, lJ = a.new('K2V'), a.new('K2J')
    a(f's_cmp_ge_u32 s{sSL}, 16'); a(f's_cbranch_scc1 {lV}')
    a(f's_mov_b32 s{sJOB}, 0')
    a(f's_lshr_b32 s{sT}, s{sXC}, 2'); a(f's_lshl_b32 s{sT}, s{sT}, 5')
    a(f's_and_b32 s{sKT}, s{sXC}, 1'); a(f's_lshl_b32 s{sKT}, s{sKT}, 2'); a(f's_lshr_b32 s{sT2}, s{sSL}, 2'); a(f's_add_u32 s{sKT}, s{sKT}, s{sT2}')
    a(f's_lshr_b32 s{sT2}, s{sXC}, 1'); a(f's_and_b32 s{sT2}, s{sT2}, 1'); a(f's_lshl_b32 s{sT2}, s{sT2}, 2')
    a(f's_and_b32 s{sT3}, s{sSL}, 3'); a(f's_add_u32 s{sT2}, s{sT2}, s{sT3}')
    a(f's_lshl_b32 s{sT2}, s{sT2}, 2'); a(f's_add_u32 s{sT2}, s{sT2}, s{sT}'); a(f's_add_u32 s{sT2}, s{sT2}, s{sW8}')
    a(f's_lshl_b32 s{sA}, s{sKT}, 2'); a(f's_add_u32 s{sA}, s{sA}, s{sT}'); a(f's_mul_i32 s{sA}, s{sA}, {S32}'); a(f's_add_u32 s{sA}, s{sA}, {KF}')
    a(f's_mul_i32 s{sB}, s{sT2}, {S32}'); a(f's_add_u32 s{sB}, s{sB}, {QF}')
    a(f's_mul_i32 s{sOUT}, s{sT2}, {S64}'); a(f's_lshl_b32 s{sT3}, s{sKT}, 13'); a(f's_add_u32 s{sOUT}, s{sOUT}, s{sT3}'); a(f's_add_u32 s{sOUT}, s{sOUT}, {PF}')
    a(f's_lshl_b32 s{sML}, s{sT2}, 3'); a(f's_add_u32 s{sML}, s{sML}, s{sKT}'); a(f's_lshl_b32 s{sML}, s{sML}, 8'); a(f's_add_u32 s{sML}, s{sML}, {ML}')
    a(f's_branch {lJ}')
    a.label(lV)
    a(f's_mov_b32 s{sJOB}, 1')
    a(f's_sub_u32 s{sT3}, s{sSL}, 16')
    a(f's_lshr_b32 s{sT}, s{sT3}, 2'); a(f's_lshl_b32 s{sT2}, s{sXC}, 1'); a(f's_add_u32 s{sT}, s{sT}, s{sT2}')
    a(f's_and_b32 s{sKT}, s{sT}, 7')
    a(f's_mul_i32 s{sA}, s{sT}, {4*S32}'); a(f's_add_u32 s{sA}, s{sA}, {VF}')
    a(f's_and_b32 s{sT3}, s{sT3}, 3'); a(f's_lshl_b32 s{sT3}, s{sT3}, 2'); a(f's_add_u32 s{sT3}, s{sT3}, s{sW8}')
    a(f's_mul_i32 s{sB}, s{sT3}, {S32}'); a(f's_add_u32 s{sB}, s{sB}, {WO1}')
    a(f's_lshr_b32 s{sT}, s{sT}, 3'); a(f's_lshl_b32 s{sT}, s{sT}, 4'); a(f's_add_u32 s{sT}, s{sT}, s{sT3}')
    a(f's_mul_i32 s{sOUT}, s{sT}, {S64}'); a(f's_lshl_b32 s{sT3}, s{sKT}, 13'); a(f's_add_u32 s{sOUT}, s{sOUT}, s{sT3}'); a(f's_add_u32 s{sOUT}, s{sOUT}, {VT}')
    a.label(lJ)
    VL16, RA, RB = 8, 9, 10
    a(f'v_lshlrev_b32 {v(VL16)}, 4, {L}')
    a(f'v_mov_b32 {v(RA)}, {v(VL16)}'); a(f'v_add_u32 {v(RB)}, 65536, {v(VL16)}')
    a(f's_lshl_b32 s{sM0}, s{sW8}, 15')
    a(f's_mul_i32 s{sOA}, s{sW8}, {S32}'); a(f's_add_u32 s{sOA}, s{sOA}, s{sA}'); a(f's_mov_b32 s{sOB}, s{sB}')
    a('s_waitcnt lgkmcnt(0)')
    srd(a, sW, 4, 5, WS_BYTES)
    def kload(k):
        if k % 4 == 0: a(f's_add_u32 m0, s{sM0}, {k*1024}')
        a(f'buffer_load_dwordx4 {v(VL16)}, s[{sW}:{sW+3}], s{sOA} offen offset:{(k%4)*1024} lds')
        a(f'buffer_load_dwordx4 {v(QR + 4*k, 4)}, {v(VL16)}, s[{sW}:{sW+3}], s{sOB} offen offset:{(k%4)*1024}')
        if k % 4 == 3:
            a(f's_add_u32 s{sOA}, s{sOA}, 4096'); a(f's_add_u32 s{sOB}, s{sOB}, 4096')
    CH, LA = 2, 6
    for k in range(LA): kload(k)
    P.stamp()
    def kreads(ks):
        se = ks & 1
        for kb in range(4):
            base = RA if kb < 2 else RB
            a(f'ds_read_b128 {v(KB + se*16 + kb*4, 4)}, {v(base)} offset:{(kb & 1)*32768 + ks*1024}')
    issued = LA
    a(f's_waitcnt vmcnt({2*(issued - CH)})'); a('s_barrier')
    P.stamp()
    kreads(0)
    for ks in range(32):
        if ks + 1 < 32:
            if (ks + 1) % CH == 0:
                a(f's_waitcnt vmcnt({2*(issued - (ks + 1 + CH))})'); a('s_barrier')
                if ks + 1 in (8, 16, 24): P.stamp()
            kreads(ks + 1)
            a('s_waitcnt lgkmcnt(4)')
        else:
            a('s_waitcnt lgkmcnt(0)')
        se = ks & 1
        for kb in range(4):
            d = ACC + 16*kb
            a(f'v_mfma_f32_32x32x16_bf16 {v(d,16)}, {v(KB + se*16 + kb*4, 4)}, {v(QR + 4*ks, 4)}, {"0" if ks == 0 else v(d,16)}')
            if kb == 0 and issued < 32:
                kload(issued); issued += 1
    P.stamp()
    lSE, lVE = a.new('K2SE'), a.new('K2VE')
    PK = 32
    def store_frags():
        for kb in range(4):
            for h in range(2):
                p = PK + ((kb*2+h) % 4) * 4
                b = ACC + 16*kb + 8*h
                for i in range(4):
                    a(f'v_cvt_pk_bf16_f32 {v(p+i)}, {v(b+2*i)}, {v(b+2*i+1)}')
                f = kb*2 + h
                a(f's_add_u32 s{sT}, s{sOUT}, {(f//4)*4096}') if f % 4 == 0 else None
                a(f'buffer_store_dwordx4 {v(p,4)}, {v(VL16)}, s[{sW}:{sW+3}], s{sT} offen offset:{(f%4)*1024}{stf}')
    a(f's_cmp_eq_u32 s{sJOB}, 0'); a(f's_cbranch_scc1 {lSE}')
    store_frags()
    P.stamp()
    if prof: a('s_waitcnt vmcnt(0)')
    P.stamp(); P.real(); P.finish(sW8, 4, 5); P.n = 8
    a('s_endpgm')
    a.label(lSE)
    lNM = a.new('K2NM')
    a('s_nop 7'); a('s_nop 7')
    a(f's_cmp_lg_u32 s{sKT}, 7'); a(f's_cbranch_scc1 {lNM}')
    for j in range(4, 16): a(f'v_mov_b32 {v(ACC+48+j)}, 0xff800000')
    a.label(lNM)
    M, M2, SUM = 12, 13, 14
    a(f'v_max3_f32 {v(M)}, {v(ACC)}, {v(ACC+1)}, {v(ACC+2)}')
    a(f'v_max3_f32 {v(M2)}, {v(ACC+3)}, {v(ACC+4)}, {v(ACC+5)}')
    i = 6
    while i + 3 < 64:
        a(f'v_max3_f32 {v(M)}, {v(M)}, {v(ACC+i)}, {v(ACC+i+1)}')
        a(f'v_max3_f32 {v(M2)}, {v(M2)}, {v(ACC+i+2)}, {v(ACC+i+3)}')
        i += 4
    a(f'v_max3_f32 {v(M)}, {v(M)}, {v(ACC+62)}, {v(ACC+63)}')
    a(f'v_max_f32 {v(M)}, {v(M)}, {v(M2)}')
    a(f'v_mov_b32 {v(M2)}, {v(M)}')
    a(f'v_permlane32_swap_b32 {v(M)}, {v(M2)}')
    a(f'v_max_f32 {v(M)}, {v(M)}, {v(M2)}')
    a(f's_mov_b32 s{sT2}, {f32(SCALE)}')
    a(f'v_mul_f32 {v(M)}, s{sT2}, {v(M)}')
    a(f'v_mov_b32 {v(SUM)}, 0'); a(f'v_mov_b32 {v(M2)}, 0')
    for kb in range(4):
        for h in range(2):
            b = ACC + 16*kb + 8*h
            for i in range(8): a(f'v_fma_f32 {v(b+i)}, {v(b+i)}, s{sT2}, -{v(M)}')
            for i in range(8): a(f'v_exp_f32 {v(b+i)}, {v(b+i)}')
            p = PK + ((kb*2+h) % 4) * 4
            for i in range(4):
                a(f'v_add_f32 {v(SUM)}, {v(SUM)}, {v(b+2*i)}'); a(f'v_add_f32 {v(M2)}, {v(M2)}, {v(b+2*i+1)}')
                a(f'v_cvt_pk_bf16_f32 {v(p+i)}, {v(b+2*i)}, {v(b+2*i+1)}')
            f = kb*2 + h
            if f % 4 == 0: a(f's_add_u32 s{sT}, s{sOUT}, {(f//4)*4096}')
            a(f'buffer_store_dwordx4 {v(p,4)}, {v(VL16)}, s[{sW}:{sW+3}], s{sT} offen offset:{(f%4)*1024}{stf}')
    a(f'v_add_f32 {v(SUM)}, {v(SUM)}, {v(M2)}')
    a(f'v_mov_b32 {v(M2)}, {v(SUM)}')
    a(f'v_permlane32_swap_b32 {v(SUM)}, {v(M2)}')
    a(f'v_add_f32 {v(SUM)}, {v(SUM)}, {v(M2)}')
    a(f'v_cmp_gt_u32 vcc, 32, {L}')
    a(f'v_cndmask_b32 {v(SUM)}, {v(SUM)}, {v(M)}, vcc')
    a(f'v_lshlrev_b32 {t0}, 2, {L}')
    a(f'buffer_store_dword {v(SUM)}, {t0}, s[{sW}:{sW+3}], s{sML} offen{stf}')
    P.stamp()
    if prof: a('s_waitcnt vmcnt(0)')
    P.stamp(); P.real(); P.finish(sW8, 4, 5); P.n = 2
    a('s_endpgm')

    a.label('K2_CONV')
    if prio: a('s_setprio 3')
    sTQ, sCHH, sCG, sRT, sR0, sLB, sBB, sUO = 22, 23, 24, 25, 26, 27, 28, 29
    NI = 62
    GT_, WT_, ST_, TR_ = 0, 40960, 49152, 51200
    GI, WR, OUT = 16, 80, 112
    SP, UR, SR = 144, 208, 224
    VC, VSA, VU = 8, 10, 11
    a(f's_sub_u32 s{sT}, s{sSL}, 24')
    a(f's_lshl_b32 s{sRT}, s{sXC}, 1'); a(f's_and_b32 s{sT2}, s{sT}, 1'); a(f's_add_u32 s{sRT}, s{sRT}, s{sT2}')
    a(f's_lshr_b32 s{sCG}, s{sT}, 1')
    a(f's_lshl_b32 s{sR0}, s{sRT}, 7'); a(f's_sub_u32 s{sR0}, s{sR0}, 16')
    a(f'v_lshrrev_b32 {t0}, 4, {L}'); a(f'v_and_b32 {t1}, 15, {L}'); a(f'v_lshlrev_b32 {t1}, 4, {t1}')
    a(f's_lshl_b32 s{sT}, s{sCG}, 8'); a(f'v_add_u32 {t1}, s{sT}, {t1}')
    a(f's_mul_i32 s{sT}, s{sW8}, 20'); a(f's_add_u32 s{sT3}, s{sT}, s{sR0}'); a(f'v_add_u32 {t2}, s{sT3}, {t0}')
    a(f's_mul_i32 s{sT2}, s{sW8}, 5120')
    a('s_waitcnt lgkmcnt(0)')
    srd(a, sW, 4, 5, WS_BYTES)
    a(f's_mov_b32 s{sLB}, {G}')
    for i in range(5):
        a(f'v_add_u32 {t3}, {4*i}, {t2}'); a(f'v_max_i32 {t3}, 0, {t3}'); a(f'v_min_i32 {t3}, 2047, {t3}')
        a(f'v_lshl_add_u32 {t3}, {t3}, 10, {t1}')
        a(f's_add_u32 m0, s{sT2}, {GT_ + i*1024}')
        a(f'buffer_load_dwordx4 {t3}, s[{sW}:{sW+3}], s{sLB} offen lds')
    a(f'v_min_u32 {t3}, 19, {L}'); a(f'v_add_u32 {v(SR)}, s{sT}, {t3}')
    a(f'v_add_u32 {v(SR+2)}, s{sR0}, {v(SR)}')
    a(f'v_max_i32 {t3}, 0, {v(SR+2)}'); a(f'v_min_i32 {t3}, 2047, {t3}'); a(f'v_lshlrev_b32 {t3}, 3, {t3}')
    for p_ in range(8):
        a(f's_mov_b32 s{sT}, {GS + p_*16384}')
        a(f'buffer_load_dwordx2 {v(SP+2*p_,2)}, {t3}, s[{sW}:{sW+3}], s{sT} offen')
    srd(a, sD, 6, 7, 31 * 1024)
    a(f's_lshl_b32 s{sT}, s{sW8}, 2'); a(f'v_add_u32 {t3}, s{sT}, {t0}'); a(f'v_lshl_add_u32 {t3}, {t3}, 10, {t1}')
    a(f's_lshl_b32 s{sT2}, s{sW8}, 10'); a(f's_add_u32 m0, s{sT2}, {WT_}')
    a(f'buffer_load_dwordx4 {t3}, s[{sD}:{sD+3}], 0 offen lds')
    if prio:
        a('s_setprio 0')
        if prio == 1:
            lp = a.new('K2P')
            a(f's_cmp_lt_u32 s{sW8}, 4'); a(f's_cbranch_scc1 {lp}'); a('s_setprio 1'); a.label(lp)
    P.stamp()
    a(f's_and_b32 s{sTQ}, s{sW8}, 3'); a(f's_lshr_b32 s{sCHH}, s{sW8}, 2')
    a(f's_lshr_b32 s{sBB}, s{sRT}, 3'); a(f's_lshl_b32 s{sBB}, s{sBB}, 10')
    for i in range(NI): a(f'v_mov_b32 {v(GI+i)}, 0')
    for i in range(31): a(f'v_mov_b32 {v(WR+i)}, 0')
    a(f's_lshl_b32 s{sT}, s{sTQ}, 13'); a(f's_lshl_b32 s{sT2}, s{sCHH}, 7'); a(f's_add_u32 s{sT}, s{sT}, s{sT2}')
    a(f'v_lshl_add_u32 {v(VC)}, {L}, 1, s{sT}')
    a(f'v_lshl_add_u32 {t1}, {L}, 1, s{sT2}')
    a(f's_lshl_b32 s{sT}, s{sTQ}, 8'); a(f'v_mov_b32 {v(VSA)}, s{sT}')
    a(f'v_lshlrev_b32 {v(VU)}, 4, {L}')
    a(f's_lshl_b32 s{sT}, s{sRT}, 2'); a(f's_add_u32 s{sT}, s{sT}, s{sTQ}'); a(f's_mul_i32 s{sT}, s{sT}, {S32}')
    a(f's_lshl_b32 s{sT2}, s{sCG}, 1'); a(f's_add_u32 s{sT2}, s{sT2}, s{sCHH}'); a(f's_lshl_b32 s{sT2}, s{sT2}, 12'); a(f's_add_u32 s{sUO}, s{sT}, s{sT2}')
    a('s_waitcnt vmcnt(1)')
    P.stamp()
    a(f's_mov_b32 s{sT}, {f32(1/512)}'); a(f's_mov_b32 s{sT2}, {f32(1e-5)}')
    b = SP
    for step in (8, 4, 2):
        for i in range(step): a(f'v_add_f32 {v(b+i)}, {v(b+i)}, {v(b+step+i)}')
    a(f'v_mul_f32 {v(b)}, s{sT}, {v(b)}'); a(f'v_mul_f32 {v(b+1)}, s{sT}, {v(b+1)}')
    a(f'v_fma_f32 {v(b+1)}, -{v(b)}, {v(b)}, {v(b+1)}')
    a(f'v_max_f32 {v(b+1)}, 0, {v(b+1)}'); a(f'v_add_f32 {v(b+1)}, s{sT2}, {v(b+1)}')
    a(f'v_rsq_f32 {v(b+2)}, {v(b+1)}')
    a(f'v_mul_f32 {v(b+3)}, {v(b)}, {v(b+2)}'); a(f'v_sub_f32 {v(b+3)}, 0, {v(b+3)}')
    a(f'v_subrev_u32 {t0}, s{sBB}, {v(SR+2)}')
    a(f'v_cmp_gt_u32 vcc, 1000, {t0}')
    a(f'v_cndmask_b32 {v(b+2)}, 0, {v(b+2)}, vcc'); a(f'v_cndmask_b32 {v(b+3)}, 0, {v(b+3)}, vcc')
    a(f'v_lshlrev_b32 {t0}, 3, {v(SR)}')
    a(f'ds_write_b64 {t0}, {v(b+2,2)} offset:{ST_ + 8}')
    a('s_waitcnt vmcnt(0) lgkmcnt(0)'); a('s_barrier')
    P.stamp()
    a(f's_add_u32 s{sT}, s{sUO}, {UF}')
    for j in range(4):
        a(f'buffer_load_dwordx4 {v(UR+4*j,4)}, {v(VU)}, s[{sW}:{sW+3}], s{sT} offen offset:{j*1024}')
    AB = SP
    batches = [(0, 15), (15, 15), (30, 1)]
    for i in range(NI): a(f'ds_read_u16_d16_hi {v(GI+i)}, {v(VC)} offset:{GT_ + (i+1)*256}')
    for bi_, (p0, n) in enumerate(batches):
        for p_ in range(n): a(f'ds_read_b128 {v(AB + 4*p_, 4)}, {v(VSA)} offset:{ST_ + 16 + (p0 + p_)*16}')
        if bi_ == 2:
            for i in range(13): a(f'ds_read_u16_d16_hi {v(WR+i)}, {t1} offset:{WT_ + i*256}')
            a('s_waitcnt lgkmcnt(13)')
        else:
            a('s_waitcnt lgkmcnt(0)')
        for i in range(2*n):
            q = AB + 4*(i//2) + 2*(i & 1)
            a(f'v_fma_f32 {v(GI+2*p0+i)}, {v(GI+2*p0+i)}, {v(q)}, {v(q+1)}')
    for i in range(13, 31): a(f'ds_read_u16_d16_hi {v(WR+i)}, {t1} offset:{WT_ + i*256}')
    a('s_waitcnt lgkmcnt(0)')
    P.stamp()
    for o in range(32):
        a(f'v_mul_f32 {v(OUT+o)}, {v(GI+o)}, {v(WR)}')
    for i in range(1, 31):
        for o in range(32):
            a(f'v_fmac_f32 {v(OUT+o)}, {v(GI+o+i)}, {v(WR+i)}')
    P.stamp()
    a(f's_mul_i32 s{sLB}, s{sW8}, {32*TRS}'); a(f's_add_u32 s{sLB}, s{sLB}, {TR_}')
    a(f'v_lshl_add_u32 {t2}, {L}, 2, s{sLB}')
    for o in range(32):
        a(f'ds_write_b32 {t2}, {v(OUT+o)} offset:{o*TRS}')
    a(f'v_and_b32 {t0}, 31, {L}'); a(f'v_lshrrev_b32 {t1}, 5, {L}')
    a(f'v_mul_u32_u24 {t2}, {TRS}, {t0}'); a(f'v_lshl_add_u32 {t2}, {t1}, 5, {t2}'); a(f'v_add_u32 {t2}, s{sLB}, {t2}')
    a('s_waitcnt lgkmcnt(0)')
    CR = 16
    for j in range(4):
        for q in range(2):
            a(f'ds_read_b128 {v(CR+8*j+4*q,4)}, {t2} offset:{j*64 + q*16}')
    a('s_waitcnt vmcnt(0) lgkmcnt(0)')
    a(f's_add_u32 s{sT}, s{sUO}, {UC}')
    for j in range(4):
        for d in range(4):
            u = UR + 4*j + d; c = CR + 8*j + 2*d
            a(f'v_lshlrev_b32 {t3}, 16, {v(u)}'); a(f'v_and_b32 {t4}, 0xffff0000, {v(u)}')
            a(f'v_mul_f32 {v(c)}, {v(c)}, {t3}'); a(f'v_mul_f32 {v(c+1)}, {v(c+1)}, {t4}')
            a(f'v_cvt_pk_bf16_f32 {v(u)}, {v(c)}, {v(c+1)}')
        a(f'buffer_store_dwordx4 {v(UR+4*j,4)}, {v(VU)}, s[{sW}:{sW+3}], s{sT} offen offset:{j*1024}{stf}')
    P.n = 8; P.stamp()
    if prof: a('s_waitcnt vmcnt(0)')
    P.stamp(); P.real(); P.finish(sW8, 4, 5)
    a.label('K2_END')
    a('s_endpgm')
    return dict(name=name, body=a.text(), grid=256, block=512, lds=KT_BYTES, vgpr=256, agpr=0, sgpr=102 if prof else 64)
```

```python
import sys
sys.path.insert(0, 'gen')
from asm import *
import k1, k2, k3
def w(tag, ks): open(f'var_{tag}.s', 'w').write(module(ks))
w('ss', [k1.build(), k2.build(), k3.build()])
w('sp', [k1.build(), k2.build(stf=''), k3.build()])
w('ps', [k1.build(stf=''), k2.build(), k3.build()])
w('pp', [k1.build(stf=''), k2.build(stf=''), k3.build()])
```

```python
import re, os

KNAME = "standalone__conformer_family_branchformer__speech_kernel"
_REF = 'standalone__conformer_family_branchformer__speech.s.ref'
HDR = open(_REF).read().split('; Override')[0]

TRANS = ('v_exp_f32', 'v_log_f32', 'v_rcp_f32', 'v_rsq_f32', 'v_sqrt_f32', 'v_sin_f32', 'v_cos_f32')
_reg_re = re.compile(r'^(-|abs\()?\s*([vas])(\d+|\[(\d+):(\d+)\])\)?$')

def regs_of(tok):
    tok = tok.strip()
    if tok in ('vcc', 'exec', 'm0', 'scc'):
        return {tok}
    if tok in ('vcc_lo', 'vcc_hi'):
        return {'vcc'}
    m = _reg_re.match(tok)
    if not m:
        return set()
    k = m.group(2)
    if m.group(4) is not None:
        return {(k, i) for i in range(int(m.group(4)), int(m.group(5)) + 1)}
    return {(k, int(m.group(3)))}

class Ins:
    __slots__ = ('text', 'op', 'ops', 'dst', 'src', 'kind', 'passes', 'srcC', 'srcAB', 'ws', 'dpp', 'sdwa_dst')
    def __init__(self, text):
        self.text = text
        t = text.split(';')[0].strip()
        parts = t.split(None, 1)
        self.op = parts[0] if parts else ''
        rest = parts[1] if len(parts) > 1 else ''
        listmods = ' '.join(re.findall(r'\b[a-z_]+:\[[^\]]*\]', rest))
        rest = re.sub(r'\s+[a-z_]+:\[[^\]]*\]', '', rest)
        toks = [x.strip() for x in rest.split(',')] if rest else []
        mods = ''
        if toks:
            last = toks[-1].split(None, 1)
            toks[-1] = last[0] if last else ''
            mods = last[1] if len(last) > 1 else ''
        mods += ' ' + listmods
        self.ops = toks
        self.dst, self.src = set(), set()
        self.passes = 0; self.srcC = set(); self.srcAB = set()
        self.ws = 1
        self.dpp = ('quad_perm' in mods or 'row_' in mods or 'wave_' in mods or self.op.endswith('_dpp'))
        self.sdwa_dst = ('dst_sel:' in mods and 'dst_sel:DWORD' not in mods)
        op = self.op
        R = [regs_of(x) for x in toks]
        allr = set().union(*R) if R else set()
        if op == 's_nop':
            self.kind = 'nop'; self.ws = int(toks[0], 0) + 1
        elif op.startswith('v_mfma'):
            self.kind = 'mfma'
            self.passes = 8 if '32x32' in op else (2 if '4x4x4' in op else 4)
            self.dst = R[0]; self.srcAB = R[1] | R[2]; self.srcC = R[3] if len(R) > 3 else set()
            self.src = self.srcAB | self.srcC
        elif op.startswith('v_'):
            self.kind = 'valu'
            base = op.replace('_e32', '').replace('_e64', '').replace('_dpp', '').replace('_sdwa', '')
            if base.startswith('v_permlane') and 'swap' in base:
                self.dst = R[0] | R[1]; self.src = R[0] | R[1]
            elif base.startswith('v_cmp'):
                self.dst = R[0]; self.src = set().union(*R[1:])
            elif base in ('v_add_co_u32', 'v_sub_co_u32', 'v_subrev_co_u32'):
                self.dst = R[0] | R[1]; self.src = set().union(*R[2:])
            elif base in ('v_addc_co_u32', 'v_subb_co_u32'):
                self.dst = R[0] | R[1]; self.src = set().union(*R[2:])
            else:
                self.dst = R[0]; self.src = set().union(*R[1:]) if len(R) > 1 else set()
                if base.startswith(('v_fmac', 'v_dot2c', 'v_writelane')):
                    self.src |= R[0]
                if base == 'v_cndmask_b32' and len(toks) == 3:
                    self.src |= {'vcc'}
        elif op.startswith(('buffer_', 'global_')):
            self.kind = 'vmem'
            lds = re.search(r'\blds\b', mods) or '_lds_' in op
            if op in ('buffer_wbl2', 'buffer_inv'):
                pass
            elif 'load' in op and not lds:
                self.dst = R[0]; self.src = set().union(*R[1:])
            elif 'atomic' in op and 'sc0' in mods:
                self.dst = R[0]; self.src = allr
            else:
                self.src = allr
            if lds: self.src |= {'m0'}
        elif op.startswith('ds_'):
            self.kind = 'ds'
            if op.startswith(('ds_read', 'ds_bpermute', 'ds_permute', 'ds_swizzle')):
                self.dst = R[0]; self.src = set().union(*R[1:])
            else:
                self.src = allr
        elif op.startswith('s_'):
            self.kind = 'salu'
            if op.startswith(('s_cmp', 's_waitcnt', 's_barrier', 's_branch', 's_cbranch', 's_endpgm', 's_sleep', 's_setprio', 's_bitcmp')):
                self.src = allr
            else:
                self.dst = R[0] if R else set(); self.src = set().union(*R[1:]) if len(R) > 1 else set()
                if 'saveexec' in op: self.dst |= {'exec'}
        else:
            self.kind = 'other'

def _isv(r): return isinstance(r, tuple) and r[0] in 'va'
def _iss(r): return (isinstance(r, tuple) and r[0] == 's') or r == 'vcc'

def need(p, c):
    n = 0
    if p.kind == 'valu':
        pv = {r for r in p.dst if _isv(r)}
        ps = {r for r in p.dst if _iss(r)}
        if pv:
            if c.kind == 'mfma' and (pv & c.src): n = max(n, 2)
            if c.kind == 'valu':
                b = c.op
                if b.startswith('v_permlane') and (pv & c.src): n = max(n, 2)
                if c.dpp and (pv & c.src): n = max(n, 2)
                if b.startswith(('v_readlane', 'v_readfirstlane')) and (pv & c.src): n = max(n, 1)
                if p.op.replace('_e32', '').replace('_e64', '') in TRANS and (pv & c.src): n = max(n, 1)
                if p.sdwa_dst and (pv & (c.src | c.dst)): n = max(n, 1)
        if ps:
            if c.kind == 'valu' and (ps & c.src):
                n = max(n, 4 if c.op.startswith(('v_readlane', 'v_writelane')) else 2)
            if c.kind == 'vmem' and (ps & c.src): n = max(n, 5)
            if c.kind == 'salu' and (ps & c.src): n = max(n, 2)
        if 'exec' in p.dst: n = max(n, 5)
    elif p.kind == 'mfma':
        raw = {2: 5, 4: 8, 8: 12}[p.passes]
        if c.kind == 'mfma':
            if p.dst & c.srcAB: n = max(n, raw)
            if p.dst & c.srcC:
                if p.dst == c.srcC and p.passes == c.passes: n = max(n, 2 if p.passes == 2 else 0)
                else: n = max(n, {2: 4, 4: 6, 8: 10}[p.passes])
            if (p.dst & c.dst) and not (p.dst & c.srcC): n = max(n, raw)
        elif c.kind in ('valu', 'vmem', 'ds'):
            if p.dst & (c.src | c.dst): n = max(n, raw)
            if c.kind == 'valu' and (p.srcC & c.dst): n = max(n, {2: 1, 4: 3, 8: 7}[p.passes])
    elif p.kind == 'salu':
        if 'm0' in p.dst and c.kind == 'vmem' and 'm0' in c.src: n = max(n, 1)
    elif p.kind == 'vmem':
        if 'store' in p.op and ('x4' in p.op or 'x3' in p.op):
            data = regs_of(p.ops[0]) if p.op.startswith('buffer') else regs_of(p.ops[1])
            if data & c.dst: n = max(n, 2 if c.kind == 'valu' else 1)
    return n

class Asm:
    def __init__(self):
        self.lines = []
        self.uid = 0
    def __call__(self, s=''):
        for l in s.split('\n'):
            l = l.strip()
            if l: self.lines.append(l)
    def label(self, n): self.lines.append(n + ':')
    def new(self, p='L'):
        self.uid += 1
        return f'{p}_{self.uid}'
    def text(self, pad=True):
        out = []; hist = []
        for l in self.lines:
            if l.endswith(':') or l.startswith(('.', ';')):
                out.append(l if l.endswith(':') else '    ' + l)
                continue
            c = Ins(l)
            if pad:
                req = 0; dist = 0
                for p in reversed(hist):
                    nd = need(p, c)
                    if nd > dist: req = max(req, nd - dist)
                    dist += p.ws
                    if dist >= 24: break
                while req > 0:
                    k = min(req, 16)
                    nop = Ins(f's_nop {k-1}')
                    out.append('    ' + nop.text); hist.append(nop); req -= k
            out.append('    ' + l); hist.append(c)
            if len(hist) > 64: hist = hist[-40:]
        return '\n'.join(out) + '\n'

def desc(name, vgpr, agpr, sgpr):
    acc = (vgpr + 3) // 4 * 4
    nfv = acc + agpr if agpr else vgpr
    return f""".amdhsa_kernel {name}
  .amdhsa_next_free_vgpr {nfv}
  .amdhsa_next_free_sgpr {sgpr}
  .amdhsa_accum_offset {acc}
  .amdhsa_group_segment_fixed_size 0
  .amdhsa_kernarg_size 96
  .amdhsa_user_sgpr_count 2
  .amdhsa_user_sgpr_kernarg_segment_ptr 1
  .amdhsa_system_sgpr_workgroup_id_x 1
.end_amdhsa_kernel
"""

def module(kernels, launches=None):
    byname = {k['name']: k for k in kernels}
    launches = launches or [k['name'] for k in kernels]
    s = HDR
    if len(launches) == 1 and launches[0] == KNAME:
        k = byname[KNAME]
        s += f"; @launch grid=({k['grid']},1,1) block=({k['block']},1,1) lds={k['lds']}\n"
    else:
        for n in launches:
            k = byname[n]
            s += f"; @launch kernel={n} grid=({k['grid']},1,1) block=({k['block']},1,1) lds={k['lds']}\n"
    s += '.amdgcn_target "amdgcn-amd-amdhsa--gfx950"\n.text\n'
    for k in kernels:
        n = k['name']
        s += f".globl {n}\n.p2align 8\n.type {n},@function\n{n}:\n{k['body']}"
    s += '.section .rodata,"a"\n.p2align 6\n'
    for k in kernels:
        s += desc(k['name'], k.get('vgpr', 256), k.get('agpr', 0), k.get('sgpr', 102))
    return s
```

```python
from common import *

R = 3
STG = 40960
NST = 8
GC0 = -2.0 * 0.7978845608028654 * LOG2E
GC1 = GC0 * 0.044715

def gelu_block(a, ys, tmps, vC0, sC1):
    for y, q in zip(ys, tmps): a(f'v_mul_f32 {v(q)}, {v(y)}, {v(y)}')
    for y, q in zip(ys, tmps): a(f'v_fma_f32 {v(q)}, {v(q)}, s{sC1}, {v(vC0)}')
    for y, q in zip(ys, tmps): a(f'v_mul_f32 {v(q)}, {v(q)}, {v(y)}')
    for y, q in zip(ys, tmps): a(f'v_exp_f32 {v(q)}, {v(q)}')
    for y, q in zip(ys, tmps): a(f'v_add_f32 {v(q)}, 1.0, {v(q)}')
    for y, q in zip(ys, tmps): a(f'v_rcp_f32 {v(q)}, {v(q)}')
    for y, q in zip(ys, tmps): a(f'v_mul_f32 {v(y)}, {v(y)}, {v(q)}')

def build(name='k1_kernel', prof=False, touch=False, xf=' nt', wf='', prio=0, stf=' sc1'):
    a = Asm()
    P = Prof(a, prof, 0)
    ACC = 0
    AS, AG, AC = 48, 52, 56
    FR = 68
    ONES = 132
    AX, AXS, AW = 136, 140, 144
    VX0, VX1, VW = 146, 147, 148
    LANE, T0 = 151, 152
    def fr(st, what, i=0):
        b = FR + st * 32
        return {'x': b + 4 * i, 'xs': b + 16, 'w': b + 20 + 4 * i}[what]
    sX, sWs = 24, 28
    sB = [32, 36, 40]
    sW8, sWR, sWC, sRT, sCT, sFOLD = 44, 45, 46, 47, 48, 49
    sOX, sOW, sSW, sM0 = 50, [51, 52, 53], [54, 55, 56], 57
    sTY, sOB = [58, 59, 60], [61, 62, 63]
    sT, sT2, sT3, sC1 = 20, 21, 22, 23
    L = v(LANE); t0, t1, t2, t3, t4 = (v(T0 + i) for i in range(5))

    a('s_cmp_ge_u32 s2, 248'); a('s_cbranch_scc0 K1_GO')
    a('s_branch K1_END')
    a.label('K1_GO')
    if prio: a('s_setprio 3')
    P.real(); P.stamp()
    a('s_load_dwordx16 s[4:19], s[0:1], 0')
    a('s_load_dwordx2 s[100:101], s[0:1], 64')
    a('s_load_dwordx2 s[98:99], s[0:1], 88')
    a(f'v_lshrrev_b32 {t0}, 6, v0'); a(f'v_and_b32 {L}, 63, v0')
    a(f'v_readfirstlane_b32 s{sW8}, {t0}')
    a(f's_and_b32 s{sT}, s2, 7'); a(f's_lshr_b32 s{sT2}, s2, 3')
    a(f's_cmp_ge_u32 s{sT2}, 28'); a(f's_cselect_b32 s{sFOLD}, 1, 0')
    a(f's_lshr_b32 s{sWR}, s{sW8}, 2'); a(f's_and_b32 s{sWC}, s{sW8}, 3')
    a(f's_lshl_b32 s{sM0}, s{sW8}, 10')
    lF, lD = a.new('K1F'), a.new('K1D')
    a(f's_cmp_eq_u32 s{sFOLD}, 1'); a(f's_cbranch_scc1 {lF}')
    a(f's_and_b32 s{sRT}, s{sT}, 3'); a(f's_lshl_b32 s{sRT}, s{sRT}, 2'); a(f's_and_b32 s{sT3}, s{sT2}, 3'); a(f's_add_u32 s{sRT}, s{sRT}, s{sT3}')
    a(f's_lshr_b32 s{sCT}, s{sT}, 2'); a(f's_mul_i32 s{sCT}, s{sCT}, 7'); a(f's_lshr_b32 s{sT3}, s{sT2}, 2'); a(f's_add_u32 s{sCT}, s{sCT}, s{sT3}')
    for j in range(3):
        bi = sOB[j]
        if j == 0:
            a(f's_lshl_b32 s{bi}, s{sCT}, 1'); a(f's_cmp_ge_u32 s{sCT}, 12'); a(f's_cselect_b32 s{bi}, 0, s{bi}')
        elif j == 1:
            a(f's_lshl_b32 s{bi}, s{sCT}, 1'); a(f's_add_u32 s{sT}, s{bi}, 1'); a(f's_add_u32 s{sT2}, s{bi}, 4')
            a(f's_cmp_ge_u32 s{sCT}, 12'); a(f's_cselect_b32 s{bi}, s{sT2}, s{sT}')
        else:
            a(f's_add_u32 s{sT}, s{sCT}, 32'); a(f's_add_u32 s{sT2}, s{sCT}, 16')
            a(f's_cmp_ge_u32 s{sCT}, 8'); a(f's_cselect_b32 s{sT}, s{sT2}, s{sT}')
            a(f's_lshl_b32 s{sT2}, s{sCT}, 1'); a(f's_add_u32 s{sT2}, s{sT2}, 5')
            a(f's_cmp_ge_u32 s{sCT}, 12'); a(f's_cselect_b32 s{bi}, s{sT2}, s{sT}')
        a(f's_lshr_b32 s{sT}, s{bi}, 3'); a(f's_and_b32 s{sT2}, s{bi}, 7')
        a(f's_cmp_ge_u32 s{sT}, 3'); a(f's_cselect_b32 s{sSW[j]}, 11, 10')
        a(f's_sub_u32 s{sTY[j]}, s{sT}, 2'); a(f's_max_i32 s{sTY[j]}, s{sTY[j]}, 0')
        if j == 0:
            a(f's_cmp_ge_u32 s{sCT}, 12'); a(f's_cselect_b32 s{sTY[j]}, 3, s{sTY[j]}')
        a(f's_lshl_b32 s{sOW[j]}, s{sT2}, 7'); a(f's_cmp_eq_u32 s{sT}, 4'); a(f's_cselect_b32 s{sT3}, 1024, 0'); a(f's_add_u32 s{sOW[j]}, s{sOW[j]}, s{sT3}')
    a(f's_lshr_b32 s{sT3}, s{sRT}, 3'); a(f's_mul_i32 s{sT3}, s{sT3}, 1000')
    a(f's_and_b32 s{sT}, s{sRT}, 7'); a(f's_lshl_b32 s{sT}, s{sT}, 7'); a(f's_add_u32 s{sOX}, s{sT3}, s{sT}'); a(f's_lshl_b32 s{sOX}, s{sOX}, 10')
    a(f's_branch {lD}')
    a.label(lF)
    a(f's_sub_u32 s{sCT}, s{sT2}, 28')
    a(f's_and_b32 s{sRT}, s{sT}, 3')
    a(f's_lshr_b32 s{sT3}, s{sT}, 2')
    a(f's_lshl_b32 s{sOX}, s{sRT}, 17')
    for j in range(3):
        a(f's_mov_b32 s{sSW[j]}, 10')
        a(f's_mul_i32 s{sOB[j]}, s{sCT}, 3'); a(f's_add_u32 s{sOB[j]}, s{sOB[j]}, {j}')
        a(f's_cmp_ge_u32 s{sOB[j]}, 8'); a(f's_cselect_b32 s{sTY[j]}, 3, 0'); a(f's_min_u32 s{sOB[j]}, s{sOB[j]}, 7')
        a(f's_lshl_b32 s{sOW[j]}, s{sOB[j]}, 7'); a(f's_lshl_b32 s{sT}, s{sT3}, 19'); a(f's_add_u32 s{sOW[j]}, s{sOW[j]}, s{sT}')
    a(f's_add_u32 s{sFOLD}, s{sT3}, 1')
    a.label(lD)
    a(f'v_lshrrev_b32 {t0}, 3, {L}')
    a(f'v_and_b32 {t1}, 7, {L}')
    a(f'v_lshrrev_b32 {t2}, 1, {t0}')
    a(f'v_xor_b32 {t3}, {t2}, {t1}')
    a(f's_lshl_b32 s{sT}, s{sW8}, 4')
    a(f'v_add_u32 {t4}, s{sT}, {t0}'); a(f'v_lshlrev_b32 {t4}, 10, {t4}'); a(f'v_add_u32 {t4}, s{sOX}, {t4}')
    a(f's_mov_b32 s{sOX}, 0')
    a(f'v_lshl_add_u32 {v(VX0)}, {t3}, 4, {t4}')
    a(f'v_xor_b32 {t3}, 4, {t3}'); a(f'v_add_u32 {t4}, 8192, {t4}')
    a(f'v_lshl_add_u32 {v(VX1)}, {t3}, 4, {t4}')
    a(f'v_and_b32 {t2}, 1, {t2}'); a(f's_and_b32 s{sT}, s{sW8}, 1'); a(f's_lshl_b32 s{sT}, s{sT}, 1')
    a(f'v_or_b32 {t2}, s{sT}, {t2}'); a(f'v_lshlrev_b32 {t2}, 1, {t2}'); a(f'v_xor_b32 {t2}, {t2}, {t1}'); a(f'v_lshlrev_b32 {t2}, 4, {t2}')
    a(f's_lshl_b32 s{sT}, s{sW8}, 3'); a(f'v_add_u32 {t0}, s{sT}, {t0}')
    for j in range(3):
        a(f'v_lshlrev_b32 {v(VW+j)}, s{sSW[j]}, {t0}'); a(f'v_add_u32 {v(VW+j)}, {v(VW+j)}, {t2}')
        a(f's_add_u32 s{sSW[j]}, s{sSW[j]}, 6'); a(f's_lshl_b32 s{sSW[j]}, 1, s{sSW[j]}')

    def dma_groups(st):
        base = (st % R) * STG
        g = []
        g.append(([f's_lshl_b32 s{sT}, s{sM0}, 1', f's_add_u32 m0, s{sT}, {base}'],
                  [f'buffer_load_dwordx4 {v(VX0)}, s[{sX}:{sX+3}], s{sOX} offen{xf} lds']))
        g.append(([f's_add_u32 m0, m0, 1024'],
                  [f'buffer_load_dwordx4 {v(VX1)}, s[{sX}:{sX+3}], s{sOX} offen{xf} lds', f's_add_u32 s{sOX}, s{sOX}, 128']))
        for j in range(3):
            g.append(([f's_add_u32 m0, s{sM0}, {base + 16384 + j*8192}'],
                      [f'buffer_load_dwordx4 {v(VW+j)}, s[{sB[j]}:{sB[j]+3}], s{sOW[j]} offen{wf} lds', f's_add_u32 s{sOW[j]}, s{sOW[j]}, s{sSW[j]}']))
        return g
    def dma(st):
        for pre, post in dma_groups(st):
            for l in pre + post: a(l)
    a('s_waitcnt lgkmcnt(0)')
    lF2, lD2 = a.new('K1F2'), a.new('K1D2')
    a(f's_mov_b32 s{sWs}, s98'); a(f's_mov_b32 s{sWs+1}, s99'); a(f's_mov_b32 s{sWs+2}, {WS_BYTES}'); a(f's_mov_b32 s{sWs+3}, {SRD3}')
    a(f's_mov_b32 s{sX+3}, {SRD3}')
    for j in range(3): a(f's_mov_b32 s{sB[j]+3}, {SRD3}')
    a(f's_cmp_lg_u32 s{sFOLD}, 0'); a(f's_cbranch_scc1 {lF2}')
    a(f's_mov_b32 s{sX}, s4'); a(f's_mov_b32 s{sX+1}, s5'); a(f's_mov_b32 s{sX+2}, {OUT_BYTES}')
    for j in range(3):
        b = sB[j]
        a(f's_lshr_b32 s{sT}, s{sOB[j]}, 3')
        a(f's_cmp_eq_u32 s{sT}, 1'); a(f's_cselect_b32 s{b}, s8, s6'); a(f's_cselect_b32 s{b+1}, s9, s7')
        a(f's_cmp_eq_u32 s{sT}, 2'); a(f's_cselect_b32 s{b}, s10, s{b}'); a(f's_cselect_b32 s{b+1}, s11, s{b+1}')
        a(f's_cmp_ge_u32 s{sT}, 3'); a(f's_cselect_b32 s{b}, s14, s{b}'); a(f's_cselect_b32 s{b+1}, s15, s{b+1}')
        a(f's_mov_b32 s{b+2}, {1 << 19}'); a(f's_cselect_b32 s{b+2}, {1 << 20}, s{b+2}')
    a(f's_branch {lD2}')
    a.label(lF2)
    a(f's_cmp_eq_u32 s{sFOLD}, 2'); a(f's_cselect_b32 s{sX}, s18, s12'); a(f's_cselect_b32 s{sX+1}, s19, s13')
    a(f's_mov_b32 s{sX+2}, {1 << 19}')
    for j in range(3):
        b = sB[j]
        a(f's_mov_b32 s{b}, s100'); a(f's_mov_b32 s{b+1}, s101'); a(f's_mov_b32 s{b+2}, {1 << 20}')
    a.label(lD2)
    TCH = T0 + 5
    if touch:
        lW, lT = a.new('K1TW'), a.new('K1TD')
        a(f's_mov_b32 s92, s{sX}'); a(f's_mov_b32 s93, s{sX+1}'); a(f's_mov_b32 s94, s{sX+2}'); a(f's_mov_b32 s95, {SRD3}')
        a(f'v_mov_b32 {v(TCH)}, {v(VX0)}')
        a(f's_lshr_b32 s{sT2}, s2, 3')
        a(f's_cmp_ge_u32 s{sW8}, 2'); a(f's_cbranch_scc1 {lW}')
        a(f's_lshr_b32 s{sT2}, s{sT2}, 2'); a(f's_cmp_lg_u32 s{sFOLD}, 0'); a(f's_cselect_b32 s{sT2}, s{sCT}, s{sT2}')
        a(f's_add_u32 s{sT2}, s{sT2}, 1'); a(f's_lshl_b32 s{sT2}, s{sT2}, 7')
        a(f'v_and_b32 {t0}, 0xfffffc00, {v(VX0)}')
        a(f'v_lshrrev_b32 {t1}, 3, {L}'); a(f's_lshl_b32 s{sT}, s{sW8}, 4'); a(f'v_add_u32 {t1}, s{sT}, {t1}'); a(f'v_lshlrev_b32 {t1}, 10, {t1}')
        a(f'v_sub_u32 {t0}, {t0}, {t1}')
        a(f's_lshl_b32 s{sT}, s{sW8}, 6'); a(f'v_add_u32 {t1}, s{sT}, {L}'); a(f'v_lshl_add_u32 {t0}, {t1}, 10, {t0}')
        a(f'v_add_u32 {v(TCH)}, s{sT2}, {t0}')
        a(f's_branch {lT}')
        a.label(lW)
        a(f's_and_b32 s{sT2}, s{sT2}, 3'); a(f's_cmp_lg_u32 s{sFOLD}, 0'); a(f's_cselect_b32 s{sT2}, s{sRT}, s{sT2}'); a(f's_and_b32 s{sT2}, s{sT2}, 3')
        a(f's_mul_i32 s{sT2}, s{sT2}, 96'); a(f's_and_b32 s{sT}, s{sW8}, 1'); a(f's_mul_i32 s{sT}, s{sT}, 48'); a(f's_add_u32 s{sT2}, s{sT2}, s{sT}'); a(f's_add_u32 s{sT2}, s{sT2}, 128')
        a(f'v_min_u32 {t0}, 47, {L}'); a(f'v_add_u32 {t0}, s{sT2}, {t0}')
        a(f's_sub_u32 s{sT}, s{sW8}, 2'); a(f's_lshr_b32 s{sT}, s{sT}, 1')
        for j in range(3):
            lj = a.new('K1TJ')
            a(f's_cmp_lg_u32 s{sT}, {j}'); a(f's_cbranch_scc1 {lj}')
            a(f's_lshr_b32 s{sT2}, s{sSW[j]}, 6'); a(f'v_mul_lo_u32 {t0}, {t0}, s{sT2}'); a(f'v_add_u32 {v(TCH)}, s{sOW[j]}, {t0}')
            a(f's_mov_b32 s92, s{sB[j]}'); a(f's_mov_b32 s93, s{sB[j]+1}'); a(f's_mov_b32 s94, s{sB[j]+2}'); a(f's_mov_b32 s95, {SRD3}')
            a.label(lj)
        a.label(lT)
    dma(0); a('s_barrier'); dma(1)
    if touch: a(f'buffer_load_dword {v(TCH+1)}, {v(TCH)}, s[92:95], 0 offen')
    if prio:
        a('s_setprio 0')
        if prio == 1:
            lp = a.new('K1P')
            a(f's_cmp_lt_u32 s{sW8}, 4'); a(f's_cbranch_scc1 {lp}'); a('s_setprio 1'); a.label(lp)
    P.stamp()

    a(f'v_and_b32 {t0}, 15, {L}'); a(f'v_lshrrev_b32 {t1}, 4, {L}')
    a(f'v_lshrrev_b32 {t2}, 1, {t0}'); a(f'v_xor_b32 {t2}, {t2}, {t1}')
    a(f'v_lshlrev_b32 {t2}, 4, {t2}'); a(f'v_lshl_add_u32 {t2}, {t0}, 7, {t2}')
    a(f's_lshl_b32 s{sT}, s{sWR}, 13')
    a(f'v_add_u32 {v(AX)}, s{sT}, {t2}'); a(f'v_xor_b32 {v(AX+1)}, 64, {v(AX)}')
    a(f's_lshl_b32 s{sT}, s{sWC}, 11')
    a(f'v_add_u32 {v(AXS)}, s{sT}, {v(AX)}'); a(f'v_add_u32 {v(AXS+1)}, s{sT}, {v(AX+1)}')
    for b in (AX, AXS):
        a(f'v_add_u32 {v(b+2)}, {2*STG}, {v(b)}'); a(f'v_add_u32 {v(b+3)}, {2*STG}, {v(b+1)}')
    a(f'v_bfe_u32 {t2}, {L}, 2, 2')
    a(f'v_lshl_add_u32 {t3}, {t1}, 3, {t2}'); a(f'v_lshlrev_b32 {t3}, 7, {t3}')
    a(f'v_lshrrev_b32 {t2}, 1, {t2}'); a(f'v_and_b32 {t4}, 1, {t1}'); a(f'v_lshl_or_b32 {t2}, {t4}, 1, {t2}'); a(f'v_lshlrev_b32 {t2}, 1, {t2}')
    a(f'v_bfe_u32 {t4}, {L}, 1, 1'); a(f's_lshl_b32 s{sT}, s{sWC}, 1'); a(f'v_or_b32 {t4}, s{sT}, {t4}')
    a(f'v_xor_b32 {t2}, {t2}, {t4}'); a(f'v_lshl_add_u32 {t3}, {t2}, 4, {t3}')
    a(f'v_and_b32 {t4}, 1, {L}'); a(f'v_lshl_add_u32 {t3}, {t4}, 3, {t3}')
    a(f'v_add_u32 {v(AW)}, 16384, {t3}'); a(f'v_add_u32 {v(AW+1)}, {16384 + 2*STG}, {t3}')
    ST, CS, GSL, GTL = 0, 1024, 4096, 8192
    A_STW, A_CSW, A_CSR, A_STR, VA, VG, VS, VC0, VJ3 = range(158, 167)
    a(f'v_and_b32 {t0}, 15, {L}'); a(f'v_lshrrev_b32 {t1}, 4, {L}')
    a(f'v_and_b32 {v(VJ3)}, 3, {t0}')
    a(f's_lshl_b32 s{sT}, s{sW8}, 4'); a(f'v_add_u32 {t2}, s{sT}, {t0}'); a(f'v_lshlrev_b32 {v(A_STW)}, 3, {t2}')
    a(f'v_lshlrev_b32 {t3}, 4, {t1}'); a(f's_mul_i32 s{sT}, s{sW8}, 192'); a(f'v_add_u32 {v(A_CSW)}, s{sT}, {t3}')
    a(f's_mul_i32 s{sT}, s{sWC}, 192'); a(f'v_add_u32 {v(A_CSR)}, s{sT}, {t3}')
    a(f's_lshl_b32 s{sT}, s{sWR}, 9'); a(f'v_lshl_add_u32 {v(A_STR)}, {t0}, 3, s{sT}')
    a(f'v_lshlrev_b32 {v(VA)}, 4, {L}')
    a(f'v_and_b32 {t2}, 1, {t1}'); a(f'v_lshl_add_u32 {t2}, {t2}, 4, {t0}')
    a(f'v_lshrrev_b32 {t3}, 1, {t1}')
    a(f's_lshl_b32 s{sT}, s{sWC}, 1'); a(f'v_or_b32 {t4}, s{sT}, {t3}'); a(f'v_and_b32 {v(VG)}, 7, {t0}'); a(f'v_xor_b32 {t4}, {t4}, {v(VG)}')
    a(f'v_lshlrev_b32 {t4}, 4, {t4}'); a(f'v_lshl_add_u32 {v(VG)}, {t2}, 7, {t4}')
    a(f's_lshl_b32 s{sT}, s{sWR}, 13'); a(f'v_add_u32 {v(VG)}, s{sT}, {v(VG)}')
    a(f'v_lshlrev_b32 {v(VS)}, 3, {t2}'); a(f'v_lshl_add_u32 {v(VS)}, {t3}, 2, {v(VS)}')
    a(f's_lshl_b32 s{sT}, s{sWC}, 10'); a(f's_lshl_b32 s{sT2}, s{sWR}, 9'); a(f's_add_u32 s{sT}, s{sT}, s{sT2}'); a(f'v_add_u32 {v(VS)}, s{sT}, {v(VS)}')
    a(f'v_mov_b32 {v(VC0)}, {f32(GC0)}')
    a(f'v_lshrrev_b32 {t3}, 2, {t0}'); a(f'v_cmp_eq_u32 s[94:95], {t3}, {t1}'); a(f'v_cmp_eq_u32 s[96:97], 0, {t0}')
    for i in range(4): a(f'v_mov_b32 {v(ONES+i)}, 0x3f803f80')
    for i in range(AC, AC+12): a(f'v_mov_b32 {v(i)}, 0')

    def reads(u, stats):
        st, h = u >> 1, u & 1
        r = st % R; hi = 1 if r == 2 else 0; off = (r & 1) * STG if r < 2 else 0; se = u & 1
        out = []
        for s_ in range(4):
            out.append(f'ds_read_b128 {v(fr(se,"x",s_),4)}, {v(AX + 2*hi + h)} offset:{off + s_*2048}')
        if stats: out.append(f'ds_read_b128 {v(fr(se,"xs"),4)}, {v(AXS + 2*hi + h)} offset:{off}')
        for j in range(3):
            for e in range(2):
                out.append(f'ds_read_b64_tr_b16 {v(fr(se,"w",j)+2*e,2)}, {v(AW + hi)} offset:{off + j*8192 + h*4096 + e*512}')
        return out
    def mfmas(u, wr):
        se = u & 1; out = []
        first = (u == 0)
        mm = lambda d, x, y, z=False: f'v_mfma_f32_16x16x32_bf16 {v(d,4)}, {v(x,4)}, {v(y,4)}, {"0" if z else v(d,4)}'
        for j in range(3):
            for s_ in range(4):
                d = ACC + (j*4+s_)*4
                out.append(mm(d, fr(se,'w',j), fr(se,'x',s_), first) if wr < 2 else mm(d, fr(se,'x',s_), fr(se,'w',j), first))
        if wr < 2:
            out.insert(4, mm(AS, ONES, fr(se,'xs'), first))
            out.insert(9, mm(AG, fr(se,'xs'), fr(se,'xs'), first))
            for j in range(3):
                if (j + u + wr) % 2 == 0: out.append(mm(AC + 4*j, fr(se,'w',j), ONES))
        return out

    TR = FR
    def stats_items():
        d, mean, var_ = v(TR), v(TR+2), v(TR+3)
        o = []
        o.append(f'v_cmp_eq_u32 vcc, 1, {v(VJ3)}\nv_cndmask_b32 {d}, {v(AG)}, {v(AG+1)}, vcc')
        o.append(f'v_cmp_eq_u32 vcc, 2, {v(VJ3)}\nv_cndmask_b32 {d}, {d}, {v(AG+2)}, vcc')
        o.append(f'v_cmp_eq_u32 vcc, 3, {v(VJ3)}\nv_cndmask_b32 {d}, {d}, {v(AG+3)}, vcc')
        o.append(f's_mov_b32 s{sT2}, {f32(1/512)}\nv_mul_f32 {mean}, s{sT2}, {v(AS)}\nv_mul_f32 {d}, s{sT2}, {d}')
        o.append(f'v_fma_f32 {var_}, -{mean}, {mean}, {d}\ns_mov_b32 s{sT2}, {f32(1e-5)}')
        o.append(f'v_max_f32 {var_}, 0, {var_}\nv_add_f32 {var_}, s{sT2}, {var_}')
        o.append(f'v_rsq_f32 {var_}, {var_}\nv_sub_f32 {mean}, 0, {mean}')
        o.append(f's_mov_b64 exec, s[96:97]\n' + '\n'.join(f'ds_write_b128 {v(A_CSW)}, {v(AC+4*j,4)} offset:{CS + j*64}' for j in range(3)) + '\ns_mov_b64 exec, -1')
        o.append(f's_mov_b64 exec, s[94:95]\nds_write_b64 {v(A_STW)}, {v(TR+2,2)} offset:{ST}\ns_mov_b64 exec, -1')
        return o
    a(f's_waitcnt vmcnt({6 if touch else 5})'); a('s_barrier')
    P.stamp()
    labs = [a.new('K1V') for _ in range(3)]
    lE, lEF = a.new('K1EPI'), a.new('K1EPF')
    a(f's_cmp_lg_u32 s{sFOLD}, 0'); a(f's_cbranch_scc1 {labs[2]}')
    a(f's_cmp_eq_u32 s{sWR}, 1'); a(f's_cbranch_scc1 {labs[1]}')
    for var in range(3):
        a.label(labs[var])
        stats = var < 2
        for l in reads(0, stats): a(l)
        pend = dma_groups(2)
        issued = 3
        for u in range(2*NST):
            st = u >> 1
            if u & 1 and st + 1 < NST:
                assert not pend
                a(f's_waitcnt vmcnt({5*(issued - (st+2)) + (1 if touch and st == 0 else 0)}) lgkmcnt(0)')
                a('s_barrier')
                if st in (1, 3, 5):
                    n0 = P.n; P.n = 4 + st // 2; P.stamp(); P.n = n0
                if issued < NST:
                    pend = dma_groups(issued); issued += 1
            else:
                a('s_waitcnt lgkmcnt(0)')
            rd = reads(u + 1, stats) if u + 1 < 2*NST else []
            mf = mfmas(u, var)
            quota = len(pend) if (u == 0 or not (u & 1)) else min(3, len(pend))
            last = (u == 2*NST - 1) and var < 2
            if last:
                mf = [m for m in mf if m.split()[1].startswith(('v[48:', 'v[52:', 'v[56:', 'v[60:', 'v[64:'))] + [m for m in mf if not m.split()[1].startswith(('v[48:', 'v[52:', 'v[56:', 'v[60:', 'v[64:'))]
                items = stats_items(); nst_ = len(mf) - 12
                for i, m in enumerate(mf):
                    a(m)
                    if i >= nst_ + 2 and items: a(items.pop(0))
                for it_ in items: a(it_)
                continue
            n = max(len(rd), len(mf))
            slots = [1 + (k * (len(mf) - 1)) // quota for k in range(quota)] if quota else []
            post = None
            for i in range(n):
                if i in slots:
                    pre, post = pend.pop(0)
                    for l in pre: a(l)
                if i < len(mf): a(mf[i])
                if post:
                    for l in post: a(l)
                    post = None
                if i < len(rd): a(rd[i])
        if var == 0: a(f's_branch {lE}')
        if var == 1: a(f's_branch {lE}')
    P.n = 7; P.stamp()
    PK = FR
    a(f'v_and_b32 {t0}, 15, {L}'); a(f'v_lshrrev_b32 {t1}, 4, {L}')
    a(f's_and_b32 s{sT}, s{sWC}, 1'); a(f's_lshl_b32 s{sT}, s{sT}, 4')
    a(f'v_add_u32 {t2}, s{sT}, {t0}'); a(f'v_lshrrev_b32 {t3}, 1, {t1}'); a(f'v_lshl_add_u32 {t2}, {t3}, 5, {t2}'); a(f'v_lshlrev_b32 {t2}, 4, {t2}')
    a(f'v_and_b32 {t4}, 1, {t1}'); a(f'v_lshl_add_u32 {t2}, {t4}, 3, {t2}')
    a(f's_cmp_eq_u32 s{sFOLD}, 2'); a(f's_mov_b32 s{sT3}, {WO1}'); a(f's_cselect_b32 s{sT3}, {WO2}, s{sT3}')
    a(f's_lshl_b32 s{sT}, s{sRT}, 3'); a(f's_lshl_b32 s{sT2}, s{sWR}, 2'); a(f's_add_u32 s{sT}, s{sT}, s{sT2}'); a(f's_lshl_b32 s{sT}, s{sT}, 10')
    a(f's_add_u32 s{sT3}, s{sT3}, s{sT}')
    for j in range(3):
        lS = a.new('K1FS')
        a(f's_cmp_eq_u32 s{sTY[j]}, 3'); a(f's_cbranch_scc1 {lS}')
        a(f's_lshl_b32 s{sT}, s{sOB[j]}, 1'); a(f's_lshr_b32 s{sT2}, s{sWC}, 1'); a(f's_add_u32 s{sT}, s{sT}, s{sT2}'); a(f's_mul_i32 s{sT}, s{sT}, {S32}')
        a(f's_add_u32 s{sT}, s{sT}, s{sT3}')
        for s_ in range(4):
            b = ACC + (j*4+s_)*4; p = PK + 2*s_
            a(f'v_cvt_pk_bf16_f32 {v(p)}, {v(b)}, {v(b+1)}'); a(f'v_cvt_pk_bf16_f32 {v(p+1)}, {v(b+2)}, {v(b+3)}')
            a(f'buffer_store_dwordx2 {v(p,2)}, {t2}, s[{sWs}:{sWs+3}], s{sT} offen offset:{s_*1024}{stf}')
        a.label(lS)
    a('s_branch K1_FIN')

    a.label(lE)
    P.n = 7; P.stamp()
    a('s_waitcnt lgkmcnt(0)'); a('s_barrier')
    P.stamp()
    STA = TR + 12
    for s_ in range(4): a(f'ds_read_b64 {v(STA+2*s_,2)}, {v(A_STR)} offset:{ST + s_*128}')
    for j in range(3):
        a(f'ds_read_b128 {v(AC+4*j,4)}, {v(A_CSR)} offset:{CS + j*64}')
        a(f'ds_read_b128 {v(TR+4*j,4)}, {v(A_CSR)} offset:{CS + 768 + j*64}')
    sRB = sM0
    a(f's_lshl_b32 s{sRB}, s{sRT}, 2'); a(f's_lshl_b32 s{sT}, s{sWR}, 1'); a(f's_add_u32 s{sRB}, s{sRB}, s{sT}')
    a(f's_mov_b32 s{sC1}, {f32(GC1)}')
    a('s_waitcnt lgkmcnt(0)')
    for i in range(12): a(f'v_add_f32 {v(AC+i)}, {v(AC+i)}, {v(TR+i)}')
    a(f'v_and_b32 {t0}, 15, {L}'); a(f'v_lshrrev_b32 {t1}, 4, {L}')
    PK = TR + 24
    GT = TR + 40
    def pack(j, pair, p):
        b = ACC + (j*4 + 2*pair)*4
        a(f'v_cvt_pk_bf16_f32 {v(p)}, {v(b)}, {v(b+1)}'); a(f'v_cvt_pk_bf16_f32 {v(p+1)}, {v(b+2)}, {v(b+3)}')
        a(f'v_cvt_pk_bf16_f32 {v(p+2)}, {v(b+4)}, {v(b+5)}'); a(f'v_cvt_pk_bf16_f32 {v(p+3)}, {v(b+6)}, {v(b+7)}')
        a(f'v_permlane16_swap_b32 {v(p)}, {v(p+2)}'); a(f'v_permlane16_swap_b32 {v(p+1)}, {v(p+3)}')
    for j in range(3):
        lN, lG, lFS = a.new('K1N'), a.new('K1G'), a.new('K1FS')
        ty, bi = sTY[j], sOB[j]
        if j == 0:
            a(f's_cmp_eq_u32 s{ty}, 3'); a(f's_cbranch_scc1 {lN}')
        for s_ in range(4):
            for r in range(4):
                x = ACC + (j*4+s_)*4 + r
                a(f'v_fmac_f32 {v(x)}, {v(STA+2*s_)}, {v(AC+4*j+r)}')
            for r in range(4):
                x = ACC + (j*4+s_)*4 + r
                a(f'v_mul_f32 {v(x)}, {v(x)}, {v(STA+2*s_+1)}')
        if j > 0:
            if j == 1:
                a(f's_cmp_eq_u32 s{ty}, 0'); a(f's_cbranch_scc1 {lFS}')
            for h in range(2):
                gelu_block(a, [ACC + j*16 + 8*h + i for i in range(8)], [GT + i for i in range(8)], VC0, sC1)
            if j == 2:
                P.stamp()
                a(f's_cmp_eq_u32 s{ty}, 2'); a(f's_cbranch_scc1 {lG}')
        a.label(lFS)
        a(f's_lshr_b32 s{sT}, s{bi}, 3'); a(f's_mul_i32 s{sT}, s{sT}, {REG}')
        a(f's_and_b32 s{sT2}, s{bi}, 7'); a(f's_lshl_b32 s{sT2}, s{sT2}, 2'); a(f's_add_u32 s{sT2}, s{sT2}, s{sWC}'); a(f's_lshl_b32 s{sT2}, s{sT2}, 10')
        a(f's_add_u32 s{sT}, s{sT}, s{sT2}'); a(f's_mul_i32 s{sT2}, s{sRB}, {S32}'); a(f's_add_u32 s{sT}, s{sT}, s{sT2}')
        for pair in range(2):
            p = PK + 4*pair
            pack(j, pair, p)
            if pair: a(f's_add_u32 s{sT}, s{sT}, {S32}')
            a(f'buffer_store_dwordx4 {v(p,4)}, {v(VA)}, s[{sWs}:{sWs+3}], s{sT} offen{stf}')
        if j == 2:
            a(f's_branch {lN}')
            a.label(lG)
            a(f's_and_b32 s{sT3}, s{bi}, 7')
            SQ = PK + 8
            for pair in range(2):
                for sl in range(2):
                    b = ACC + (j*4 + 2*pair + sl)*4; S_, Q_ = SQ + sl, SQ + 2 + sl
                    a(f'v_add_f32 {v(S_)}, {v(b)}, {v(b+1)}'); a(f'v_mul_f32 {v(Q_)}, {v(b)}, {v(b)}')
                    a(f'v_add_f32 {v(S_)}, {v(S_)}, {v(b+2)}'); a(f'v_fmac_f32 {v(Q_)}, {v(b+1)}, {v(b+1)}')
                    a(f'v_add_f32 {v(S_)}, {v(S_)}, {v(b+3)}'); a(f'v_fmac_f32 {v(Q_)}, {v(b+2)}, {v(b+2)}')
                    a(f'v_fmac_f32 {v(Q_)}, {v(b+3)}, {v(b+3)}')
                p = PK + 4*pair
                pack(j, pair, p)
                a(f'ds_write_b128 {v(VG)}, {v(p,4)} offset:{GTL + pair*4096}')
                a(f'v_permlane16_swap_b32 {v(SQ)}, {v(SQ+1)}'); a(f'v_permlane16_swap_b32 {v(SQ+2)}, {v(SQ+3)}')
                a(f'v_add_f32 {v(SQ)}, {v(SQ)}, {v(SQ+1)}'); a(f'v_add_f32 {v(SQ+2)}, {v(SQ+2)}, {v(SQ+3)}')
                a(f'v_permlane32_swap_b32 {v(SQ)}, {v(SQ+2)}')
                a(f'v_add_f32 {v(SQ)}, {v(SQ)}, {v(SQ+2)}')
                a(f'ds_write_b32 {v(VS)}, {v(SQ)} offset:{GSL + pair*256}')
            a('s_waitcnt lgkmcnt(0)'); a('s_barrier')
            a(f'v_lshrrev_b32 {t2}, 3, {L}'); a(f'v_and_b32 {t3}, 7, {L}'); a(f'v_xor_b32 {t4}, {t3}, {t2}')
            a(f'v_lshlrev_b32 {t4}, 4, {t4}'); a(f'v_lshl_add_u32 {t4}, {t2}, 7, {t4}'); a(f's_lshl_b32 s{sT}, s{sW8}, 11'); a(f'v_add_u32 {t4}, s{sT}, {t4}')
            a(f'ds_read_b128 {v(PK,4)}, {t4} offset:{GTL}'); a(f'ds_read_b128 {v(PK+4,4)}, {t4} offset:{GTL + 1024}')
            a(f'v_lshlrev_b32 {t2}, 10, {t2}'); a(f'v_lshl_add_u32 {t2}, {t3}, 4, {t2}')
            a(f's_lshl_b32 s{sT}, s{sRT}, 7'); a(f's_lshl_b32 s{sT2}, s{sW8}, 4'); a(f's_add_u32 s{sT}, s{sT}, s{sT2}'); a(f's_lshl_b32 s{sT}, s{sT}, 10')
            a(f's_lshl_b32 s{sT2}, s{sT3}, 7'); a(f's_add_u32 s{sT}, s{sT}, s{sT2}'); a(f's_add_u32 s{sT}, s{sT}, {G}')
            a('s_waitcnt lgkmcnt(0)')
            a(f'buffer_store_dwordx4 {v(PK,4)}, {t2}, s[{sWs}:{sWs+3}], s{sT} offen{stf}')
            a(f's_add_u32 s{sT}, s{sT}, 8192')
            a(f'buffer_store_dwordx4 {v(PK+4,4)}, {t2}, s[{sWs}:{sWs+3}], s{sT} offen{stf}')
            lK = a.new('K1GK')
            a(f's_cmp_ge_u32 s{sW8}, 4'); a(f's_cbranch_scc1 {lK}')
            a(f's_lshl_b32 s{sT}, s{sW8}, 6'); a(f'v_add_u32 {t2}, s{sT}, {L}')
            a(f'v_lshlrev_b32 {t3}, 2, {t2}')
            for w in range(4): a(f'ds_read_b32 {v(SQ+w)}, {t3} offset:{GSL + w*1024}')
            a(f's_lshl_b32 s{sT}, s{sRT}, 10'); a(f's_lshl_b32 s{sT2}, s{sT3}, 14'); a(f's_add_u32 s{sT}, s{sT}, s{sT2}'); a(f's_add_u32 s{sT}, s{sT}, {GS}')
            a('s_waitcnt lgkmcnt(0)')
            a(f'v_add_f32 {v(SQ)}, {v(SQ)}, {v(SQ+1)}'); a(f'v_add_f32 {v(SQ+2)}, {v(SQ+2)}, {v(SQ+3)}'); a(f'v_add_f32 {v(SQ)}, {v(SQ)}, {v(SQ+2)}')
            a(f'buffer_store_dword {v(SQ)}, {t3}, s[{sWs}:{sWs+3}], s{sT} offen{stf}')
            a.label(lK)
            if j == 1: a('s_barrier')
        a.label(lN)
        if j < 2: P.stamp()
    a.label('K1_FIN')
    P.n = 12; P.stamp()
    if prof: a('s_waitcnt vmcnt(0)')
    P.stamp(); P.real()
    P.finish(sW8, sWs, sWs+1)
    a.label('K1_END')
    a('s_endpgm')
    return dict(name=name, body=a.text(), grid=256, block=512, lds=R*STG, vgpr=168, agpr=0, sgpr=102)
```

```python
from common import *

SCALE = LOG2E / (512 ** 0.5)
KT_BYTES = 131072
CV_W = 9216
TRS = 272
NPART = 32

def build(name='k2_kernel', prof=False, prio=0, stf=' sc1'):
    a = Asm()
    P = Prof(a, prof, 1)
    LANE, T0 = 0, 2
    L = v(LANE); t0, t1, t2, t3, t4 = (v(T0 + i) for i in range(5))
    sW, sD = 8, 12
    sW8, sXC, sSL, sT, sT2, sT3 = 16, 17, 18, 19, 20, 21
    sA, sB, sOUT, sKT, sJOB, sM0, sOA, sOB, sML = 22, 23, 24, 25, 26, 27, 28, 29, 30
    a('s_cmp_ge_u32 s2, 256'); a('s_cbranch_scc1 K2_END')
    P.real(); P.stamp()
    a('s_load_dwordx2 s[4:5], s[0:1], 88'); a('s_load_dwordx2 s[6:7], s[0:1], 48')
    a(f'v_lshrrev_b32 {t0}, 6, v0'); a(f'v_and_b32 {L}, 63, v0')
    a(f'v_readfirstlane_b32 s{sW8}, {t0}')
    a(f's_and_b32 s{sXC}, s2, 7'); a(f's_lshr_b32 s{sSL}, s2, 3')
    a(f's_cmp_ge_u32 s{sSL}, 24'); a('s_cbranch_scc1 K2_CONV')
    a(f's_cmp_ge_u32 s{sW8}, 4'); a('s_cbranch_scc1 K2_END')

    KB, QR, ACC = 32, 64, 192
    lV, lJ = a.new('K2V'), a.new('K2J')
    a(f's_cmp_ge_u32 s{sSL}, 16'); a(f's_cbranch_scc1 {lV}')
    a(f's_mov_b32 s{sJOB}, 0')
    a(f's_lshr_b32 s{sT}, s{sXC}, 2'); a(f's_lshl_b32 s{sT}, s{sT}, 5')
    a(f's_and_b32 s{sKT}, s{sXC}, 1'); a(f's_lshl_b32 s{sKT}, s{sKT}, 2'); a(f's_lshr_b32 s{sT2}, s{sSL}, 2'); a(f's_add_u32 s{sKT}, s{sKT}, s{sT2}')
    a(f's_lshr_b32 s{sT2}, s{sXC}, 1'); a(f's_and_b32 s{sT2}, s{sT2}, 1'); a(f's_lshl_b32 s{sT2}, s{sT2}, 2')
    a(f's_and_b32 s{sT3}, s{sSL}, 3'); a(f's_add_u32 s{sT2}, s{sT2}, s{sT3}')
    a(f's_lshl_b32 s{sT2}, s{sT2}, 2'); a(f's_add_u32 s{sT2}, s{sT2}, s{sT}'); a(f's_add_u32 s{sT2}, s{sT2}, s{sW8}')
    a(f's_lshl_b32 s{sA}, s{sKT}, 2'); a(f's_add_u32 s{sA}, s{sA}, s{sT}'); a(f's_mul_i32 s{sA}, s{sA}, {S32}'); a(f's_add_u32 s{sA}, s{sA}, {KF}')
    a(f's_mul_i32 s{sB}, s{sT2}, {S32}'); a(f's_add_u32 s{sB}, s{sB}, {QF}')
    a(f's_mul_i32 s{sOUT}, s{sT2}, {S64}'); a(f's_lshl_b32 s{sT3}, s{sKT}, 13'); a(f's_add_u32 s{sOUT}, s{sOUT}, s{sT3}'); a(f's_add_u32 s{sOUT}, s{sOUT}, {PF}')
    a(f's_lshl_b32 s{sML}, s{sT2}, 3'); a(f's_add_u32 s{sML}, s{sML}, s{sKT}'); a(f's_lshl_b32 s{sML}, s{sML}, 8'); a(f's_add_u32 s{sML}, s{sML}, {ML}')
    a(f's_branch {lJ}')
    a.label(lV)
    a(f's_mov_b32 s{sJOB}, 1')
    a(f's_sub_u32 s{sT3}, s{sSL}, 16')
    a(f's_lshr_b32 s{sT}, s{sT3}, 2'); a(f's_lshl_b32 s{sT2}, s{sXC}, 1'); a(f's_add_u32 s{sT}, s{sT}, s{sT2}')
    a(f's_and_b32 s{sKT}, s{sT}, 7')
    a(f's_mul_i32 s{sA}, s{sT}, {4*S32}'); a(f's_add_u32 s{sA}, s{sA}, {VF}')
    a(f's_and_b32 s{sT3}, s{sT3}, 3'); a(f's_lshl_b32 s{sT3}, s{sT3}, 2'); a(f's_add_u32 s{sT3}, s{sT3}, s{sW8}')
    a(f's_mul_i32 s{sB}, s{sT3}, {S32}'); a(f's_add_u32 s{sB}, s{sB}, {WO1}')
    a(f's_lshr_b32 s{sT}, s{sT}, 3'); a(f's_lshl_b32 s{sT}, s{sT}, 4'); a(f's_add_u32 s{sT}, s{sT}, s{sT3}')
    a(f's_mul_i32 s{sOUT}, s{sT}, {S64}'); a(f's_lshl_b32 s{sT3}, s{sKT}, 13'); a(f's_add_u32 s{sOUT}, s{sOUT}, s{sT3}'); a(f's_add_u32 s{sOUT}, s{sOUT}, {VT}')
    a.label(lJ)
    VL16, RA, RB = 8, 9, 10
    a(f'v_lshlrev_b32 {v(VL16)}, 4, {L}')
    a(f'v_mov_b32 {v(RA)}, {v(VL16)}'); a(f'v_add_u32 {v(RB)}, 65536, {v(VL16)}')
    a(f's_lshl_b32 s{sM0}, s{sW8}, 15')
    a(f's_mul_i32 s{sOA}, s{sW8}, {S32}'); a(f's_add_u32 s{sOA}, s{sOA}, s{sA}'); a(f's_mov_b32 s{sOB}, s{sB}')
    a('s_waitcnt lgkmcnt(0)')
    srd(a, sW, 4, 5, WS_BYTES)
    def kload(k):
        if k % 4 == 0: a(f's_add_u32 m0, s{sM0}, {k*1024}')
        a(f'buffer_load_dwordx4 {v(VL16)}, s[{sW}:{sW+3}], s{sOA} offen offset:{(k%4)*1024} lds')
        a(f'buffer_load_dwordx4 {v(QR + 4*k, 4)}, {v(VL16)}, s[{sW}:{sW+3}], s{sOB} offen offset:{(k%4)*1024}')
        if k % 4 == 3:
            a(f's_add_u32 s{sOA}, s{sOA}, 4096'); a(f's_add_u32 s{sOB}, s{sOB}, 4096')
    CH, LA = 2, 6
    for k in range(LA): kload(k)
    P.stamp()
    def kreads(ks):
        se = ks & 1
        for kb in range(4):
            base = RA if kb < 2 else RB
            a(f'ds_read_b128 {v(KB + se*16 + kb*4, 4)}, {v(base)} offset:{(kb & 1)*32768 + ks*1024}')
    issued = LA
    a(f's_waitcnt vmcnt({2*(issued - CH)})'); a('s_barrier')
    P.stamp()
    kreads(0)
    for ks in range(32):
        if ks + 1 < 32:
            if (ks + 1) % CH == 0:
                a(f's_waitcnt vmcnt({2*(issued - (ks + 1 + CH))})'); a('s_barrier')
                if ks + 1 in (8, 16, 24): P.stamp()
            kreads(ks + 1)
            a('s_waitcnt lgkmcnt(4)')
        else:
            a('s_waitcnt lgkmcnt(0)')
        se = ks & 1
        for kb in range(4):
            d = ACC + 16*kb
            a(f'v_mfma_f32_32x32x16_bf16 {v(d,16)}, {v(KB + se*16 + kb*4, 4)}, {v(QR + 4*ks, 4)}, {"0" if ks == 0 else v(d,16)}')
            if kb == 0 and issued < 32:
                kload(issued); issued += 1
    P.stamp()
    lSE, lVE = a.new('K2SE'), a.new('K2VE')
    PK = 32
    def store_frags():
        for kb in range(4):
            for h in range(2):
                p = PK + ((kb*2+h) % 4) * 4
                b = ACC + 16*kb + 8*h
                for i in range(4):
                    a(f'v_cvt_pk_bf16_f32 {v(p+i)}, {v(b+2*i)}, {v(b+2*i+1)}')
                f = kb*2 + h
                a(f's_add_u32 s{sT}, s{sOUT}, {(f//4)*4096}') if f % 4 == 0 else None
                a(f'buffer_store_dwordx4 {v(p,4)}, {v(VL16)}, s[{sW}:{sW+3}], s{sT} offen offset:{(f%4)*1024}{stf}')
    a(f's_cmp_eq_u32 s{sJOB}, 0'); a(f's_cbranch_scc1 {lSE}')
    store_frags()
    P.stamp()
    if prof: a('s_waitcnt vmcnt(0)')
    P.stamp(); P.real(); P.finish(sW8, 4, 5); P.n = 8
    a('s_endpgm')
    a.label(lSE)
    lNM = a.new('K2NM')
    a('s_nop 7'); a('s_nop 7')
    a(f's_cmp_lg_u32 s{sKT}, 7'); a(f's_cbranch_scc1 {lNM}')
    for j in range(4, 16): a(f'v_mov_b32 {v(ACC+48+j)}, 0xff800000')
    a.label(lNM)
    M, M2, SUM = 12, 13, 14
    a(f'v_max3_f32 {v(M)}, {v(ACC)}, {v(ACC+1)}, {v(ACC+2)}')
    a(f'v_max3_f32 {v(M2)}, {v(ACC+3)}, {v(ACC+4)}, {v(ACC+5)}')
    i = 6
    while i + 3 < 64:
        a(f'v_max3_f32 {v(M)}, {v(M)}, {v(ACC+i)}, {v(ACC+i+1)}')
        a(f'v_max3_f32 {v(M2)}, {v(M2)}, {v(ACC+i+2)}, {v(ACC+i+3)}')
        i += 4
    a(f'v_max3_f32 {v(M)}, {v(M)}, {v(ACC+62)}, {v(ACC+63)}')
    a(f'v_max_f32 {v(M)}, {v(M)}, {v(M2)}')
    a(f'v_mov_b32 {v(M2)}, {v(M)}')
    a(f'v_permlane32_swap_b32 {v(M)}, {v(M2)}')
    a(f'v_max_f32 {v(M)}, {v(M)}, {v(M2)}')
    a(f's_mov_b32 s{sT2}, {f32(SCALE)}')
    a(f'v_mul_f32 {v(M)}, s{sT2}, {v(M)}')
    a(f'v_mov_b32 {v(SUM)}, 0'); a(f'v_mov_b32 {v(M2)}, 0')
    for kb in range(4):
        for h in range(2):
            b = ACC + 16*kb + 8*h
            for i in range(8): a(f'v_fma_f32 {v(b+i)}, {v(b+i)}, s{sT2}, -{v(M)}')
            for i in range(8): a(f'v_exp_f32 {v(b+i)}, {v(b+i)}')
            p = PK + ((kb*2+h) % 4) * 4
            for i in range(4):
                a(f'v_add_f32 {v(SUM)}, {v(SUM)}, {v(b+2*i)}'); a(f'v_add_f32 {v(M2)}, {v(M2)}, {v(b+2*i+1)}')
                a(f'v_cvt_pk_bf16_f32 {v(p+i)}, {v(b+2*i)}, {v(b+2*i+1)}')
            f = kb*2 + h
            if f % 4 == 0: a(f's_add_u32 s{sT}, s{sOUT}, {(f//4)*4096}')
            a(f'buffer_store_dwordx4 {v(p,4)}, {v(VL16)}, s[{sW}:{sW+3}], s{sT} offen offset:{(f%4)*1024}{stf}')
    a(f'v_add_f32 {v(SUM)}, {v(SUM)}, {v(M2)}')
    a(f'v_mov_b32 {v(M2)}, {v(SUM)}')
    a(f'v_permlane32_swap_b32 {v(SUM)}, {v(M2)}')
    a(f'v_add_f32 {v(SUM)}, {v(SUM)}, {v(M2)}')
    a(f'v_cmp_gt_u32 vcc, 32, {L}')
    a(f'v_cndmask_b32 {v(SUM)}, {v(SUM)}, {v(M)}, vcc')
    a(f'v_lshlrev_b32 {t0}, 2, {L}')
    a(f'buffer_store_dword {v(SUM)}, {t0}, s[{sW}:{sW+3}], s{sML} offen{stf}')
    P.stamp()
    if prof: a('s_waitcnt vmcnt(0)')
    P.stamp(); P.real(); P.finish(sW8, 4, 5); P.n = 2
    a('s_endpgm')

    a.label('K2_CONV')
    sCG, sRT, sR0, sLB, sBB, sUO, sPR = 24, 25, 26, 27, 28, 29, 22
    GT_, WT_, ST_, PR_ = 0, 40960, 49152, 51200
    PRW = 9728
    NT_, TW_ = 0, 5632
    BF, AF, DD, UR = 16, 92, 112, 144
    SP, GQ, SR = 160, 192, 200
    VG_, VST, VNT, VB, VA_, VU = 8, 9, 10, 11, 12, 13
    a(f's_sub_u32 s{sT}, s{sSL}, 24')
    a(f's_lshl_b32 s{sRT}, s{sXC}, 1'); a(f's_and_b32 s{sT2}, s{sT}, 1'); a(f's_add_u32 s{sRT}, s{sRT}, s{sT2}')
    a(f's_lshr_b32 s{sCG}, s{sT}, 1')
    a(f's_lshl_b32 s{sR0}, s{sRT}, 7'); a(f's_sub_u32 s{sR0}, s{sR0}, 16')
    a(f'v_lshrrev_b32 {t0}, 4, {L}'); a(f'v_and_b32 {t1}, 15, {L}')
    a(f'v_lshlrev_b32 {t2}, 2, {t0}'); a(f'v_xor_b32 {t1}, {t1}, {t2}'); a(f'v_lshlrev_b32 {t1}, 4, {t1}')
    a(f's_lshl_b32 s{sT}, s{sCG}, 8'); a(f'v_add_u32 {t1}, s{sT}, {t1}')
    a(f's_mul_i32 s{sT}, s{sW8}, 20'); a(f's_add_u32 s{sT3}, s{sT}, s{sR0}'); a(f'v_add_u32 {t2}, s{sT3}, {t0}')
    a(f's_mul_i32 s{sT2}, s{sW8}, 5120')
    a('s_waitcnt lgkmcnt(0)')
    srd(a, sW, 4, 5, WS_BYTES)
    a(f'v_min_u32 {t3}, 19, {L}'); a(f'v_add_u32 {v(SR)}, s{sT}, {t3}')
    a(f'v_add_u32 {v(SR+2)}, s{sR0}, {v(SR)}')
    a(f'v_max_i32 {t3}, 0, {v(SR+2)}'); a(f'v_min_i32 {t3}, 2047, {t3}'); a(f'v_lshlrev_b32 {t3}, 3, {t3}')
    for p_ in range(8):
        a(f's_mov_b32 s{sLB}, {GS + p_*16384}')
        a(f'buffer_load_dwordx2 {v(SP+2*p_,2)}, {t3}, s[{sW}:{sW+3}], s{sLB} offen')
    a(f's_mov_b32 s{sLB}, {G}')
    for i in range(5):
        a(f'v_add_u32 {t3}, {4*i}, {t2}'); a(f'v_max_i32 {t3}, 0, {t3}'); a(f'v_min_i32 {t3}, 2047, {t3}')
        a(f'v_lshl_add_u32 {t3}, {t3}, 10, {t1}')
        a(f's_add_u32 m0, s{sT2}, {GT_ + i*1024}')
        a(f'buffer_load_dwordx4 {t3}, s[{sW}:{sW+3}], s{sLB} offen lds')
    srd(a, sD, 6, 7, 31 * 1024)
    a(f's_lshl_b32 s{sT2}, s{sW8}, 2'); a(f'v_add_u32 {t3}, s{sT2}, {t0}'); a(f'v_lshl_add_u32 {t3}, {t3}, 10, {t1}')
    a(f's_lshl_b32 s{sT2}, s{sW8}, 10'); a(f's_add_u32 m0, s{sT2}, {WT_}')
    a(f'buffer_load_dwordx4 {t3}, s[{sD}:{sD+3}], 0 offen lds')
    P.stamp()
    a(f's_lshr_b32 s{sBB}, s{sRT}, 3'); a(f's_lshl_b32 s{sBB}, s{sBB}, 10')
    a(f's_mul_i32 s{sPR}, s{sW8}, {PRW}'); a(f's_add_u32 s{sPR}, s{sPR}, {PR_}')
    for i in range(4): a(f'v_mov_b32 {v(GQ+i)}, 0')
    a(f'v_lshlrev_b32 {t0}, 4, {L}'); a(f'v_add_u32 {t0}, s{sPR}, {t0}')
    for i in range(4): a(f'ds_write_b128 {t0}, {v(GQ,4)} offset:{TW_ + i*1024}')
    a(f'v_bfe_u32 {t0}, {L}, 2, 2'); a(f'v_lshrrev_b32 {t2}, 4, {L}'); a(f'v_bfe_u32 {t3}, {L}, 1, 1')
    a(f's_lshl_b32 s{sT}, s{sW8}, 1'); a(f'v_or_b32 {t3}, s{sT}, {t3}'); a(f'v_lshlrev_b32 {t4}, 2, {t0}'); a(f'v_xor_b32 {t3}, {t3}, {t4}')
    a(f'v_lshlrev_b32 {t3}, 4, {t3}'); a(f'v_lshl_add_u32 {t3}, {t0}, 8, {t3}'); a(f'v_lshl_add_u32 {t3}, {t2}, 10, {t3}')
    a(f'v_and_b32 {t4}, 1, {L}'); a(f'v_lshl_add_u32 {v(VG_)}, {t4}, 3, {t3}')
    a(f'v_lshlrev_b32 {v(VST)}, 5, {t2}')
    a(f'v_and_b32 {t0}, 15, {L}'); a(f'v_mul_u32_u24 {t3}, 352, {t0}'); a(f'v_lshl_add_u32 {t3}, {t2}, 3, {t3}'); a(f'v_add_u32 {v(VNT)}, s{sPR}, {t3}')
    a(f'v_mul_u32_u24 {t3}, 200, {t0}'); a(f'v_lshl_add_u32 {t3}, {t2}, 3, {t3}'); a(f'v_add_u32 {t1}, s{sPR}, {t3}')
    a(f'v_lshrrev_b32 {t0}, 2, {L}'); a(f'v_and_b32 {t2}, 3, {L}')
    a(f'v_mul_u32_u24 {t3}, 352, {t0}'); a(f'v_lshl_add_u32 {t3}, {t2}, 3, {t3}'); a(f'v_add_u32 {v(VB)}, s{sPR}, {t3}')
    a(f'v_mul_u32_u24 {t3}, 200, {t0}'); a(f'v_lshlrev_b32 {t4}, 1, {t2}'); a(f'v_sub_u32 {t3}, {t3}, {t4}')
    a(f'v_and_b32 {t4}, 1, {t2}'); a(f'v_mul_u32_u24 {t4}, 94, {t4}'); a(f'v_sub_u32 {t3}, {t3}, {t4}'); a(f'v_add_u32 {t3}, 108, {t3}')
    a(f'v_add_u32 {v(VA_)}, s{sPR}, {t3}')
    a(f'v_lshlrev_b32 {v(VU)}, 4, {L}')
    a(f's_lshl_b32 s{sT}, s{sRT}, 2'); a(f's_mul_i32 s{sT}, s{sT}, {S32}')
    a(f's_lshl_b32 s{sT2}, s{sCG}, 3'); a(f's_add_u32 s{sT2}, s{sT2}, s{sW8}'); a(f's_lshl_b32 s{sT2}, s{sT2}, 10'); a(f's_add_u32 s{sUO}, s{sT}, s{sT2}')
    a('s_waitcnt vmcnt(6)')
    P.stamp()
    a(f's_mov_b32 s{sT}, {f32(1/512)}'); a(f's_mov_b32 s{sT2}, {f32(1e-5)}')
    b = SP
    for step in (8, 4, 2):
        for i in range(step): a(f'v_add_f32 {v(b+i)}, {v(b+i)}, {v(b+step+i)}')
    a(f'v_mul_f32 {v(b)}, s{sT}, {v(b)}'); a(f'v_mul_f32 {v(b+1)}, s{sT}, {v(b+1)}')
    a(f'v_fma_f32 {v(b+1)}, -{v(b)}, {v(b)}, {v(b+1)}')
    a(f'v_max_f32 {v(b+1)}, 0, {v(b+1)}'); a(f'v_add_f32 {v(b+1)}, s{sT2}, {v(b+1)}')
    a(f'v_rsq_f32 {v(b+2)}, {v(b+1)}')
    a(f'v_mul_f32 {v(b+3)}, {v(b)}, {v(b+2)}'); a(f'v_sub_f32 {v(b+3)}, 0, {v(b+3)}')
    a(f'v_subrev_u32 {t0}, s{sBB}, {v(SR+2)}')
    a(f'v_cmp_gt_u32 vcc, 1000, {t0}')
    a(f'v_cndmask_b32 {v(b+2)}, 0, {v(b+2)}, vcc'); a(f'v_cndmask_b32 {v(b+3)}, 0, {v(b+3)}, vcc')
    a(f'v_lshlrev_b32 {t0}, 3, {v(SR)}')
    a(f'ds_write_b64 {t0}, {v(b+2,2)} offset:{ST_}')
    a('s_waitcnt vmcnt(0) lgkmcnt(0)'); a('s_barrier')
    P.stamp()
    a(f's_add_u32 s{sT}, s{sUO}, {UF}')
    for f in range(4):
        a(f'buffer_load_dwordx4 {v(UR+4*f,4)}, {v(VU)}, s[{sW}:{sW+3}], s{sT} offen')
        if f < 3: a(f's_add_u32 s{sT}, s{sT}, {S32}')
    TQ = 204
    GR = SP
    AB = BF
    for aa in range(2): a(f'ds_read_b64_tr_b16 {v(TQ+2*aa,2)}, {v(VG_)} offset:{WT_ + aa*4096}')
    for aa in range(10):
        a(f'ds_read_b64_tr_b16 {v(GR+2*aa,2)}, {v(VG_)} offset:{GT_ + aa*4096}')
        a(f'ds_read_b128 {v(AB + aa*8, 4)}, {v(VST)} offset:{ST_ + aa*128}')
        a(f'ds_read_b128 {v(AB + aa*8 + 4, 4)}, {v(VST)} offset:{ST_ + aa*128 + 16}')
    a('s_waitcnt lgkmcnt(15)')
    for aa in range(2):
        o = TW_ + aa*32
        a(f'ds_write_b64 {t1}, {v(TQ+2*aa,2)} offset:{o + 16}')
        a(f'ds_write_b16 {t1}, {v(TQ+2*aa)} offset:{o + 96 + 14}'); a(f'ds_write_b16_d16_hi {t1}, {v(TQ+2*aa)} offset:{o + 96 + 16}')
        a(f'ds_write_b16 {t1}, {v(TQ+2*aa+1)} offset:{o + 96 + 18}'); a(f'ds_write_b16_d16_hi {t1}, {v(TQ+2*aa+1)} offset:{o + 96 + 20}')
    NQ = 184
    a('s_waitcnt lgkmcnt(10)')
    for aa in range(10):
        q = AB + aa*8; g0 = GR + 2*aa; nq = NQ + 4*(aa & 1)
        a(f'v_lshlrev_b32 {v(nq)}, 16, {v(g0)}'); a(f'v_and_b32 {v(nq+1)}, 0xffff0000, {v(g0)}')
        a(f'v_lshlrev_b32 {v(nq+2)}, 16, {v(g0+1)}'); a(f'v_and_b32 {v(nq+3)}, 0xffff0000, {v(g0+1)}')
        for e in range(4): a(f'v_fma_f32 {v(nq+e)}, {v(nq+e)}, {v(q+2*e)}, {v(q+2*e+1)}')
        a(f'v_cvt_pk_bf16_f32 {v(g0)}, {v(nq)}, {v(nq+1)}'); a(f'v_cvt_pk_bf16_f32 {v(g0+1)}, {v(nq+2)}, {v(nq+3)}')
        a(f'ds_write_b64 {v(VNT)}, {v(g0,2)} offset:{NT_ + aa*32}')
    a('s_waitcnt lgkmcnt(0)')
    P.stamp()
    for kk in range(9): a(f'ds_read2_b32 {v(AF+2*kk,2)}, {v(VA_)} offset0:{(TW_//4 + 2*kk) if TW_//4 + 2*kk < 255 else 0} offset1:0') if False else None
    a(f'v_add_u32 {v(VA_)}, {TW_}, {v(VA_)}')
    for kk in range(9): a(f'ds_read2_b32 {v(AF+2*kk,2)}, {v(VA_)} offset0:{2*kk} offset1:{2*kk+1}')
    for s_ in range(37): a(f'ds_read_b64 {v(BF+2*s_,2)}, {v(VB)} offset:{NT_ + s_*8}')
    a('s_waitcnt lgkmcnt(0)')
    for kk in range(9):
        for q in range(8):
            d = DD + 4*q
            a(f'v_mfma_f32_4x4x4_16b_bf16 {v(d,4)}, {v(AF+2*kk,2)}, {v(BF+2*(4*q+kk),2)}, {"0" if kk == 0 else v(d,4)}')
    P.stamp()
    a(f'v_lshrrev_b32 {t0}, 2, {L}'); a(f'v_and_b32 {t2}, 3, {L}'); a(f'v_mul_u32_u24 {t3}, 288, {t0}'); a(f'v_lshl_add_u32 {t3}, {t2}, 3, {t3}')
    a(f'v_add_u32 {t3}, s{sPR}, {t3}')
    CP = BF
    for q in range(8):
        a(f'v_cvt_pk_bf16_f32 {v(CP+2*q)}, {v(DD+4*q)}, {v(DD+4*q+1)}'); a(f'v_cvt_pk_bf16_f32 {v(CP+2*q+1)}, {v(DD+4*q+2)}, {v(DD+4*q+3)}')
        a(f'ds_write_b64 {t3}, {v(CP+2*q,2)} offset:{q*32}')
    a(f'v_lshrrev_b32 {t0}, 5, {L}'); a(f'v_bfe_u32 {t1}, {L}, 2, 2'); a(f'v_lshl_add_u32 {t0}, {t0}, 3, {t1}'); a(f'v_mul_u32_u24 {t0}, 288, {t0}')
    a(f'v_bfe_u32 {t1}, {L}, 4, 1'); a(f'v_lshl_add_u32 {t0}, {t1}, 5, {t0}'); a(f'v_and_b32 {t1}, 3, {L}'); a(f'v_lshl_add_u32 {t0}, {t1}, 3, {t0}')
    a(f'v_add_u32 {t2}, s{sPR}, {t0}')
    a('s_waitcnt lgkmcnt(0)')
    CR = BF + 16
    for f in range(4):
        for e in range(2):
            a(f'ds_read_b64_tr_b16 {v(CR+4*f+2*e,2)}, {t2} offset:{e*4*288 + f*64}')
    a('s_waitcnt vmcnt(0)')
    a(f's_add_u32 s{sT}, s{sUO}, {UC}')
    TM = DD
    for f in range(4):
        a(f's_waitcnt lgkmcnt({2*(3-f)})')
        for d in range(4):
            u = UR + 4*f + d; c = CR + 4*f + d; m = TM + 4*d
            a(f'v_lshlrev_b32 {v(m)}, 16, {v(u)}'); a(f'v_and_b32 {v(m+1)}, 0xffff0000, {v(u)}')
            a(f'v_lshlrev_b32 {v(m+2)}, 16, {v(c)}'); a(f'v_and_b32 {v(m+3)}, 0xffff0000, {v(c)}')
        for d in range(4):
            m = TM + 4*d
            a(f'v_mul_f32 {v(m)}, {v(m)}, {v(m+2)}'); a(f'v_mul_f32 {v(m+1)}, {v(m+1)}, {v(m+3)}')
        for d in range(4):
            u = UR + 4*f + d; m = TM + 4*d
            a(f'v_cvt_pk_bf16_f32 {v(u)}, {v(m)}, {v(m+1)}')
        a(f'buffer_store_dwordx4 {v(UR+4*f,4)}, {v(VU)}, s[{sW}:{sW+3}], s{sT} offen{stf}')
        if f < 3: a(f's_add_u32 s{sT}, s{sT}, {S32}')
    P.n = 8; P.stamp()
    if prof: a('s_waitcnt vmcnt(0)')
    P.stamp(); P.real(); P.finish(sW8, 4, 5)
    a.label('K2_END')
    a('s_endpgm')
    return dict(name=name, body=a.text(), grid=256, block=512, lds=max(KT_BYTES, 51200 + 8*9728), vgpr=256, agpr=0, sgpr=102 if prof else 64)
```

```python
from asm import *
MB = 1 << 20
S32 = 33 * 1024
S64 = 65 * 1024
REG = 64 * S32
import os as _os
WS_OFF = int(_os.environ.get('WS_OFF_MB', '0')) * MB
QF = WS_OFF
KF = QF + REG
VF = KF + REG
UF = VF + REG
UC = UF if _os.environ.get('UC_SEP', '1') == '0' else UF + REG
G  = UF + 2 * REG
GS = G + 2048 * 1024
WO1 = GS + 2048 * 64
WO2 = WO1 + 16 * S32
ML = WO2 + 16 * S32
PF = ML + 64 * 2048
VT = PF + 64 * S64
WS_BYTES = VT + 32 * S64
OUT_BYTES = 2048000
SRD3 = 0x20000

def srd(a, s, lo, hi, nbytes):
    a(f's_mov_b32 s{s}, s{lo}'); a(f's_mov_b32 s{s+1}, s{hi}')
    a(f's_mov_b32 s{s+2}, {nbytes}'); a(f's_mov_b32 s{s+3}, {SRD3}')

def v(r, n=1): return f'v{r}' if n == 1 else f'v[{r}:{r+n-1}]'
def ag(r, n=1): return f'a{r}' if n == 1 else f'a[{r}:{r+n-1}]'
def s(r, n=1): return f's{r}' if n == 1 else f's[{r}:{r+n-1}]'

PROF = WS_OFF + 24 * MB
class Prof:
    def __init__(self, a, enabled, kidx, sb=64):
        self.a, self.on, self.k, self.sb, self.n = a, enabled, kidx, sb, 0
    def stamp(self, wait=True):
        if not self.on: return
        if self.on == 'light':
            self.n += 1; return
        i = self.n; self.n += 1
        self.a(f's_memtime s[{self.sb+2*i}:{self.sb+2*i+1}]')
        if wait: self.a('s_waitcnt lgkmcnt(0)')
    def real(self):
        if not self.on: return
        i = self.n; self.n += 1
        self.a(f's_memrealtime s[{self.sb+2*i}:{self.sb+2*i+1}]'); self.a('s_waitcnt lgkmcnt(0)')
    def finish(self, swave, srdbase_lo, srdbase_hi, n=None):
        if not self.on: return
        a = self.a; n = n or self.n
        a('s_waitcnt vmcnt(0) lgkmcnt(0)')
        a(f's_mov_b32 s96, s{srdbase_lo}'); a(f's_mov_b32 s97, s{srdbase_hi}'); a(f's_mov_b32 s98, {WS_OFF + 32*MB}'); a(f's_mov_b32 s99, {SRD3}')
        a(f's_lshl_b32 s60, s2, 3'); a(f's_add_u32 s60, s60, s{swave}'); a(f's_lshl_b32 s60, s60, 7'); a(f's_add_u32 s60, s60, {PROF + self.k*256*8*128}')
        a('v_mov_b32 v2, 0')
        a('s_mov_b64 exec, 1')
        for i in (range(n) if self.on != 'light' else (0, n-1)):
            a(f'v_mov_b32 v1, s{self.sb+2*i}')
            a(f'buffer_store_dword v1, v2, s[96:99], s60 offen offset:{4*i}')
        a('s_getreg_b32 s61, hwreg(HW_REG_HW_ID)'); a('s_getreg_b32 s62, hwreg(HW_REG_XCC_ID)')
        a('v_mov_b32 v1, s61'); a('buffer_store_dword v1, v2, s[96:99], s60 offen offset:120')
        a('v_mov_b32 v1, s62'); a('buffer_store_dword v1, v2, s[96:99], s60 offen offset:124')
        a('s_waitcnt vmcnt(0)')

import struct
LOG2E = 1.4426950408889634
def f32(x):
    return '0x%08x' % struct.unpack('<I', struct.pack('<f', x))[0]

class VM:
    def __init__(self, a):
        self.a, self.q = a, []
    def issue(self, text, tag):
        self.a(text); self.q.append(tag)
    def count(self, tag):
        last = max(i for i, t in enumerate(self.q) if t == tag)
        return len(self.q) - 1 - last
    def wait(self, tag, extra=''):
        n = self.count(tag)
        assert n <= 63, n
        self.a(f's_waitcnt vmcnt({n}){extra}')
ST_FLAGS = ' sc1'
```

```python
from common import *

R = 3
STG = 40960
NST = 8
GC0 = -2.0 * 0.7978845608028654 * LOG2E
GC1 = GC0 * 0.044715

def gelu_block(a, ys, tmps, vC0, sC1):
    for y, q in zip(ys, tmps): a(f'v_mul_f32 {v(q)}, {v(y)}, {v(y)}')
    for y, q in zip(ys, tmps): a(f'v_fma_f32 {v(q)}, {v(q)}, s{sC1}, {v(vC0)}')
    for y, q in zip(ys, tmps): a(f'v_mul_f32 {v(q)}, {v(q)}, {v(y)}')
    for y, q in zip(ys, tmps): a(f'v_exp_f32 {v(q)}, {v(q)}')
    for y, q in zip(ys, tmps): a(f'v_add_f32 {v(q)}, 1.0, {v(q)}')
    for y, q in zip(ys, tmps): a(f'v_rcp_f32 {v(q)}, {v(q)}')
    for y, q in zip(ys, tmps): a(f'v_mul_f32 {v(y)}, {v(y)}, {v(q)}')

def build(name='k1_kernel', prof=False, touch=False, xf=' nt', wf='', prio=0, stf=' sc1', rot=2):
    a = Asm()
    P = Prof(a, prof, 0)
    ACC = 0
    AS, AG, AC = 48, 52, 56
    FR = 68
    ONES = 132
    AX, AXS, AW = 136, 140, 144
    VX0, VX1, VW = 146, 147, 148
    LANE, T0 = 151, 152
    def fr(st, what, i=0):
        b = FR + st * 32
        return {'x': b + 4 * i, 'xs': b + 16, 'w': b + 20 + 4 * i}[what]
    sX, sWs = 24, 28
    sB = [32, 36, 40]
    sW8, sWR, sWC, sRT, sCT, sFOLD = 44, 45, 46, 47, 48, 49
    sOX, sOW, sSW, sM0 = 50, [51, 52, 53], [54, 55, 56], 57
    sTY, sOB = [58, 59, 60], [61, 62, 63]
    sT, sT2, sT3, sC1 = 20, 21, 22, 23
    L = v(LANE); t0, t1, t2, t3, t4 = (v(T0 + i) for i in range(5))

    a('s_cmp_ge_u32 s2, 248'); a('s_cbranch_scc0 K1_GO')
    a('s_branch K1_END')
    a.label('K1_GO')
    if prio: a('s_setprio 3')
    P.real(); P.stamp()
    a('s_load_dwordx16 s[4:19], s[0:1], 0')
    a('s_load_dwordx2 s[100:101], s[0:1], 64')
    a('s_load_dwordx2 s[98:99], s[0:1], 88')
    a(f'v_lshrrev_b32 {t0}, 6, v0'); a(f'v_and_b32 {L}, 63, v0')
    a(f'v_readfirstlane_b32 s{sW8}, {t0}')
    a(f's_and_b32 s{sT}, s2, 7'); a(f's_lshr_b32 s{sT2}, s2, 3')
    a(f's_cmp_ge_u32 s{sT2}, 28'); a(f's_cselect_b32 s{sFOLD}, 1, 0')
    a(f's_lshr_b32 s{sWR}, s{sW8}, 2'); a(f's_and_b32 s{sWC}, s{sW8}, 3')
    a(f's_lshl_b32 s{sM0}, s{sW8}, 10')
    lF, lD = a.new('K1F'), a.new('K1D')
    a(f's_cmp_eq_u32 s{sFOLD}, 1'); a(f's_cbranch_scc1 {lF}')
    a(f's_and_b32 s{sRT}, s{sT}, 3'); a(f's_lshl_b32 s{sRT}, s{sRT}, 2'); a(f's_and_b32 s{sT3}, s{sT2}, 3'); a(f's_add_u32 s{sRT}, s{sRT}, s{sT3}')
    a(f's_lshr_b32 s{sCT}, s{sT}, 2'); a(f's_mul_i32 s{sCT}, s{sCT}, 7'); a(f's_lshr_b32 s{sT3}, s{sT2}, 2'); a(f's_add_u32 s{sCT}, s{sCT}, s{sT3}')
    for j in range(3):
        bi = sOB[j]
        if j == 0:
            a(f's_lshl_b32 s{bi}, s{sCT}, 1'); a(f's_cmp_ge_u32 s{sCT}, 12'); a(f's_cselect_b32 s{bi}, 0, s{bi}')
        elif j == 1:
            a(f's_lshl_b32 s{bi}, s{sCT}, 1'); a(f's_add_u32 s{sT}, s{bi}, 1'); a(f's_add_u32 s{sT2}, s{bi}, 4')
            a(f's_cmp_ge_u32 s{sCT}, 12'); a(f's_cselect_b32 s{bi}, s{sT2}, s{sT}')
        else:
            a(f's_add_u32 s{sT}, s{sCT}, 32'); a(f's_add_u32 s{sT2}, s{sCT}, 16')
            a(f's_cmp_ge_u32 s{sCT}, 8'); a(f's_cselect_b32 s{sT}, s{sT2}, s{sT}')
            a(f's_lshl_b32 s{sT2}, s{sCT}, 1'); a(f's_add_u32 s{sT2}, s{sT2}, 5')
            a(f's_cmp_ge_u32 s{sCT}, 12'); a(f's_cselect_b32 s{bi}, s{sT2}, s{sT}')
        a(f's_lshr_b32 s{sT}, s{bi}, 3'); a(f's_and_b32 s{sT2}, s{bi}, 7')
        a(f's_cmp_ge_u32 s{sT}, 3'); a(f's_cselect_b32 s{sSW[j]}, 11, 10')
        a(f's_sub_u32 s{sTY[j]}, s{sT}, 2'); a(f's_max_i32 s{sTY[j]}, s{sTY[j]}, 0')
        if j == 0:
            a(f's_cmp_ge_u32 s{sCT}, 12'); a(f's_cselect_b32 s{sTY[j]}, 3, s{sTY[j]}')
        a(f's_lshl_b32 s{sOW[j]}, s{sT2}, 7'); a(f's_cmp_eq_u32 s{sT}, 4'); a(f's_cselect_b32 s{sT3}, 1024, 0'); a(f's_add_u32 s{sOW[j]}, s{sOW[j]}, s{sT3}')
    a(f's_lshr_b32 s{sT3}, s{sRT}, 3'); a(f's_mul_i32 s{sT3}, s{sT3}, 1000')
    a(f's_and_b32 s{sT}, s{sRT}, 7'); a(f's_lshl_b32 s{sT}, s{sT}, 7'); a(f's_add_u32 s{sOX}, s{sT3}, s{sT}'); a(f's_lshl_b32 s{sOX}, s{sOX}, 10')
    a(f's_branch {lD}')
    a.label(lF)
    a(f's_sub_u32 s{sCT}, s{sT2}, 28')
    a(f's_and_b32 s{sRT}, s{sT}, 3')
    a(f's_lshr_b32 s{sT3}, s{sT}, 2')
    a(f's_lshl_b32 s{sOX}, s{sRT}, 17')
    for j in range(3):
        a(f's_mov_b32 s{sSW[j]}, 10')
        a(f's_mul_i32 s{sOB[j]}, s{sCT}, 3'); a(f's_add_u32 s{sOB[j]}, s{sOB[j]}, {j}')
        a(f's_cmp_ge_u32 s{sOB[j]}, 8'); a(f's_cselect_b32 s{sTY[j]}, 3, 0'); a(f's_min_u32 s{sOB[j]}, s{sOB[j]}, 7')
        a(f's_lshl_b32 s{sOW[j]}, s{sOB[j]}, 7'); a(f's_lshl_b32 s{sT}, s{sT3}, 19'); a(f's_add_u32 s{sOW[j]}, s{sOW[j]}, s{sT}')
    a(f's_add_u32 s{sFOLD}, s{sT3}, 1')
    a.label(lD)
    a(f'v_lshrrev_b32 {t0}, 3, {L}')
    a(f'v_and_b32 {t1}, 7, {L}')
    a(f'v_lshrrev_b32 {t2}, 1, {t0}')
    a(f'v_xor_b32 {t3}, {t2}, {t1}')
    a(f's_lshl_b32 s{sT}, s{sW8}, 4')
    a(f'v_add_u32 {t4}, s{sT}, {t0}'); a(f'v_lshlrev_b32 {t4}, 10, {t4}'); a(f'v_add_u32 {t4}, s{sOX}, {t4}')
    a(f's_mov_b32 s{sOX}, 0')
    a(f'v_lshl_add_u32 {v(VX0)}, {t3}, 4, {t4}')
    a(f'v_xor_b32 {t3}, 4, {t3}'); a(f'v_add_u32 {t4}, 8192, {t4}')
    a(f'v_lshl_add_u32 {v(VX1)}, {t3}, 4, {t4}')
    a(f'v_and_b32 {t2}, 1, {t2}'); a(f's_and_b32 s{sT}, s{sW8}, 1'); a(f's_lshl_b32 s{sT}, s{sT}, 1')
    a(f'v_or_b32 {t2}, s{sT}, {t2}'); a(f'v_lshlrev_b32 {t2}, 1, {t2}'); a(f'v_xor_b32 {t2}, {t2}, {t1}'); a(f'v_lshlrev_b32 {t2}, 4, {t2}')
    a(f's_lshl_b32 s{sT}, s{sW8}, 3'); a(f'v_add_u32 {t0}, s{sT}, {t0}')
    for j in range(3):
        a(f'v_lshlrev_b32 {v(VW+j)}, s{sSW[j]}, {t0}'); a(f'v_add_u32 {v(VW+j)}, {v(VW+j)}, {t2}'); a(f'v_add_u32 {v(VW+j)}, s{sOW[j]}, {v(VW+j)}')
        a(f's_add_u32 s{sSW[j]}, s{sSW[j]}, 6')
    sKS = sC1
    if rot:
        a(f's_lshr_b32 s{sT2}, s2, 3'); a(f's_and_b32 s{sT}, s{sT2}, 3'); a(f's_lshl_b32 s{sT}, s{sT}, 1'); a(f's_lshr_b32 s{sT2}, s{sT2}, 2')
        a(f's_add_u32 s{sT}, s{sT}, s{sT2}'); a(f's_and_b32 s{sT2}, s2, 1'); a(f's_add_u32 s{sT}, s{sT}, s{sT2}')
        a(f's_mul_i32 s{sT2}, s{sCT}, 3'); a(f's_lshl_b32 s{sT3}, s{sRT}, 1'); a(f's_add_u32 s{sT2}, s{sT2}, s{sT3}')
        a(f's_cmp_lg_u32 s{sFOLD}, 0'); a(f's_cselect_b32 s{sKS}, s{sT2}, s{sT}'); a(f's_and_b32 s{sKS}, s{sKS}, 7')
        if rot == 2:
            a(f's_lshr_b32 s{sT2}, s2, 3'); a(f's_lshr_b32 s{sT}, s{sT2}, 2'); a(f's_add_u32 s{sT}, s{sT}, s{sT2}')
            a(f's_and_b32 s{sT}, s{sT}, 1'); a(f's_lshl_b32 s{sKS}, s{sT}, 2')
        if rot == 3:
            a(f's_lshr_b32 s{sT2}, s2, 3'); a(f's_lshr_b32 s{sT}, s{sT2}, 2'); a(f's_and_b32 s{sT2}, s{sT2}, 3'); a(f's_add_u32 s{sT}, s{sT}, s{sT2}')
            a(f's_mul_i32 s{sT2}, s{sT}, 21846'); a(f's_lshr_b32 s{sT2}, s{sT2}, 16'); a(f's_mul_i32 s{sT2}, s{sT2}, 3'); a(f's_sub_u32 s{sT}, s{sT}, s{sT2}')
            a(f's_mul_i32 s{sKS}, s{sT}, 3')
    else:
        a(f's_mov_b32 s{sKS}, 0')
    a(f's_lshl_b32 s{sOX}, s{sKS}, 7')

    def dma_groups(st):
        base = (st % R) * STG
        g = []
        g.append(([f's_lshl_b32 s{sT}, s{sM0}, 1', f's_add_u32 m0, s{sT}, {base}'],
                  [f'buffer_load_dwordx4 {v(VX0)}, s[{sX}:{sX+3}], s{sOX} offen{xf} lds']))
        g.append(([f's_add_u32 m0, m0, 1024'],
                  [f'buffer_load_dwordx4 {v(VX1)}, s[{sX}:{sX+3}], s{sOX} offen{xf} lds']))
        for j in range(3):
            post = [f'buffer_load_dwordx4 {v(VW+j)}, s[{sB[j]}:{sB[j]+3}], s{sOW[j]} offen{wf} lds']
            if j == 2: post += [f's_add_u32 s{sKS}, s{sKS}, 1', f's_and_b32 s{sKS}, s{sKS}, 7', f's_lshl_b32 s{sOX}, s{sKS}, 7']
            g.append(([f's_lshl_b32 s{sOW[j]}, s{sKS}, s{sSW[j]}', f's_add_u32 m0, s{sM0}, {base + 16384 + j*8192}'], post))
        return g
    def dma(st):
        for pre, post in dma_groups(st):
            for l in pre + post: a(l)
    a('s_waitcnt lgkmcnt(0)')
    lF2, lD2 = a.new('K1F2'), a.new('K1D2')
    a(f's_mov_b32 s{sWs}, s98'); a(f's_mov_b32 s{sWs+1}, s99'); a(f's_mov_b32 s{sWs+2}, {WS_BYTES}'); a(f's_mov_b32 s{sWs+3}, {SRD3}')
    a(f's_mov_b32 s{sX+3}, {SRD3}')
    for j in range(3): a(f's_mov_b32 s{sB[j]+3}, {SRD3}')
    a(f's_cmp_lg_u32 s{sFOLD}, 0'); a(f's_cbranch_scc1 {lF2}')
    a(f's_mov_b32 s{sX}, s4'); a(f's_mov_b32 s{sX+1}, s5'); a(f's_mov_b32 s{sX+2}, {OUT_BYTES}')
    for j in range(3):
        b = sB[j]
        a(f's_lshr_b32 s{sT}, s{sOB[j]}, 3')
        a(f's_cmp_eq_u32 s{sT}, 1'); a(f's_cselect_b32 s{b}, s8, s6'); a(f's_cselect_b32 s{b+1}, s9, s7')
        a(f's_cmp_eq_u32 s{sT}, 2'); a(f's_cselect_b32 s{b}, s10, s{b}'); a(f's_cselect_b32 s{b+1}, s11, s{b+1}')
        a(f's_cmp_ge_u32 s{sT}, 3'); a(f's_cselect_b32 s{b}, s14, s{b}'); a(f's_cselect_b32 s{b+1}, s15, s{b+1}')
        a(f's_mov_b32 s{b+2}, {1 << 19}'); a(f's_cselect_b32 s{b+2}, {1 << 20}, s{b+2}')
    a(f's_branch {lD2}')
    a.label(lF2)
    a(f's_cmp_eq_u32 s{sFOLD}, 2'); a(f's_cselect_b32 s{sX}, s18, s12'); a(f's_cselect_b32 s{sX+1}, s19, s13')
    a(f's_mov_b32 s{sX+2}, {1 << 19}')
    for j in range(3):
        b = sB[j]
        a(f's_mov_b32 s{b}, s100'); a(f's_mov_b32 s{b+1}, s101'); a(f's_mov_b32 s{b+2}, {1 << 20}')
    a.label(lD2)
    TCH = T0 + 5
    if touch:
        lW, lT = a.new('K1TW'), a.new('K1TD')
        a(f's_mov_b32 s92, s{sX}'); a(f's_mov_b32 s93, s{sX+1}'); a(f's_mov_b32 s94, s{sX+2}'); a(f's_mov_b32 s95, {SRD3}')
        a(f'v_mov_b32 {v(TCH)}, {v(VX0)}')
        a(f's_lshr_b32 s{sT2}, s2, 3')
        a(f's_cmp_ge_u32 s{sW8}, 2'); a(f's_cbranch_scc1 {lW}')
        a(f's_lshr_b32 s{sT2}, s{sT2}, 2'); a(f's_cmp_lg_u32 s{sFOLD}, 0'); a(f's_cselect_b32 s{sT2}, s{sCT}, s{sT2}')
        a(f's_add_u32 s{sT2}, s{sT2}, 1'); a(f's_lshl_b32 s{sT2}, s{sT2}, 7')
        a(f'v_and_b32 {t0}, 0xfffffc00, {v(VX0)}')
        a(f'v_lshrrev_b32 {t1}, 3, {L}'); a(f's_lshl_b32 s{sT}, s{sW8}, 4'); a(f'v_add_u32 {t1}, s{sT}, {t1}'); a(f'v_lshlrev_b32 {t1}, 10, {t1}')
        a(f'v_sub_u32 {t0}, {t0}, {t1}')
        a(f's_lshl_b32 s{sT}, s{sW8}, 6'); a(f'v_add_u32 {t1}, s{sT}, {L}'); a(f'v_lshl_add_u32 {t0}, {t1}, 10, {t0}')
        a(f'v_add_u32 {v(TCH)}, s{sT2}, {t0}')
        a(f's_branch {lT}')
        a.label(lW)
        a(f's_and_b32 s{sT2}, s{sT2}, 3'); a(f's_cmp_lg_u32 s{sFOLD}, 0'); a(f's_cselect_b32 s{sT2}, s{sRT}, s{sT2}'); a(f's_and_b32 s{sT2}, s{sT2}, 3')
        a(f's_mul_i32 s{sT2}, s{sT2}, 96'); a(f's_and_b32 s{sT}, s{sW8}, 1'); a(f's_mul_i32 s{sT}, s{sT}, 48'); a(f's_add_u32 s{sT2}, s{sT2}, s{sT}'); a(f's_add_u32 s{sT2}, s{sT2}, 128')
        a(f'v_min_u32 {t0}, 47, {L}'); a(f'v_add_u32 {t0}, s{sT2}, {t0}')
        a(f's_sub_u32 s{sT}, s{sW8}, 2'); a(f's_lshr_b32 s{sT}, s{sT}, 1')
        for j in range(3):
            lj = a.new('K1TJ')
            a(f's_cmp_lg_u32 s{sT}, {j}'); a(f's_cbranch_scc1 {lj}')
            a(f's_lshr_b32 s{sT2}, s{sSW[j]}, 6'); a(f'v_mul_lo_u32 {t0}, {t0}, s{sT2}'); a(f'v_add_u32 {v(TCH)}, s{sOW[j]}, {t0}')
            a(f's_mov_b32 s92, s{sB[j]}'); a(f's_mov_b32 s93, s{sB[j]+1}'); a(f's_mov_b32 s94, s{sB[j]+2}'); a(f's_mov_b32 s95, {SRD3}')
            a.label(lj)
        a.label(lT)
    dma(0); a('s_barrier'); dma(1)
    if touch: a(f'buffer_load_dword {v(TCH+1)}, {v(TCH)}, s[92:95], 0 offen')
    if prio:
        a('s_setprio 0')
        if prio == 1:
            lp = a.new('K1P')
            a(f's_cmp_lt_u32 s{sW8}, 4'); a(f's_cbranch_scc1 {lp}'); a('s_setprio 1'); a.label(lp)
    P.stamp()

    a(f'v_and_b32 {t0}, 15, {L}'); a(f'v_lshrrev_b32 {t1}, 4, {L}')
    a(f'v_lshrrev_b32 {t2}, 1, {t0}'); a(f'v_xor_b32 {t2}, {t2}, {t1}')
    a(f'v_lshlrev_b32 {t2}, 4, {t2}'); a(f'v_lshl_add_u32 {t2}, {t0}, 7, {t2}')
    a(f's_lshl_b32 s{sT}, s{sWR}, 13')
    a(f'v_add_u32 {v(AX)}, s{sT}, {t2}'); a(f'v_xor_b32 {v(AX+1)}, 64, {v(AX)}')
    a(f's_lshl_b32 s{sT}, s{sWC}, 11')
    a(f'v_add_u32 {v(AXS)}, s{sT}, {v(AX)}'); a(f'v_add_u32 {v(AXS+1)}, s{sT}, {v(AX+1)}')
    for b in (AX, AXS):
        a(f'v_add_u32 {v(b+2)}, {2*STG}, {v(b)}'); a(f'v_add_u32 {v(b+3)}, {2*STG}, {v(b+1)}')
    a(f'v_bfe_u32 {t2}, {L}, 2, 2')
    a(f'v_lshl_add_u32 {t3}, {t1}, 3, {t2}'); a(f'v_lshlrev_b32 {t3}, 7, {t3}')
    a(f'v_lshrrev_b32 {t2}, 1, {t2}'); a(f'v_and_b32 {t4}, 1, {t1}'); a(f'v_lshl_or_b32 {t2}, {t4}, 1, {t2}'); a(f'v_lshlrev_b32 {t2}, 1, {t2}')
    a(f'v_bfe_u32 {t4}, {L}, 1, 1'); a(f's_lshl_b32 s{sT}, s{sWC}, 1'); a(f'v_or_b32 {t4}, s{sT}, {t4}')
    a(f'v_xor_b32 {t2}, {t2}, {t4}'); a(f'v_lshl_add_u32 {t3}, {t2}, 4, {t3}')
    a(f'v_and_b32 {t4}, 1, {L}'); a(f'v_lshl_add_u32 {t3}, {t4}, 3, {t3}')
    a(f'v_add_u32 {v(AW)}, 16384, {t3}'); a(f'v_add_u32 {v(AW+1)}, {16384 + 2*STG}, {t3}')
    ST, CS, GSL, GTL = 0, 1024, 4096, 8192
    A_STW, A_CSW, A_CSR, A_STR, VA, VG, VS, VC0, VJ3 = range(158, 167)
    a(f'v_and_b32 {t0}, 15, {L}'); a(f'v_lshrrev_b32 {t1}, 4, {L}')
    a(f'v_and_b32 {v(VJ3)}, 3, {t0}')
    a(f's_lshl_b32 s{sT}, s{sW8}, 4'); a(f'v_add_u32 {t2}, s{sT}, {t0}'); a(f'v_lshlrev_b32 {v(A_STW)}, 3, {t2}')
    a(f'v_lshlrev_b32 {t3}, 4, {t1}'); a(f's_mul_i32 s{sT}, s{sW8}, 192'); a(f'v_add_u32 {v(A_CSW)}, s{sT}, {t3}')
    a(f's_mul_i32 s{sT}, s{sWC}, 192'); a(f'v_add_u32 {v(A_CSR)}, s{sT}, {t3}')
    a(f's_lshl_b32 s{sT}, s{sWR}, 9'); a(f'v_lshl_add_u32 {v(A_STR)}, {t0}, 3, s{sT}')
    a(f'v_lshlrev_b32 {v(VA)}, 4, {L}')
    a(f'v_and_b32 {t2}, 1, {t1}'); a(f'v_lshl_add_u32 {t2}, {t2}, 4, {t0}')
    a(f'v_lshrrev_b32 {t3}, 1, {t1}')
    a(f's_lshl_b32 s{sT}, s{sWC}, 1'); a(f'v_or_b32 {t4}, s{sT}, {t3}'); a(f'v_and_b32 {v(VG)}, 7, {t0}'); a(f'v_xor_b32 {t4}, {t4}, {v(VG)}')
    a(f'v_lshlrev_b32 {t4}, 4, {t4}'); a(f'v_lshl_add_u32 {v(VG)}, {t2}, 7, {t4}')
    a(f's_lshl_b32 s{sT}, s{sWR}, 13'); a(f'v_add_u32 {v(VG)}, s{sT}, {v(VG)}')
    a(f'v_lshlrev_b32 {v(VS)}, 3, {t2}'); a(f'v_lshl_add_u32 {v(VS)}, {t3}, 2, {v(VS)}')
    a(f's_lshl_b32 s{sT}, s{sWC}, 10'); a(f's_lshl_b32 s{sT2}, s{sWR}, 9'); a(f's_add_u32 s{sT}, s{sT}, s{sT2}'); a(f'v_add_u32 {v(VS)}, s{sT}, {v(VS)}')
    a(f'v_mov_b32 {v(VC0)}, {f32(GC0)}')
    a(f'v_lshrrev_b32 {t3}, 2, {t0}'); a(f'v_cmp_eq_u32 s[94:95], {t3}, {t1}'); a(f'v_cmp_eq_u32 s[96:97], 0, {t0}')
    for i in range(4): a(f'v_mov_b32 {v(ONES+i)}, 0x3f803f80')
    for i in range(AC, AC+12): a(f'v_mov_b32 {v(i)}, 0')

    def reads(u, stats):
        st, h = u >> 1, u & 1
        r = st % R; hi = 1 if r == 2 else 0; off = (r & 1) * STG if r < 2 else 0; se = u & 1
        out = []
        for s_ in range(4):
            out.append(f'ds_read_b128 {v(fr(se,"x",s_),4)}, {v(AX + 2*hi + h)} offset:{off + s_*2048}')
        if stats: out.append(f'ds_read_b128 {v(fr(se,"xs"),4)}, {v(AXS + 2*hi + h)} offset:{off}')
        for j in range(3):
            for e in range(2):
                out.append(f'ds_read_b64_tr_b16 {v(fr(se,"w",j)+2*e,2)}, {v(AW + hi)} offset:{off + j*8192 + h*4096 + e*512}')
        return out
    def mfmas(u, wr):
        se = u & 1; out = []
        first = (u == 0)
        mm = lambda d, x, y, z=False: f'v_mfma_f32_16x16x32_bf16 {v(d,4)}, {v(x,4)}, {v(y,4)}, {"0" if z else v(d,4)}'
        for j in range(3):
            for s_ in range(4):
                d = ACC + (j*4+s_)*4
                out.append(mm(d, fr(se,'w',j), fr(se,'x',s_), first) if wr < 2 else mm(d, fr(se,'x',s_), fr(se,'w',j), first))
        if wr < 2:
            out.insert(4, mm(AS, ONES, fr(se,'xs'), first))
            out.insert(9, mm(AG, fr(se,'xs'), fr(se,'xs'), first))
            for j in range(3):
                if (j + u + wr) % 2 == 0: out.append(mm(AC + 4*j, fr(se,'w',j), ONES))
        return out

    TR = FR
    def stats_items():
        d, mean, var_ = v(TR), v(TR+2), v(TR+3)
        o = []
        o.append(f'v_cmp_eq_u32 vcc, 1, {v(VJ3)}\nv_cndmask_b32 {d}, {v(AG)}, {v(AG+1)}, vcc')
        o.append(f'v_cmp_eq_u32 vcc, 2, {v(VJ3)}\nv_cndmask_b32 {d}, {d}, {v(AG+2)}, vcc')
        o.append(f'v_cmp_eq_u32 vcc, 3, {v(VJ3)}\nv_cndmask_b32 {d}, {d}, {v(AG+3)}, vcc')
        o.append(f's_mov_b32 s{sT2}, {f32(1/512)}\nv_mul_f32 {mean}, s{sT2}, {v(AS)}\nv_mul_f32 {d}, s{sT2}, {d}')
        o.append(f'v_fma_f32 {var_}, -{mean}, {mean}, {d}\ns_mov_b32 s{sT2}, {f32(1e-5)}')
        o.append(f'v_max_f32 {var_}, 0, {var_}\nv_add_f32 {var_}, s{sT2}, {var_}')
        o.append(f'v_rsq_f32 {var_}, {var_}\nv_sub_f32 {mean}, 0, {mean}')
        o.append(f's_mov_b64 exec, s[96:97]\n' + '\n'.join(f'ds_write_b128 {v(A_CSW)}, {v(AC+4*j,4)} offset:{CS + j*64}' for j in range(3)) + '\ns_mov_b64 exec, -1')
        o.append(f's_mov_b64 exec, s[94:95]\nds_write_b64 {v(A_STW)}, {v(TR+2,2)} offset:{ST}\ns_mov_b64 exec, -1')
        return o
    a(f's_waitcnt vmcnt({6 if touch else 5})'); a('s_barrier')
    P.stamp()
    labs = [a.new('K1V') for _ in range(3)]
    lE, lEF = a.new('K1EPI'), a.new('K1EPF')
    a(f's_cmp_lg_u32 s{sFOLD}, 0'); a(f's_cbranch_scc1 {labs[2]}')
    a(f's_cmp_eq_u32 s{sWR}, 1'); a(f's_cbranch_scc1 {labs[1]}')
    for var in range(3):
        a.label(labs[var])
        stats = var < 2
        for l in reads(0, stats): a(l)
        pend = dma_groups(2)
        issued = 3
        for u in range(2*NST):
            st = u >> 1
            if u & 1 and st + 1 < NST:
                assert not pend
                a(f's_waitcnt vmcnt({5*(issued - (st+2)) + (1 if touch and st == 0 else 0)}) lgkmcnt(0)')
                a('s_barrier')
                if st in (1, 3, 5):
                    n0 = P.n; P.n = 4 + st // 2; P.stamp(); P.n = n0
                if issued < NST:
                    pend = dma_groups(issued); issued += 1
            else:
                a('s_waitcnt lgkmcnt(0)')
            rd = reads(u + 1, stats) if u + 1 < 2*NST else []
            mf = mfmas(u, var)
            quota = len(pend) if (u == 0 or not (u & 1)) else min(3, len(pend))
            last = (u == 2*NST - 1) and var < 2
            if last:
                mf = [m for m in mf if m.split()[1].startswith(('v[48:', 'v[52:', 'v[56:', 'v[60:', 'v[64:'))] + [m for m in mf if not m.split()[1].startswith(('v[48:', 'v[52:', 'v[56:', 'v[60:', 'v[64:'))]
                items = stats_items(); nst_ = len(mf) - 12
                for i, m in enumerate(mf):
                    a(m)
                    if i >= nst_ + 2 and items: a(items.pop(0))
                for it_ in items: a(it_)
                continue
            n = max(len(rd), len(mf))
            slots = [1 + (k * (len(mf) - 1)) // quota for k in range(quota)] if quota else []
            post = None
            for i in range(n):
                if i in slots:
                    pre, post = pend.pop(0)
                    for l in pre: a(l)
                if i < len(mf): a(mf[i])
                if post:
                    for l in post: a(l)
                    post = None
                if i < len(rd): a(rd[i])
        if var == 0: a(f's_branch {lE}')
        if var == 1: a(f's_branch {lE}')
    P.n = 7; P.stamp()
    PK = FR
    a(f'v_and_b32 {t0}, 15, {L}'); a(f'v_lshrrev_b32 {t1}, 4, {L}')
    a(f's_and_b32 s{sT}, s{sWC}, 1'); a(f's_lshl_b32 s{sT}, s{sT}, 4')
    a(f'v_add_u32 {t2}, s{sT}, {t0}'); a(f'v_lshrrev_b32 {t3}, 1, {t1}'); a(f'v_lshl_add_u32 {t2}, {t3}, 5, {t2}'); a(f'v_lshlrev_b32 {t2}, 4, {t2}')
    a(f'v_and_b32 {t4}, 1, {t1}'); a(f'v_lshl_add_u32 {t2}, {t4}, 3, {t2}')
    a(f's_cmp_eq_u32 s{sFOLD}, 2'); a(f's_mov_b32 s{sT3}, {WO1}'); a(f's_cselect_b32 s{sT3}, {WO2}, s{sT3}')
    a(f's_lshl_b32 s{sT}, s{sRT}, 3'); a(f's_lshl_b32 s{sT2}, s{sWR}, 2'); a(f's_add_u32 s{sT}, s{sT}, s{sT2}'); a(f's_lshl_b32 s{sT}, s{sT}, 10')
    a(f's_add_u32 s{sT3}, s{sT3}, s{sT}')
    for j in range(3):
        lS = a.new('K1FS')
        a(f's_cmp_eq_u32 s{sTY[j]}, 3'); a(f's_cbranch_scc1 {lS}')
        a(f's_lshl_b32 s{sT}, s{sOB[j]}, 1'); a(f's_lshr_b32 s{sT2}, s{sWC}, 1'); a(f's_add_u32 s{sT}, s{sT}, s{sT2}'); a(f's_mul_i32 s{sT}, s{sT}, {S32}')
        a(f's_add_u32 s{sT}, s{sT}, s{sT3}')
        for s_ in range(4):
            b = ACC + (j*4+s_)*4; p = PK + 2*s_
            a(f'v_cvt_pk_bf16_f32 {v(p)}, {v(b)}, {v(b+1)}'); a(f'v_cvt_pk_bf16_f32 {v(p+1)}, {v(b+2)}, {v(b+3)}')
            a(f'buffer_store_dwordx2 {v(p,2)}, {t2}, s[{sWs}:{sWs+3}], s{sT} offen offset:{s_*1024}{stf}')
        a.label(lS)
    a('s_branch K1_FIN')

    a.label(lE)
    P.n = 7; P.stamp()
    a('s_waitcnt lgkmcnt(0)'); a('s_barrier')
    P.stamp()
    STA = TR + 12
    for s_ in range(4): a(f'ds_read_b64 {v(STA+2*s_,2)}, {v(A_STR)} offset:{ST + s_*128}')
    for j in range(3):
        a(f'ds_read_b128 {v(AC+4*j,4)}, {v(A_CSR)} offset:{CS + j*64}')
        a(f'ds_read_b128 {v(TR+4*j,4)}, {v(A_CSR)} offset:{CS + 768 + j*64}')
    sRB = sM0
    a(f's_lshl_b32 s{sRB}, s{sRT}, 2'); a(f's_lshl_b32 s{sT}, s{sWR}, 1'); a(f's_add_u32 s{sRB}, s{sRB}, s{sT}')
    a(f's_mov_b32 s{sC1}, {f32(GC1)}')
    a('s_waitcnt lgkmcnt(0)')
    for i in range(12): a(f'v_add_f32 {v(AC+i)}, {v(AC+i)}, {v(TR+i)}')
    a(f'v_and_b32 {t0}, 15, {L}'); a(f'v_lshrrev_b32 {t1}, 4, {L}')
    PK = TR + 24
    GT = TR + 40
    def pack(j, pair, p):
        b = ACC + (j*4 + 2*pair)*4
        a(f'v_cvt_pk_bf16_f32 {v(p)}, {v(b)}, {v(b+1)}'); a(f'v_cvt_pk_bf16_f32 {v(p+1)}, {v(b+2)}, {v(b+3)}')
        a(f'v_cvt_pk_bf16_f32 {v(p+2)}, {v(b+4)}, {v(b+5)}'); a(f'v_cvt_pk_bf16_f32 {v(p+3)}, {v(b+6)}, {v(b+7)}')
        a(f'v_permlane16_swap_b32 {v(p)}, {v(p+2)}'); a(f'v_permlane16_swap_b32 {v(p+1)}, {v(p+3)}')
    for j in range(3):
        lN, lG, lFS = a.new('K1N'), a.new('K1G'), a.new('K1FS')
        ty, bi = sTY[j], sOB[j]
        if j == 0:
            a(f's_cmp_eq_u32 s{ty}, 3'); a(f's_cbranch_scc1 {lN}')
        for s_ in range(4):
            for r in range(4):
                x = ACC + (j*4+s_)*4 + r
                a(f'v_fmac_f32 {v(x)}, {v(STA+2*s_)}, {v(AC+4*j+r)}')
            for r in range(4):
                x = ACC + (j*4+s_)*4 + r
                a(f'v_mul_f32 {v(x)}, {v(x)}, {v(STA+2*s_+1)}')
        if j > 0:
            if j == 1:
                a(f's_cmp_eq_u32 s{ty}, 0'); a(f's_cbranch_scc1 {lFS}')
            for h in range(2):
                gelu_block(a, [ACC + j*16 + 8*h + i for i in range(8)], [GT + i for i in range(8)], VC0, sC1)
            if j == 2:
                P.stamp()
                a(f's_cmp_eq_u32 s{ty}, 2'); a(f's_cbranch_scc1 {lG}')
        a.label(lFS)
        a(f's_lshr_b32 s{sT}, s{bi}, 3'); a(f's_mul_i32 s{sT}, s{sT}, {REG}')
        if QF: a(f's_add_u32 s{sT}, s{sT}, {QF}')
        a(f's_and_b32 s{sT2}, s{bi}, 7'); a(f's_lshl_b32 s{sT2}, s{sT2}, 2'); a(f's_add_u32 s{sT2}, s{sT2}, s{sWC}'); a(f's_lshl_b32 s{sT2}, s{sT2}, 10')
        a(f's_add_u32 s{sT}, s{sT}, s{sT2}'); a(f's_mul_i32 s{sT2}, s{sRB}, {S32}'); a(f's_add_u32 s{sT}, s{sT}, s{sT2}')
        for pair in range(2):
            p = PK + 4*pair
            pack(j, pair, p)
            if pair: a(f's_add_u32 s{sT}, s{sT}, {S32}')
            a(f'buffer_store_dwordx4 {v(p,4)}, {v(VA)}, s[{sWs}:{sWs+3}], s{sT} offen{stf}')
        if j == 2:
            a(f's_branch {lN}')
            a.label(lG)
            a(f's_and_b32 s{sT3}, s{bi}, 7')
            SQ = PK + 8
            for pair in range(2):
                for sl in range(2):
                    b = ACC + (j*4 + 2*pair + sl)*4; S_, Q_ = SQ + sl, SQ + 2 + sl
                    a(f'v_add_f32 {v(S_)}, {v(b)}, {v(b+1)}'); a(f'v_mul_f32 {v(Q_)}, {v(b)}, {v(b)}')
                    a(f'v_add_f32 {v(S_)}, {v(S_)}, {v(b+2)}'); a(f'v_fmac_f32 {v(Q_)}, {v(b+1)}, {v(b+1)}')
                    a(f'v_add_f32 {v(S_)}, {v(S_)}, {v(b+3)}'); a(f'v_fmac_f32 {v(Q_)}, {v(b+2)}, {v(b+2)}')
                    a(f'v_fmac_f32 {v(Q_)}, {v(b+3)}, {v(b+3)}')
                p = PK + 4*pair
                pack(j, pair, p)
                a(f'ds_write_b128 {v(VG)}, {v(p,4)} offset:{GTL + pair*4096}')
                a(f'v_permlane16_swap_b32 {v(SQ)}, {v(SQ+1)}'); a(f'v_permlane16_swap_b32 {v(SQ+2)}, {v(SQ+3)}')
                a(f'v_add_f32 {v(SQ)}, {v(SQ)}, {v(SQ+1)}'); a(f'v_add_f32 {v(SQ+2)}, {v(SQ+2)}, {v(SQ+3)}')
                a(f'v_permlane32_swap_b32 {v(SQ)}, {v(SQ+2)}')
                a(f'v_add_f32 {v(SQ)}, {v(SQ)}, {v(SQ+2)}')
                a(f'ds_write_b32 {v(VS)}, {v(SQ)} offset:{GSL + pair*256}')
            a('s_waitcnt lgkmcnt(0)'); a('s_barrier')
            a(f'v_lshrrev_b32 {t2}, 3, {L}'); a(f'v_and_b32 {t3}, 7, {L}'); a(f'v_xor_b32 {t4}, {t3}, {t2}')
            a(f'v_lshlrev_b32 {t4}, 4, {t4}'); a(f'v_lshl_add_u32 {t4}, {t2}, 7, {t4}'); a(f's_lshl_b32 s{sT}, s{sW8}, 11'); a(f'v_add_u32 {t4}, s{sT}, {t4}')
            a(f'ds_read_b128 {v(PK,4)}, {t4} offset:{GTL}'); a(f'ds_read_b128 {v(PK+4,4)}, {t4} offset:{GTL + 1024}')
            a(f'v_lshlrev_b32 {t2}, 10, {t2}'); a(f'v_lshl_add_u32 {t2}, {t3}, 4, {t2}')
            a(f's_lshl_b32 s{sT}, s{sRT}, 7'); a(f's_lshl_b32 s{sT2}, s{sW8}, 4'); a(f's_add_u32 s{sT}, s{sT}, s{sT2}'); a(f's_lshl_b32 s{sT}, s{sT}, 10')
            a(f's_lshl_b32 s{sT2}, s{sT3}, 7'); a(f's_add_u32 s{sT}, s{sT}, s{sT2}'); a(f's_add_u32 s{sT}, s{sT}, {G}')
            a('s_waitcnt lgkmcnt(0)')
            a(f'buffer_store_dwordx4 {v(PK,4)}, {t2}, s[{sWs}:{sWs+3}], s{sT} offen{stf}')
            a(f's_add_u32 s{sT}, s{sT}, 8192')
            a(f'buffer_store_dwordx4 {v(PK+4,4)}, {t2}, s[{sWs}:{sWs+3}], s{sT} offen{stf}')
            lK = a.new('K1GK')
            a(f's_cmp_ge_u32 s{sW8}, 4'); a(f's_cbranch_scc1 {lK}')
            a(f's_lshl_b32 s{sT}, s{sW8}, 6'); a(f'v_add_u32 {t2}, s{sT}, {L}')
            a(f'v_lshlrev_b32 {t3}, 2, {t2}')
            for w in range(4): a(f'ds_read_b32 {v(SQ+w)}, {t3} offset:{GSL + w*1024}')
            a(f's_lshl_b32 s{sT}, s{sRT}, 10'); a(f's_lshl_b32 s{sT2}, s{sT3}, 14'); a(f's_add_u32 s{sT}, s{sT}, s{sT2}'); a(f's_add_u32 s{sT}, s{sT}, {GS}')
            a('s_waitcnt lgkmcnt(0)')
            a(f'v_add_f32 {v(SQ)}, {v(SQ)}, {v(SQ+1)}'); a(f'v_add_f32 {v(SQ+2)}, {v(SQ+2)}, {v(SQ+3)}'); a(f'v_add_f32 {v(SQ)}, {v(SQ)}, {v(SQ+2)}')
            a(f'buffer_store_dword {v(SQ)}, {t3}, s[{sWs}:{sWs+3}], s{sT} offen{stf}')
            a.label(lK)
            if j == 1: a('s_barrier')
        a.label(lN)
        if j < 2: P.stamp()
    a.label('K1_FIN')
    P.n = 12; P.stamp()
    if prof: a('s_waitcnt vmcnt(0)')
    P.stamp(); P.real()
    P.finish(sW8, sWs, sWs+1)
    a.label('K1_END')
    a('s_endpgm')
    return dict(name=name, body=a.text(), grid=256, block=512, lds=R*STG, vgpr=168, agpr=0, sgpr=102)
```

```python
from common import *

SCALE = LOG2E / (512 ** 0.5)
KT_BYTES = 131072
CV_W = 9216
TRS = 272
NPART = 32

def build(name='k2_kernel', prof=False, prio=0, stf=' sc1'):
    a = Asm()
    P = Prof(a, prof, 1)
    LANE, T0 = 0, 2
    L = v(LANE); t0, t1, t2, t3, t4 = (v(T0 + i) for i in range(5))
    sW, sD = 8, 12
    sW8, sXC, sSL, sT, sT2, sT3 = 16, 17, 18, 19, 20, 21
    sA, sB, sOUT, sKT, sJOB, sM0, sOA, sOB, sML = 22, 23, 24, 25, 26, 27, 28, 29, 30
    a('s_cmp_ge_u32 s2, 256'); a('s_cbranch_scc1 K2_END')
    P.real(); P.stamp()
    a('s_load_dwordx2 s[4:5], s[0:1], 88'); a('s_load_dwordx2 s[6:7], s[0:1], 48')
    a(f'v_lshrrev_b32 {t0}, 6, v0'); a(f'v_and_b32 {L}, 63, v0')
    a(f'v_readfirstlane_b32 s{sW8}, {t0}')
    a(f's_and_b32 s{sXC}, s2, 7'); a(f's_lshr_b32 s{sSL}, s2, 3')
    a(f's_cmp_ge_u32 s{sSL}, 24'); a('s_cbranch_scc1 K2_CONV')
    a(f's_cmp_ge_u32 s{sW8}, 4'); a('s_cbranch_scc1 K2_END')

    KB, QR, ACC = 32, 64, 192
    lV, lJ = a.new('K2V'), a.new('K2J')
    a(f's_cmp_ge_u32 s{sSL}, 16'); a(f's_cbranch_scc1 {lV}')
    a(f's_mov_b32 s{sJOB}, 0')
    a(f's_lshr_b32 s{sT}, s{sXC}, 2'); a(f's_lshl_b32 s{sT}, s{sT}, 5')
    a(f's_and_b32 s{sKT}, s{sXC}, 1'); a(f's_lshl_b32 s{sKT}, s{sKT}, 2'); a(f's_lshr_b32 s{sT2}, s{sSL}, 2'); a(f's_add_u32 s{sKT}, s{sKT}, s{sT2}')
    a(f's_lshr_b32 s{sT2}, s{sXC}, 1'); a(f's_and_b32 s{sT2}, s{sT2}, 1'); a(f's_lshl_b32 s{sT2}, s{sT2}, 2')
    a(f's_and_b32 s{sT3}, s{sSL}, 3'); a(f's_add_u32 s{sT2}, s{sT2}, s{sT3}')
    a(f's_lshl_b32 s{sT2}, s{sT2}, 2'); a(f's_add_u32 s{sT2}, s{sT2}, s{sT}'); a(f's_add_u32 s{sT2}, s{sT2}, s{sW8}')
    a(f's_lshl_b32 s{sA}, s{sKT}, 2'); a(f's_add_u32 s{sA}, s{sA}, s{sT}'); a(f's_mul_i32 s{sA}, s{sA}, {S32}'); a(f's_add_u32 s{sA}, s{sA}, {KF}')
    a(f's_mul_i32 s{sB}, s{sT2}, {S32}'); a(f's_add_u32 s{sB}, s{sB}, {QF}')
    a(f's_mul_i32 s{sOUT}, s{sT2}, {S64}'); a(f's_lshl_b32 s{sT3}, s{sKT}, 13'); a(f's_add_u32 s{sOUT}, s{sOUT}, s{sT3}'); a(f's_add_u32 s{sOUT}, s{sOUT}, {PF}')
    a(f's_lshl_b32 s{sML}, s{sT2}, 3'); a(f's_add_u32 s{sML}, s{sML}, s{sKT}'); a(f's_lshl_b32 s{sML}, s{sML}, 8'); a(f's_add_u32 s{sML}, s{sML}, {ML}')
    a(f's_branch {lJ}')
    a.label(lV)
    a(f's_mov_b32 s{sJOB}, 1')
    a(f's_sub_u32 s{sT3}, s{sSL}, 16')
    a(f's_lshr_b32 s{sT}, s{sT3}, 2'); a(f's_lshl_b32 s{sT2}, s{sXC}, 1'); a(f's_add_u32 s{sT}, s{sT}, s{sT2}')
    a(f's_and_b32 s{sKT}, s{sT}, 7')
    a(f's_mul_i32 s{sA}, s{sT}, {4*S32}'); a(f's_add_u32 s{sA}, s{sA}, {VF}')
    a(f's_and_b32 s{sT3}, s{sT3}, 3'); a(f's_lshl_b32 s{sT3}, s{sT3}, 2'); a(f's_add_u32 s{sT3}, s{sT3}, s{sW8}')
    a(f's_mul_i32 s{sB}, s{sT3}, {S32}'); a(f's_add_u32 s{sB}, s{sB}, {WO1}')
    a(f's_lshr_b32 s{sT}, s{sT}, 3'); a(f's_lshl_b32 s{sT}, s{sT}, 4'); a(f's_add_u32 s{sT}, s{sT}, s{sT3}')
    a(f's_mul_i32 s{sOUT}, s{sT}, {S64}'); a(f's_lshl_b32 s{sT3}, s{sKT}, 13'); a(f's_add_u32 s{sOUT}, s{sOUT}, s{sT3}'); a(f's_add_u32 s{sOUT}, s{sOUT}, {VT}')
    a.label(lJ)
    VL16, RA, RB = 8, 9, 10
    a(f'v_lshlrev_b32 {v(VL16)}, 4, {L}')
    a(f'v_mov_b32 {v(RA)}, {v(VL16)}'); a(f'v_add_u32 {v(RB)}, 65536, {v(VL16)}')
    a(f's_lshl_b32 s{sM0}, s{sW8}, 15')
    a(f's_mul_i32 s{sOA}, s{sW8}, {S32}'); a(f's_add_u32 s{sOA}, s{sOA}, s{sA}'); a(f's_mov_b32 s{sOB}, s{sB}')
    a('s_waitcnt lgkmcnt(0)')
    srd(a, sW, 4, 5, WS_BYTES)
    def kload(k):
        if k % 4 == 0: a(f's_add_u32 m0, s{sM0}, {k*1024}')
        a(f'buffer_load_dwordx4 {v(VL16)}, s[{sW}:{sW+3}], s{sOA} offen offset:{(k%4)*1024} lds')
        a(f'buffer_load_dwordx4 {v(QR + 4*k, 4)}, {v(VL16)}, s[{sW}:{sW+3}], s{sOB} offen offset:{(k%4)*1024}')
        if k % 4 == 3:
            a(f's_add_u32 s{sOA}, s{sOA}, 4096'); a(f's_add_u32 s{sOB}, s{sOB}, 4096')
    CH, LA = 2, 6
    for k in range(LA): kload(k)
    P.stamp()
    def kreads(ks):
        se = ks & 1
        for kb in range(4):
            base = RA if kb < 2 else RB
            a(f'ds_read_b128 {v(KB + se*16 + kb*4, 4)}, {v(base)} offset:{(kb & 1)*32768 + ks*1024}')
    issued = LA
    a(f's_waitcnt vmcnt({2*(issued - CH)})'); a('s_barrier')
    P.stamp()
    kreads(0)
    for ks in range(32):
        if ks + 1 < 32:
            if (ks + 1) % CH == 0:
                a(f's_waitcnt vmcnt({2*(issued - (ks + 1 + CH))})'); a('s_barrier')
                if ks + 1 in (8, 16, 24): P.stamp()
            kreads(ks + 1)
            a('s_waitcnt lgkmcnt(4)')
        else:
            a('s_waitcnt lgkmcnt(0)')
        se = ks & 1
        for kb in range(4):
            d = ACC + 16*kb
            a(f'v_mfma_f32_32x32x16_bf16 {v(d,16)}, {v(KB + se*16 + kb*4, 4)}, {v(QR + 4*ks, 4)}, {"0" if ks == 0 else v(d,16)}')
            if kb == 0 and issued < 32:
                kload(issued); issued += 1
    P.stamp()
    lSE, lVE = a.new('K2SE'), a.new('K2VE')
    PK = 32
    def store_frags():
        for kb in range(4):
            for h in range(2):
                p = PK + ((kb*2+h) % 4) * 4
                b = ACC + 16*kb + 8*h
                for i in range(4):
                    a(f'v_cvt_pk_bf16_f32 {v(p+i)}, {v(b+2*i)}, {v(b+2*i+1)}')
                f = kb*2 + h
                a(f's_add_u32 s{sT}, s{sOUT}, {(f//4)*4096}') if f % 4 == 0 else None
                a(f'buffer_store_dwordx4 {v(p,4)}, {v(VL16)}, s[{sW}:{sW+3}], s{sT} offen offset:{(f%4)*1024}{stf}')
    a(f's_cmp_eq_u32 s{sJOB}, 0'); a(f's_cbranch_scc1 {lSE}')
    store_frags()
    P.stamp()
    if prof: a('s_waitcnt vmcnt(0)')
    P.stamp(); P.real(); P.finish(sW8, 4, 5); P.n = 8
    a('s_endpgm')
    a.label(lSE)
    lNM = a.new('K2NM')
    a('s_nop 7'); a('s_nop 7')
    a(f's_cmp_lg_u32 s{sKT}, 7'); a(f's_cbranch_scc1 {lNM}')
    for j in range(4, 16): a(f'v_mov_b32 {v(ACC+48+j)}, 0xff800000')
    a.label(lNM)
    M, M2, SUM = 12, 13, 14
    a(f'v_max3_f32 {v(M)}, {v(ACC)}, {v(ACC+1)}, {v(ACC+2)}')
    a(f'v_max3_f32 {v(M2)}, {v(ACC+3)}, {v(ACC+4)}, {v(ACC+5)}')
    i = 6
    while i + 3 < 64:
        a(f'v_max3_f32 {v(M)}, {v(M)}, {v(ACC+i)}, {v(ACC+i+1)}')
        a(f'v_max3_f32 {v(M2)}, {v(M2)}, {v(ACC+i+2)}, {v(ACC+i+3)}')
        i += 4
    a(f'v_max3_f32 {v(M)}, {v(M)}, {v(ACC+62)}, {v(ACC+63)}')
    a(f'v_max_f32 {v(M)}, {v(M)}, {v(M2)}')
    a(f'v_mov_b32 {v(M2)}, {v(M)}')
    a(f'v_permlane32_swap_b32 {v(M)}, {v(M2)}')
    a(f'v_max_f32 {v(M)}, {v(M)}, {v(M2)}')
    a(f's_mov_b32 s{sT2}, {f32(SCALE)}')
    a(f'v_mul_f32 {v(M)}, s{sT2}, {v(M)}')
    CC, NM, S2 = 16, 18, 20
    a(f'v_mov_b32 {v(CC)}, s{sT2}'); a(f'v_mov_b32 {v(CC+1)}, s{sT2}')
    a(f'v_sub_f32 {v(NM)}, 0, {v(M)}'); a(f'v_sub_f32 {v(NM+1)}, 0, {v(M)}')
    for i in range(4): a(f'v_mov_b32 {v(S2+i)}, 0')
    for kb in range(4):
        for h in range(2):
            b = ACC + 16*kb + 8*h
            for i in range(4): a(f'v_pk_fma_f32 {v(b+2*i,2)}, {v(b+2*i,2)}, {v(CC,2)}, {v(NM,2)}')
            for i in range(8): a(f'v_exp_f32 {v(b+i)}, {v(b+i)}')
            p = PK + ((kb*2+h) % 4) * 4
            for i in range(4):
                a(f'v_cvt_pk_bf16_f32 {v(p+i)}, {v(b+2*i)}, {v(b+2*i+1)}')
            f = kb*2 + h
            if f % 4 == 0: a(f's_add_u32 s{sT}, s{sOUT}, {(f//4)*4096}')
            a(f'buffer_store_dwordx4 {v(p,4)}, {v(VL16)}, s[{sW}:{sW+3}], s{sT} offen offset:{(f%4)*1024}{stf}')
            for i in range(4): a(f'v_pk_add_f32 {v(S2+2*(i&1),2)}, {v(S2+2*(i&1),2)}, {v(b+2*i,2)}')
    a(f'v_add_f32 {v(SUM)}, {v(S2)}, {v(S2+1)}'); a(f'v_add_f32 {v(M2)}, {v(S2+2)}, {v(S2+3)}')
    a(f'v_add_f32 {v(SUM)}, {v(SUM)}, {v(M2)}')
    a(f'v_mov_b32 {v(M2)}, {v(SUM)}')
    a(f'v_permlane32_swap_b32 {v(SUM)}, {v(M2)}')
    a(f'v_add_f32 {v(SUM)}, {v(SUM)}, {v(M2)}')
    a(f'v_cmp_gt_u32 vcc, 32, {L}')
    a(f'v_cndmask_b32 {v(SUM)}, {v(SUM)}, {v(M)}, vcc')
    a(f'v_lshlrev_b32 {t0}, 2, {L}')
    a(f'buffer_store_dword {v(SUM)}, {t0}, s[{sW}:{sW+3}], s{sML} offen{stf}')
    P.stamp()
    if prof: a('s_waitcnt vmcnt(0)')
    P.stamp(); P.real(); P.finish(sW8, 4, 5); P.n = 2
    a('s_endpgm')

    a.label('K2_CONV')
    sCG, sRT, sR0, sLB, sBB, sUO, sPR = 24, 25, 26, 27, 28, 29, 22
    GT_, WT_, ST_, PR_ = 0, 40960, 49152, 51200
    PRW = 9760
    NT_, TW_ = 0, 5664
    BF, AF, DD, UR = 16, 92, 112, 144
    SP, GQ, SR = 160, 192, 200
    VG_, VST, VNT, VB, VA_, VU = 8, 9, 10, 11, 12, 13
    a(f's_sub_u32 s{sT}, s{sSL}, 24')
    a(f's_lshl_b32 s{sRT}, s{sXC}, 1'); a(f's_and_b32 s{sT2}, s{sT}, 1'); a(f's_add_u32 s{sRT}, s{sRT}, s{sT2}')
    a(f's_lshr_b32 s{sCG}, s{sT}, 1')
    a(f's_lshl_b32 s{sR0}, s{sRT}, 7'); a(f's_sub_u32 s{sR0}, s{sR0}, 16')
    a(f'v_lshrrev_b32 {t0}, 4, {L}'); a(f'v_and_b32 {t1}, 15, {L}')
    a(f'v_lshlrev_b32 {t2}, 2, {t0}'); a(f'v_xor_b32 {t1}, {t1}, {t2}'); a(f'v_lshlrev_b32 {t1}, 4, {t1}')
    a(f's_lshl_b32 s{sT}, s{sCG}, 8'); a(f'v_add_u32 {t1}, s{sT}, {t1}')
    a(f's_mul_i32 s{sT}, s{sW8}, 20'); a(f's_add_u32 s{sT3}, s{sT}, s{sR0}'); a(f'v_add_u32 {t2}, s{sT3}, {t0}')
    a(f's_mul_i32 s{sT2}, s{sW8}, 5120')
    a('s_waitcnt lgkmcnt(0)')
    srd(a, sW, 4, 5, WS_BYTES)
    a(f'v_min_u32 {t3}, 19, {L}'); a(f'v_add_u32 {v(SR)}, s{sT}, {t3}')
    a(f'v_add_u32 {v(SR+2)}, s{sR0}, {v(SR)}')
    a(f'v_max_i32 {t3}, 0, {v(SR+2)}'); a(f'v_min_i32 {t3}, 2047, {t3}'); a(f'v_lshlrev_b32 {t3}, 3, {t3}')
    for p_ in range(8):
        a(f's_mov_b32 s{sLB}, {GS + p_*16384}')
        a(f'buffer_load_dwordx2 {v(SP+2*p_,2)}, {t3}, s[{sW}:{sW+3}], s{sLB} offen')
    a(f's_mov_b32 s{sLB}, {G}')
    for i in range(5):
        a(f'v_add_u32 {t3}, {4*i}, {t2}'); a(f'v_max_i32 {t3}, 0, {t3}'); a(f'v_min_i32 {t3}, 2047, {t3}')
        a(f'v_lshl_add_u32 {t3}, {t3}, 10, {t1}')
        a(f's_add_u32 m0, s{sT2}, {GT_ + i*1024}')
        a(f'buffer_load_dwordx4 {t3}, s[{sW}:{sW+3}], s{sLB} offen lds')
    srd(a, sD, 6, 7, 31 * 1024)
    a(f's_lshl_b32 s{sT2}, s{sW8}, 2'); a(f'v_add_u32 {t3}, s{sT2}, {t0}'); a(f'v_lshl_add_u32 {t3}, {t3}, 10, {t1}')
    a(f's_lshl_b32 s{sT2}, s{sW8}, 10'); a(f's_add_u32 m0, s{sT2}, {WT_}')
    a(f'buffer_load_dwordx4 {t3}, s[{sD}:{sD+3}], 0 offen lds')
    P.stamp()
    a(f's_lshr_b32 s{sBB}, s{sRT}, 3'); a(f's_lshl_b32 s{sBB}, s{sBB}, 10')
    a(f's_mul_i32 s{sPR}, s{sW8}, {PRW}'); a(f's_add_u32 s{sPR}, s{sPR}, {PR_}')
    for i in range(4): a(f'v_mov_b32 {v(GQ+i)}, 0')
    a(f'v_lshlrev_b32 {t0}, 4, {L}'); a(f'v_add_u32 {t0}, s{sPR}, {t0}')
    for i in range(4): a(f'ds_write_b128 {t0}, {v(GQ,4)} offset:{TW_ + i*1024}')
    a(f'v_bfe_u32 {t0}, {L}, 2, 2'); a(f'v_lshrrev_b32 {t2}, 4, {L}'); a(f'v_bfe_u32 {t3}, {L}, 1, 1')
    a(f's_lshl_b32 s{sT}, s{sW8}, 1'); a(f'v_or_b32 {t3}, s{sT}, {t3}'); a(f'v_lshlrev_b32 {t4}, 2, {t0}'); a(f'v_xor_b32 {t3}, {t3}, {t4}')
    a(f'v_lshlrev_b32 {t3}, 4, {t3}'); a(f'v_lshl_add_u32 {t3}, {t0}, 8, {t3}'); a(f'v_lshl_add_u32 {t3}, {t2}, 10, {t3}')
    a(f'v_and_b32 {t4}, 1, {L}'); a(f'v_lshl_add_u32 {v(VG_)}, {t4}, 3, {t3}')
    a(f'v_lshlrev_b32 {v(VST)}, 5, {t2}')
    a(f'v_and_b32 {t0}, 15, {L}'); a(f'v_mul_u32_u24 {t3}, 352, {t0}'); a(f'v_lshl_add_u32 {t3}, {t2}, 3, {t3}')
    a(f'v_lshrrev_b32 {t4}, 3, {t0}'); a(f'v_lshl_add_u32 {t3}, {t4}, 3, {t3}'); a(f'v_add_u32 {v(VNT)}, s{sPR}, {t3}')
    a(f'v_mul_u32_u24 {t3}, 200, {t0}'); a(f'v_lshl_add_u32 {t3}, {t2}, 3, {t3}'); a(f'v_add_u32 {t1}, s{sPR}, {t3}')
    a(f'v_lshrrev_b32 {t0}, 2, {L}'); a(f'v_and_b32 {t2}, 3, {L}')
    a(f'v_mul_u32_u24 {t3}, 352, {t0}'); a(f'v_lshl_add_u32 {t3}, {t2}, 3, {t3}')
    a(f'v_lshrrev_b32 {t4}, 3, {t0}'); a(f'v_lshl_add_u32 {t3}, {t4}, 3, {t3}'); a(f'v_add_u32 {v(VB)}, s{sPR}, {t3}')
    a(f'v_mul_u32_u24 {t3}, 200, {t0}'); a(f'v_lshlrev_b32 {t4}, 1, {t2}'); a(f'v_sub_u32 {t3}, {t3}, {t4}')
    a(f'v_and_b32 {t4}, 1, {t2}'); a(f'v_mul_u32_u24 {t4}, 94, {t4}'); a(f'v_sub_u32 {t3}, {t3}, {t4}'); a(f'v_add_u32 {t3}, 108, {t3}')
    a(f'v_add_u32 {v(VA_)}, s{sPR}, {t3}')
    a(f'v_lshlrev_b32 {v(VU)}, 4, {L}')
    a(f's_lshl_b32 s{sT}, s{sRT}, 2'); a(f's_mul_i32 s{sT}, s{sT}, {S32}')
    a(f's_lshl_b32 s{sT2}, s{sCG}, 3'); a(f's_add_u32 s{sT2}, s{sT2}, s{sW8}'); a(f's_lshl_b32 s{sT2}, s{sT2}, 10'); a(f's_add_u32 s{sUO}, s{sT}, s{sT2}')
    a('s_waitcnt vmcnt(6)')
    P.stamp()
    a(f's_mov_b32 s{sT}, {f32(1/512)}'); a(f's_mov_b32 s{sT2}, {f32(1e-5)}')
    b = SP
    for step in (8, 4, 2):
        for i in range(step): a(f'v_add_f32 {v(b+i)}, {v(b+i)}, {v(b+step+i)}')
    a(f'v_mul_f32 {v(b)}, s{sT}, {v(b)}'); a(f'v_mul_f32 {v(b+1)}, s{sT}, {v(b+1)}')
    a(f'v_fma_f32 {v(b+1)}, -{v(b)}, {v(b)}, {v(b+1)}')
    a(f'v_max_f32 {v(b+1)}, 0, {v(b+1)}'); a(f'v_add_f32 {v(b+1)}, s{sT2}, {v(b+1)}')
    a(f'v_rsq_f32 {v(b+2)}, {v(b+1)}')
    a(f'v_mul_f32 {v(b+3)}, {v(b)}, {v(b+2)}'); a(f'v_sub_f32 {v(b+3)}, 0, {v(b+3)}')
    a(f'v_subrev_u32 {t0}, s{sBB}, {v(SR+2)}')
    a(f'v_cmp_gt_u32 vcc, 1000, {t0}')
    a(f'v_cndmask_b32 {v(b+2)}, 0, {v(b+2)}, vcc'); a(f'v_cndmask_b32 {v(b+3)}, 0, {v(b+3)}, vcc')
    a(f'v_lshlrev_b32 {t0}, 3, {v(SR)}')
    a(f'ds_write_b64 {t0}, {v(b+2,2)} offset:{ST_}')
    a('s_waitcnt vmcnt(0) lgkmcnt(0)'); a('s_barrier')
    P.stamp()
    a(f's_add_u32 s{sT}, s{sUO}, {UF}')
    for f in range(4):
        a(f'buffer_load_dwordx4 {v(UR+4*f,4)}, {v(VU)}, s[{sW}:{sW+3}], s{sT} offen')
        if f < 3: a(f's_add_u32 s{sT}, s{sT}, {S32}')
    TQ = 204
    GR = SP
    AB = BF
    for aa in range(2): a(f'ds_read_b64_tr_b16 {v(TQ+2*aa,2)}, {v(VG_)} offset:{WT_ + aa*4096}')
    for aa in range(10):
        a(f'ds_read_b64_tr_b16 {v(GR+2*aa,2)}, {v(VG_)} offset:{GT_ + aa*4096}')
        a(f'ds_read_b128 {v(AB + aa*8, 4)}, {v(VST)} offset:{ST_ + aa*128}')
        a(f'ds_read_b128 {v(AB + aa*8 + 4, 4)}, {v(VST)} offset:{ST_ + aa*128 + 16}')
    a('s_waitcnt lgkmcnt(15)')
    for aa in range(2):
        o = TW_ + aa*32
        a(f'ds_write_b64 {t1}, {v(TQ+2*aa,2)} offset:{o + 16}')
        a(f'ds_write_b16 {t1}, {v(TQ+2*aa)} offset:{o + 96 + 14}'); a(f'ds_write_b16_d16_hi {t1}, {v(TQ+2*aa)} offset:{o + 96 + 16}')
        a(f'ds_write_b16 {t1}, {v(TQ+2*aa+1)} offset:{o + 96 + 18}'); a(f'ds_write_b16_d16_hi {t1}, {v(TQ+2*aa+1)} offset:{o + 96 + 20}')
    NQ = 184
    a('s_waitcnt lgkmcnt(10)')
    for aa in range(10):
        q = AB + aa*8; g0 = GR + 2*aa; nq = NQ + 4*(aa & 1)
        a(f'v_lshlrev_b32 {v(nq)}, 16, {v(g0)}'); a(f'v_and_b32 {v(nq+1)}, 0xffff0000, {v(g0)}')
        a(f'v_lshlrev_b32 {v(nq+2)}, 16, {v(g0+1)}'); a(f'v_and_b32 {v(nq+3)}, 0xffff0000, {v(g0+1)}')
        for e in range(4): a(f'v_fma_f32 {v(nq+e)}, {v(nq+e)}, {v(q+2*e)}, {v(q+2*e+1)}')
        a(f'v_cvt_pk_bf16_f32 {v(g0)}, {v(nq)}, {v(nq+1)}'); a(f'v_cvt_pk_bf16_f32 {v(g0+1)}, {v(nq+2)}, {v(nq+3)}')
        a(f'ds_write_b64 {v(VNT)}, {v(g0,2)} offset:{NT_ + aa*32}')
    a('s_waitcnt lgkmcnt(0)')
    P.stamp()
    for kk in range(9): a(f'ds_read2_b32 {v(AF+2*kk,2)}, {v(VA_)} offset0:{(TW_//4 + 2*kk) if TW_//4 + 2*kk < 255 else 0} offset1:0') if False else None
    a(f'v_add_u32 {v(VA_)}, {TW_}, {v(VA_)}')
    for kk in range(9): a(f'ds_read2_b32 {v(AF+2*kk,2)}, {v(VA_)} offset0:{2*kk} offset1:{2*kk+1}')
    for s_ in range(37): a(f'ds_read_b64 {v(BF+2*s_,2)}, {v(VB)} offset:{NT_ + s_*8}')
    a('s_waitcnt lgkmcnt(0)')
    for kk in range(9):
        for q in range(8):
            d = DD + 4*q
            a(f'v_mfma_f32_4x4x4_16b_bf16 {v(d,4)}, {v(AF+2*kk,2)}, {v(BF+2*(4*q+kk),2)}, {"0" if kk == 0 else v(d,4)}')
    P.stamp()
    a(f'v_lshrrev_b32 {t0}, 2, {L}'); a(f'v_and_b32 {t2}, 3, {L}'); a(f'v_mul_u32_u24 {t3}, 288, {t0}'); a(f'v_lshl_add_u32 {t3}, {t2}, 3, {t3}')
    a(f'v_add_u32 {t3}, s{sPR}, {t3}')
    CP = BF
    for q in range(8):
        a(f'v_cvt_pk_bf16_f32 {v(CP+2*q)}, {v(DD+4*q)}, {v(DD+4*q+1)}'); a(f'v_cvt_pk_bf16_f32 {v(CP+2*q+1)}, {v(DD+4*q+2)}, {v(DD+4*q+3)}')
        a(f'ds_write_b64 {t3}, {v(CP+2*q,2)} offset:{q*32}')
    a(f'v_lshrrev_b32 {t0}, 5, {L}'); a(f'v_bfe_u32 {t1}, {L}, 2, 2'); a(f'v_lshl_add_u32 {t0}, {t0}, 3, {t1}'); a(f'v_mul_u32_u24 {t0}, 288, {t0}')
    a(f'v_bfe_u32 {t1}, {L}, 4, 1'); a(f'v_lshl_add_u32 {t0}, {t1}, 5, {t0}'); a(f'v_and_b32 {t1}, 3, {L}'); a(f'v_lshl_add_u32 {t0}, {t1}, 3, {t0}')
    a(f'v_add_u32 {t2}, s{sPR}, {t0}')
    a('s_waitcnt lgkmcnt(0)')
    CR = BF + 16
    for f in range(4):
        for e in range(2):
            a(f'ds_read_b64_tr_b16 {v(CR+4*f+2*e,2)}, {t2} offset:{e*4*288 + f*64}')
    a('s_waitcnt vmcnt(0)')
    a(f's_add_u32 s{sT}, s{sUO}, {UC}')
    TM = DD
    for f in range(4):
        a(f's_waitcnt lgkmcnt({2*(3-f)})')
        for d in range(4):
            u = UR + 4*f + d; c = CR + 4*f + d; m = TM + 4*d
            a(f'v_lshlrev_b32 {v(m)}, 16, {v(u)}'); a(f'v_and_b32 {v(m+1)}, 0xffff0000, {v(u)}')
            a(f'v_lshlrev_b32 {v(m+2)}, 16, {v(c)}'); a(f'v_and_b32 {v(m+3)}, 0xffff0000, {v(c)}')
        for d in range(4):
            m = TM + 4*d
            a(f'v_mul_f32 {v(m)}, {v(m)}, {v(m+2)}'); a(f'v_mul_f32 {v(m+1)}, {v(m+1)}, {v(m+3)}')
        for d in range(4):
            u = UR + 4*f + d; m = TM + 4*d
            a(f'v_cvt_pk_bf16_f32 {v(u)}, {v(m)}, {v(m+1)}')
        a(f'buffer_store_dwordx4 {v(UR+4*f,4)}, {v(VU)}, s[{sW}:{sW+3}], s{sT} offen{stf}')
        if f < 3: a(f's_add_u32 s{sT}, s{sT}, {S32}')
    P.n = 8; P.stamp()
    if prof: a('s_waitcnt vmcnt(0)')
    P.stamp(); P.real(); P.finish(sW8, 4, 5)
    a.label('K2_END')
    a('s_endpgm')
    return dict(name=name, body=a.text(), grid=256, block=512, lds=max(KT_BYTES, 51200 + 8*9760), vgpr=256, agpr=0, sgpr=102 if prof else 64)
```

```python
from common import *

def build(name='k3_kernel', prof=False, LA=16, XSTEP=82, RING=24, CH=4):
    a = Asm()
    P = Prof(a, prof, 2)
    vm = VM(a)
    LANE, T0 = 0, 2
    L = v(LANE); t0, t1, t2, t3, t4 = (v(T0 + i) for i in range(5))
    sW, sX, sO = 8, 12, 16
    sW8, sXC, sSL, sT, sT2, sT3 = 20, 21, 22, 23, 24, 25
    sB, sRT, sJT, sML, sS1, sS2, sM0 = 26, 27, 28, 29, 30, 31, 32
    assert RING >= LA + CH and RING % CH == 0
    def ldsoff(k): return ((k // CH) % (RING // CH)) * CH * 4096 + (k % CH) * 1024
    XT = RING * 4096
    TT, XA = 64, 80
    FR = 32
    VL16, VML, RA, RB = 8, 9, 10, 11
    VXO = 12
    RA2, RB2, RA3, RB3 = 14, 15, 16, 17
    MLR = 112
    XR = 48
    NSTEP = 96
    a('s_cmp_ge_u32 s2, 256'); a('s_cbranch_scc1 K3_END')
    P.real(); P.stamp()
    a('s_load_dwordx2 s[4:5], s[0:1], 88'); a('s_load_dwordx2 s[6:7], s[0:1], 0'); a('s_load_dwordx2 s[18:19], s[0:1], 72')
    a(f'v_lshrrev_b32 {t0}, 6, v0'); a(f'v_and_b32 {L}, 63, v0')
    a(f'v_readfirstlane_b32 s{sW8}, {t0}')
    a(f's_and_b32 s{sXC}, s2, 7'); a(f's_lshr_b32 s{sSL}, s2, 3')
    a(f's_lshr_b32 s{sB}, s{sXC}, 2')
    a(f's_and_b32 s{sRT}, s{sXC}, 3'); a(f's_lshl_b32 s{sRT}, s{sRT}, 2'); a(f's_and_b32 s{sT}, s{sSL}, 3'); a(f's_add_u32 s{sRT}, s{sRT}, s{sT}')
    a(f's_lshr_b32 s{sJT}, s{sSL}, 2')
    a(f'v_lshlrev_b32 {v(VL16)}, 4, {L}')
    a(f's_lshl_b32 s{sT}, s{sB}, 5'); a(f's_lshl_b32 s{sT2}, s{sRT}, 1'); a(f's_add_u32 s{sT}, s{sT}, s{sT2}')
    a(f's_and_b32 s{sT3}, s{sW8}, 1')
    a(f's_add_u32 s{sT2}, s{sT}, s{sT3}')
    a(f's_lshl_b32 s{sML}, s{sT2}, 11'); a(f's_add_u32 s{sML}, s{sML}, {ML}')
    lR, lS = a.new('K3A'), a.new('K3B')
    a(f's_cmp_ge_u32 s{sW8}, 2'); a(f's_cbranch_scc1 {lR}')
    a(f's_lshl_b32 s{sT}, s{sJT}, 1'); a(f's_add_u32 s{sT}, s{sT}, s{sT3}')
    a(f's_mul_i32 s{sS1}, s{sT}, {S32}'); a(f's_add_u32 s{sS1}, s{sS1}, {WO2}')
    a(f's_lshl_b32 s{sT2}, s{sB}, 4'); a(f's_add_u32 s{sT}, s{sT}, s{sT2}'); a(f's_mul_i32 s{sS2}, s{sT}, {S64}'); a(f's_add_u32 s{sS2}, s{sS2}, {VT}')
    a(f's_branch {lS}')
    a.label(lR)
    a(f's_mul_i32 s{sS1}, s{sT2}, {S32}'); a(f's_add_u32 s{sS1}, s{sS1}, {UC}')
    a(f's_mul_i32 s{sS2}, s{sT2}, {S64}'); a(f's_add_u32 s{sS2}, s{sS2}, {PF}')
    a.label(lS)
    a(f's_mul_i32 s{sM0}, s{sW8}, {CH*1024}')
    a('s_waitcnt lgkmcnt(0)')
    srd(a, sW, 4, 5, WS_BYTES)
    def dma(k):
        src = sS1 if k < 32 else sS2
        if k % 4 == 0: a(f's_add_u32 m0, s{sM0}, {ldsoff(k)}')
        vm.issue(f'buffer_load_dwordx4 {v(VL16)}, s[{sW}:{sW+3}], s{src} offen offset:{(k%4)*1024} lds', ('f', k))
        if k % 4 == 3: a(f's_add_u32 s{src}, s{src}, 4096')
    for k in range(LA): dma(k)
    P.stamp()
    a(f's_lshr_b32 s{sT}, s{sW8}, 1'); a(f's_mul_i32 s{sT}, s{sT}, {CH*1024}'); a(f'v_add_u32 {v(RA)}, s{sT}, {v(VL16)}')
    a(f's_and_b32 s{sT}, s{sW8}, 1'); a(f's_add_u32 s{sT}, s{sT}, 2'); a(f's_mul_i32 s{sT}, s{sT}, {CH*1024}'); a(f'v_add_u32 {v(RB)}, s{sT}, {v(VL16)}')
    a(f'v_add_u32 {v(RA2)}, 49152, {v(RA)}'); a(f'v_add_u32 {v(RB2)}, 49152, {v(RB)}'); a(f'v_add_u32 {v(RA3)}, 98304, {v(RA)}'); a(f'v_add_u32 {v(RB3)}, 98304, {v(RB)}')
    srd(a, sX, 6, 7, OUT_BYTES)
    a(f's_mov_b32 s{sO}, s18'); a(f's_mov_b32 s{sO+1}, s19'); a(f's_mov_b32 s{sO+2}, {OUT_BYTES}'); a(f's_mov_b32 s{sO+3}, {SRD3}')
    a(f'v_and_b32 {t0}, 31, {L}'); a(f'v_lshlrev_b32 {v(VML)}, 2, {t0}')
    a(f'v_lshrrev_b32 {t0}, 3, {L}'); a(f'v_and_b32 {t1}, 7, {L}'); a(f'v_xor_b32 {t2}, {t1}, {t0}')
    a(f's_lshl_b32 s{sT}, s{sW8}, 4'); a(f's_lshl_b32 s{sT2}, s{sRT}, 6'); a(f's_add_u32 s{sT}, s{sT}, s{sT2}')
    a(f'v_add_u32 {t0}, s{sT}, {t0}')
    a(f's_mul_i32 s{sT}, s{sB}, 1000'); a(f's_lshl_b32 s{sT2}, s{sJT}, 7')
    for k in range(2):
        a(f'v_add_u32 {t3}, {8*k}, {t0}'); a(f'v_add_u32 {t4}, s{sT}, {t3}'); a(f'v_lshlrev_b32 {t4}, 10, {t4}')
        a(f'v_lshl_add_u32 {t4}, {t2}, 4, {t4}'); a(f'v_add_u32 {t4}, s{sT2}, {t4}')
        a(f'v_cmp_gt_u32 vcc, 1000, {t3}'); a(f'v_mov_b32 {t3}, 0x7ffffff0')
        a(f'v_cndmask_b32 {v(VXO+k)}, {t3}, {t4}, vcc')

    def factors():
        o = []
        m = MLR; l = m + 8
        o += [f'v_max3_f32 {t0}, {v(m)}, {v(m+1)}, {v(m+2)}', f'v_max3_f32 {t1}, {v(m+3)}, {v(m+4)}, {v(m+5)}',
              f'v_max3_f32 {t0}, {t0}, {v(m+6)}, {v(m+7)}', f'v_max_f32 {t0}, {t0}, {t1}']
        o += [f'v_sub_f32 {v(m+t)}, {v(m+t)}, {t0}' for t in range(8)]
        o += [f'v_exp_f32 {v(m+t)}, {v(m+t)}' for t in range(8)]
        o += [f'v_mul_f32 {t1}, {v(m)}, {v(l)}', f'v_mul_f32 {t0}, {v(m+1)}, {v(l+1)}']
        for t in range(2, 8, 2):
            o += [f'v_fmac_f32 {t1}, {v(m+t)}, {v(l+t)}', f'v_fmac_f32 {t0}, {v(m+t+1)}, {v(l+t+1)}']
        o += [f'v_add_f32 {t1}, {t1}, {t0}', f'v_rcp_f32 {t1}, {t1}']
        o += [f'v_mul_f32 {v(m+t)}, {v(m+t)}, {t1}' for t in range(8)]
        return o
    def reads(k):
        se = k & 1; off = ldsoff(k); hi = off // 49152; off -= hi * 49152
        a(f'ds_read_b128 {v(FR + se*8, 4)}, {v((RA, RA2, RA3)[hi])} offset:{off}'); a(f'ds_read_b128 {v(FR + se*8 + 4, 4)}, {v((RB, RB2, RB3)[hi])} offset:{off}')
    issued = LA
    vm.wait(('f', CH - 1)); a('s_barrier')
    P.stamp()
    reads(0)
    side = []
    for k in range(NSTEP):
        if k + 1 < NSTEP:
            if (k + 1) % CH == 0:
                vm.wait(('f', k + CH)); a('s_barrier')
                if k + 1 in (16, 32, 48, 64, 80): P.stamp()
            reads(k + 1)
            a('s_waitcnt lgkmcnt(2)')
        else:
            a('s_waitcnt lgkmcnt(0)')
        if k < 32: d, first = TT, k == 0
        else:
            tile = (k - 32) // 8; d, first = XA + 16*(tile & 1), (k - 32) % 8 == 0
            if first and tile >= 1:
                pass
        se = k & 1
        a(f'v_mfma_f32_32x32x16_bf16 {v(d,16)}, {v(FR + se*8, 4)}, {v(FR + se*8 + 4, 4)}, {"0" if first else v(d,16)}')
        if issued < NSTEP:
            dma(issued); issued += 1
        if k == 2:
            for tt in range(8):
                for q in range(2):
                    vm.issue(f'buffer_load_dword {v(MLR + q*8 + tt)}, {v(VML)}, s[{sW}:{sW+3}], s{sML} offen offset:{tt*256 + q*128}', 'ml')
        if k == 16:
            vm.wait('ml'); side = factors()
        if k == XSTEP:
            a(f's_lshl_b32 s{sT}, s{sW8}, 11')
            for kk in range(2):
                a(f's_add_u32 m0, s{sT}, {XT + 1024*kk}')
                vm.issue(f'buffer_load_dwordx4 {v(VXO+kk)}, s[{sX}:{sX+3}], 0 offen lds', 'x')
            a(f's_add_u32 m0, s{sM0}, {ldsoff((issued - 1) // 4 * 4)}')
        if k >= 42 and (k - 32) % 8 == 2:
            tp = (k - 32) // 8 - 1
            side += [f'v_fmac_f32 {v(TT+j)}, {v(XA + 16*(tp & 1) + j)}, {v(MLR + tp)}' for j in range(16)]
        for _ in range(min(4, len(side))): a(side.pop(0))
    assert not side
    P.stamp()
    for j in range(16): a(f'v_fmac_f32 {v(TT+j)}, {v(XA + 16 + j)}, {v(MLR + 7)}')
    A0 = TT
    for hh in range(2):
        for r in range(4):
            a(f'v_permlane32_swap_b32 {v(A0 + 8*hh + r)}, {v(A0 + 8*hh + 4 + r)}')
    a(f'v_and_b32 {t0}, 31, {L}'); a(f'v_lshrrev_b32 {t1}, 5, {L}'); a(f's_lshr_b32 s{sT}, s{sW8}, 1'); a(f's_lshl_b32 s{sT}, s{sT}, 2')
    a(f'v_or_b32 {t1}, s{sT}, {t1}'); a(f'v_and_b32 {t2}, 7, {t0}'); a(f'v_xor_b32 {t1}, {t1}, {t2}')
    a(f's_and_b32 s{sT}, s{sW8}, 1'); a(f's_lshl_b32 s{sT}, s{sT}, 12'); a(f's_add_u32 s{sT}, s{sT}, {XT}'); a(f'v_lshlrev_b32 {t0}, 7, {t0}'); a(f'v_add_u32 {t0}, s{sT}, {t0}')
    a(f'v_lshl_add_u32 {t2}, {t1}, 4, {t0}'); a(f'v_xor_b32 {t1}, 2, {t1}'); a(f'v_lshl_add_u32 {t1}, {t1}, 4, {t0}')
    a('s_waitcnt vmcnt(0)'); a('s_barrier')
    a(f'ds_read_b128 {v(XR,4)}, {t2}'); a(f'ds_read_b128 {v(XR+4,4)}, {t1}')
    a('s_waitcnt lgkmcnt(0)')
    for hh in range(2):
        for d in range(4):
            x = XR + 4*hh + d; c = A0 + 8*hh + 2*d
            a(f'v_lshlrev_b32 {t3}, 16, {v(x)}'); a(f'v_and_b32 {t4}, 0xffff0000, {v(x)}')
            a(f'v_add_f32 {v(c)}, {v(c)}, {t3}'); a(f'v_add_f32 {v(c+1)}, {v(c+1)}, {t4}')
            a(f'v_cvt_pk_bf16_f32 {v(x)}, {v(c)}, {v(c+1)}')
        a(f'ds_write_b128 {t2 if hh == 0 else t1}, {v(XR+4*hh,4)}')
    a('s_waitcnt lgkmcnt(0)'); a('s_barrier')
    P.stamp()
    a(f's_lshl_b32 s{sT}, s{sW8}, 11'); a(f's_add_u32 s{sT}, s{sT}, {XT}'); a(f'v_add_u32 {t0}, s{sT}, {v(VL16)}')
    a(f'ds_read_b128 {v(XR,4)}, {t0}'); a(f'ds_read_b128 {v(XR+4,4)}, {t0} offset:1024')
    a('s_waitcnt lgkmcnt(1)')
    a(f'buffer_store_dwordx4 {v(XR,4)}, {v(VXO)}, s[{sO}:{sO+3}], 0 offen')
    a('s_waitcnt lgkmcnt(0)')
    a(f'buffer_store_dwordx4 {v(XR+4,4)}, {v(VXO+1)}, s[{sO}:{sO+3}], 0 offen')
    P.stamp()
    if prof: a('s_waitcnt vmcnt(0)')
    P.stamp(); P.real(); P.finish(sW8, 4, 5)
    a.label('K3_END')
    a('s_endpgm')
    return dict(name=name, body=a.text(), grid=256, block=256, lds=XT + 8192, vgpr=128, agpr=0, sgpr=102 if prof else 64)
```

```python
from common import *

R = 3
STG = 40960
NST = 8
GC0 = -2.0 * 0.7978845608028654 * LOG2E
GC1 = GC0 * 0.044715

def gelu_block(a, y0, n, t0, vC):
    P2 = range(0, n, 2)
    for i in P2: a(f'v_pk_mul_f32 {v(t0+i,2)}, {v(y0+i,2)}, {v(y0+i,2)}')
    for i in P2: a(f'v_pk_fma_f32 {v(t0+i,2)}, {v(t0+i,2)}, {v(vC+2,2)}, {v(vC,2)}')
    for i in P2: a(f'v_pk_mul_f32 {v(t0+i,2)}, {v(t0+i,2)}, {v(y0+i,2)}')
    for i in range(n): a(f'v_exp_f32 {v(t0+i)}, {v(t0+i)}')
    for i in P2: a(f'v_pk_add_f32 {v(t0+i,2)}, {v(t0+i,2)}, {v(vC+4,2)}')
    for i in range(n): a(f'v_rcp_f32 {v(t0+i)}, {v(t0+i)}')
    for i in P2: a(f'v_pk_mul_f32 {v(y0+i,2)}, {v(y0+i,2)}, {v(t0+i,2)}')

def build(name='k1_kernel', prof=False, touch=False, xf=' nt', wf='', prio=0, stf=' sc1', rot=2, wmap=0):
    a = Asm()
    P = Prof(a, prof, 0)
    ACC = 0
    AS, AG, AC = 48, 52, 56
    FR = 68
    ONES = 132
    AX, AXS, AW = 136, 140, 144
    VX0, VX1, VW = 146, 147, 148
    LANE, T0 = 151, 152
    def fr(st, what, i=0):
        b = FR + st * 32
        return {'x': b + 4 * i, 'xs': b + 16, 'w': b + 20 + 4 * i}[what]
    sX, sWs = 24, 28
    sB = [32, 36, 40]
    sW8, sWR, sWC, sRT, sCT, sFOLD = 44, 45, 46, 47, 48, 49
    sOX, sOW, sSW, sM0 = 50, [51, 52, 53], [54, 55, 56], 57
    sTY, sOB = [58, 59, 60], [61, 62, 63]
    sT, sT2, sT3, sC1 = 20, 21, 22, 23
    L = v(LANE); t0, t1, t2, t3, t4 = (v(T0 + i) for i in range(5))

    if wmap == 0:
        a('s_cmp_ge_u32 s2, 248'); a('s_cbranch_scc0 K1_GO')
        a('s_branch K1_END')
    else:
        a('s_cmp_ge_u32 s2, 256'); a('s_cbranch_scc1 K1_OUT')
        a('s_and_b32 s20, s2, 7'); a('s_cmp_lt_u32 s20, 6'); a('s_cbranch_scc1 K1_GO')
        a('s_cmp_lt_u32 s2, 224'); a('s_cbranch_scc1 K1_GO')
        a.label('K1_OUT')
        a('s_branch K1_END')
    a.label('K1_GO')
    if prio: a('s_setprio 3')
    P.real(); P.stamp()
    a('s_load_dwordx16 s[4:19], s[0:1], 0')
    a('s_load_dwordx2 s[100:101], s[0:1], 64')
    a('s_load_dwordx2 s[98:99], s[0:1], 88')
    a(f'v_lshrrev_b32 {t0}, 6, v0'); a(f'v_and_b32 {L}, 63, v0')
    a(f'v_readfirstlane_b32 s{sW8}, {t0}')
    a(f's_and_b32 s{sT}, s2, 7'); a(f's_lshr_b32 s{sT2}, s2, 3')
    if wmap == 0:
        a(f's_cmp_ge_u32 s{sT2}, 28'); a(f's_cselect_b32 s{sFOLD}, 1, 0')
    else:
        a(f's_cmp_ge_u32 s{sT2}, 16'); a(f's_cselect_b32 s{sFOLD}, 1, 0'); a(f's_cmp_ge_u32 s{sT}, 6'); a(f's_cselect_b32 s{sFOLD}, s{sFOLD}, 0')
    a(f's_lshr_b32 s{sWR}, s{sW8}, 2'); a(f's_and_b32 s{sWC}, s{sW8}, 3')
    a(f's_lshl_b32 s{sM0}, s{sW8}, 10')
    lF, lD = a.new('K1F'), a.new('K1D')
    a(f's_cmp_eq_u32 s{sFOLD}, 1'); a(f's_cbranch_scc1 {lF}')
    if wmap == 0:
        a(f's_and_b32 s{sRT}, s{sT}, 3'); a(f's_lshl_b32 s{sRT}, s{sRT}, 2'); a(f's_and_b32 s{sT3}, s{sT2}, 3'); a(f's_add_u32 s{sRT}, s{sRT}, s{sT3}')
        a(f's_lshr_b32 s{sCT}, s{sT}, 2'); a(f's_mul_i32 s{sCT}, s{sCT}, 7'); a(f's_lshr_b32 s{sT3}, s{sT2}, 2'); a(f's_add_u32 s{sCT}, s{sCT}, s{sT3}')
    else:
        a(f's_and_b32 s{sRT}, s{sT2}, 15')
        a(f's_lshl_b32 s{sCT}, s{sT}, 1'); a(f's_lshr_b32 s{sT3}, s{sT2}, 4'); a(f's_add_u32 s{sCT}, s{sCT}, s{sT3}')
        a(f's_add_u32 s{sT3}, s{sT}, 6'); a(f's_cmp_ge_u32 s{sT}, 6'); a(f's_cselect_b32 s{sCT}, s{sT3}, s{sCT}')
    for j in range(3):
        bi = sOB[j]
        if j == 0:
            a(f's_lshl_b32 s{bi}, s{sCT}, 1'); a(f's_cmp_ge_u32 s{sCT}, 12'); a(f's_cselect_b32 s{bi}, 0, s{bi}')
        elif j == 1:
            a(f's_lshl_b32 s{bi}, s{sCT}, 1'); a(f's_add_u32 s{sT}, s{bi}, 1'); a(f's_add_u32 s{sT2}, s{bi}, 4')
            a(f's_cmp_ge_u32 s{sCT}, 12'); a(f's_cselect_b32 s{bi}, s{sT2}, s{sT}')
        else:
            a(f's_add_u32 s{sT}, s{sCT}, 32'); a(f's_add_u32 s{sT2}, s{sCT}, 16')
            a(f's_cmp_ge_u32 s{sCT}, 8'); a(f's_cselect_b32 s{sT}, s{sT2}, s{sT}')
            a(f's_lshl_b32 s{sT2}, s{sCT}, 1'); a(f's_add_u32 s{sT2}, s{sT2}, 5')
            a(f's_cmp_ge_u32 s{sCT}, 12'); a(f's_cselect_b32 s{bi}, s{sT2}, s{sT}')
        a(f's_lshr_b32 s{sT}, s{bi}, 3'); a(f's_and_b32 s{sT2}, s{bi}, 7')
        a(f's_cmp_ge_u32 s{sT}, 3'); a(f's_cselect_b32 s{sSW[j]}, 11, 10')
        a(f's_sub_u32 s{sTY[j]}, s{sT}, 2'); a(f's_max_i32 s{sTY[j]}, s{sTY[j]}, 0')
        if j == 0:
            a(f's_cmp_ge_u32 s{sCT}, 12'); a(f's_cselect_b32 s{sTY[j]}, 3, s{sTY[j]}')
        a(f's_lshl_b32 s{sOW[j]}, s{sT2}, 7'); a(f's_cmp_eq_u32 s{sT}, 4'); a(f's_cselect_b32 s{sT3}, 1024, 0'); a(f's_add_u32 s{sOW[j]}, s{sOW[j]}, s{sT3}')
    a(f's_lshr_b32 s{sT3}, s{sRT}, 3'); a(f's_mul_i32 s{sT3}, s{sT3}, 1000')
    a(f's_and_b32 s{sT}, s{sRT}, 7'); a(f's_lshl_b32 s{sT}, s{sT}, 7'); a(f's_add_u32 s{sOX}, s{sT3}, s{sT}'); a(f's_lshl_b32 s{sOX}, s{sOX}, 10')
    a(f's_branch {lD}')
    a.label(lF)
    if wmap == 0:
        a(f's_sub_u32 s{sCT}, s{sT2}, 28')
        a(f's_and_b32 s{sRT}, s{sT}, 3')
        a(f's_lshr_b32 s{sT3}, s{sT}, 2')
    else:
        a(f's_sub_u32 s{sT2}, s{sT2}, 16'); a(f's_mul_i32 s{sRT}, s{sT2}, 21846'); a(f's_lshr_b32 s{sRT}, s{sRT}, 16')
        a(f's_mul_i32 s{sT3}, s{sRT}, 3'); a(f's_sub_u32 s{sCT}, s{sT2}, s{sT3}')
        a(f's_sub_u32 s{sT3}, s{sT}, 6')
    a(f's_lshl_b32 s{sOX}, s{sRT}, 17')
    for j in range(3):
        a(f's_mov_b32 s{sSW[j]}, 10')
        a(f's_mul_i32 s{sOB[j]}, s{sCT}, 3'); a(f's_add_u32 s{sOB[j]}, s{sOB[j]}, {j}')
        a(f's_cmp_ge_u32 s{sOB[j]}, 8'); a(f's_cselect_b32 s{sTY[j]}, 3, 0'); a(f's_min_u32 s{sOB[j]}, s{sOB[j]}, 7')
        a(f's_lshl_b32 s{sOW[j]}, s{sOB[j]}, 7'); a(f's_lshl_b32 s{sT}, s{sT3}, 19'); a(f's_add_u32 s{sOW[j]}, s{sOW[j]}, s{sT}')
    a(f's_add_u32 s{sFOLD}, s{sT3}, 1')
    a.label(lD)
    a(f'v_lshrrev_b32 {t0}, 3, {L}')
    a(f'v_and_b32 {t1}, 7, {L}')
    a(f'v_lshrrev_b32 {t2}, 1, {t0}')
    a(f'v_xor_b32 {t3}, {t2}, {t1}')
    a(f's_lshl_b32 s{sT}, s{sW8}, 4')
    a(f'v_add_u32 {t4}, s{sT}, {t0}'); a(f'v_lshlrev_b32 {t4}, 10, {t4}'); a(f'v_add_u32 {t4}, s{sOX}, {t4}')
    a(f's_mov_b32 s{sOX}, 0')
    a(f'v_lshl_add_u32 {v(VX0)}, {t3}, 4, {t4}')
    a(f'v_xor_b32 {t3}, 4, {t3}'); a(f'v_add_u32 {t4}, 8192, {t4}')
    a(f'v_lshl_add_u32 {v(VX1)}, {t3}, 4, {t4}')
    a(f'v_and_b32 {t2}, 1, {t2}'); a(f's_and_b32 s{sT}, s{sW8}, 1'); a(f's_lshl_b32 s{sT}, s{sT}, 1')
    a(f'v_or_b32 {t2}, s{sT}, {t2}'); a(f'v_lshlrev_b32 {t2}, 1, {t2}'); a(f'v_xor_b32 {t2}, {t2}, {t1}'); a(f'v_lshlrev_b32 {t2}, 4, {t2}')
    a(f's_lshl_b32 s{sT}, s{sW8}, 3'); a(f'v_add_u32 {t0}, s{sT}, {t0}')
    for j in range(3):
        a(f'v_lshlrev_b32 {v(VW+j)}, s{sSW[j]}, {t0}'); a(f'v_add_u32 {v(VW+j)}, {v(VW+j)}, {t2}'); a(f'v_add_u32 {v(VW+j)}, s{sOW[j]}, {v(VW+j)}')
        a(f's_add_u32 s{sSW[j]}, s{sSW[j]}, 6')
    sKS = sC1
    if rot:
        a(f's_lshr_b32 s{sT2}, s2, 3'); a(f's_and_b32 s{sT}, s{sT2}, 3'); a(f's_lshl_b32 s{sT}, s{sT}, 1'); a(f's_lshr_b32 s{sT2}, s{sT2}, 2')
        a(f's_add_u32 s{sT}, s{sT}, s{sT2}'); a(f's_and_b32 s{sT2}, s2, 1'); a(f's_add_u32 s{sT}, s{sT}, s{sT2}')
        a(f's_mul_i32 s{sT2}, s{sCT}, 3'); a(f's_lshl_b32 s{sT3}, s{sRT}, 1'); a(f's_add_u32 s{sT2}, s{sT2}, s{sT3}')
        a(f's_cmp_lg_u32 s{sFOLD}, 0'); a(f's_cselect_b32 s{sKS}, s{sT2}, s{sT}'); a(f's_and_b32 s{sKS}, s{sKS}, 7')
        if rot == 2:
            a(f's_lshr_b32 s{sT2}, s2, 3'); a(f's_lshr_b32 s{sT}, s{sT2}, 2'); a(f's_add_u32 s{sT}, s{sT}, s{sT2}')
            a(f's_and_b32 s{sT}, s{sT}, 1'); a(f's_lshl_b32 s{sKS}, s{sT}, 2')
        if rot == 4:
            a(f's_add_u32 s{sT}, s{sRT}, s{sCT}'); a(f's_and_b32 s{sT}, s{sT}, 1'); a(f's_lshl_b32 s{sKS}, s{sT}, 2')
        if rot == 3:
            a(f's_lshr_b32 s{sT2}, s2, 3'); a(f's_lshr_b32 s{sT}, s{sT2}, 2'); a(f's_and_b32 s{sT2}, s{sT2}, 3'); a(f's_add_u32 s{sT}, s{sT}, s{sT2}')
            a(f's_mul_i32 s{sT2}, s{sT}, 21846'); a(f's_lshr_b32 s{sT2}, s{sT2}, 16'); a(f's_mul_i32 s{sT2}, s{sT2}, 3'); a(f's_sub_u32 s{sT}, s{sT}, s{sT2}')
            a(f's_mul_i32 s{sKS}, s{sT}, 3')
    else:
        a(f's_mov_b32 s{sKS}, 0')
    a(f's_lshl_b32 s{sOX}, s{sKS}, 7')

    def dma_groups(st):
        base = (st % R) * STG
        g = []
        g.append(([f's_lshl_b32 s{sT}, s{sM0}, 1', f's_add_u32 m0, s{sT}, {base}'],
                  [f'buffer_load_dwordx4 {v(VX0)}, s[{sX}:{sX+3}], s{sOX} offen{xf} lds']))
        g.append(([f's_add_u32 m0, m0, 1024'],
                  [f'buffer_load_dwordx4 {v(VX1)}, s[{sX}:{sX+3}], s{sOX} offen{xf} lds']))
        for j in range(3):
            post = [f'buffer_load_dwordx4 {v(VW+j)}, s[{sB[j]}:{sB[j]+3}], s{sOW[j]} offen{wf} lds']
            if j == 2: post += [f's_add_u32 s{sKS}, s{sKS}, 1', f's_and_b32 s{sKS}, s{sKS}, 7', f's_lshl_b32 s{sOX}, s{sKS}, 7']
            g.append(([f's_lshl_b32 s{sOW[j]}, s{sKS}, s{sSW[j]}', f's_add_u32 m0, s{sM0}, {base + 16384 + j*8192}'], post))
        return g
    def dma(st):
        for pre, post in dma_groups(st):
            for l in pre + post: a(l)
    a('s_waitcnt lgkmcnt(0)')
    lF2, lD2 = a.new('K1F2'), a.new('K1D2')
    a(f's_mov_b32 s{sWs}, s98'); a(f's_mov_b32 s{sWs+1}, s99'); a(f's_mov_b32 s{sWs+2}, {WS_BYTES}'); a(f's_mov_b32 s{sWs+3}, {SRD3}')
    a(f's_mov_b32 s{sX+3}, {SRD3}')
    for j in range(3): a(f's_mov_b32 s{sB[j]+3}, {SRD3}')
    a(f's_cmp_lg_u32 s{sFOLD}, 0'); a(f's_cbranch_scc1 {lF2}')
    a(f's_mov_b32 s{sX}, s4'); a(f's_mov_b32 s{sX+1}, s5'); a(f's_mov_b32 s{sX+2}, {OUT_BYTES}')
    for j in range(3):
        b = sB[j]
        a(f's_lshr_b32 s{sT}, s{sOB[j]}, 3')
        a(f's_cmp_eq_u32 s{sT}, 1'); a(f's_cselect_b32 s{b}, s8, s6'); a(f's_cselect_b32 s{b+1}, s9, s7')
        a(f's_cmp_eq_u32 s{sT}, 2'); a(f's_cselect_b32 s{b}, s10, s{b}'); a(f's_cselect_b32 s{b+1}, s11, s{b+1}')
        a(f's_cmp_ge_u32 s{sT}, 3'); a(f's_cselect_b32 s{b}, s14, s{b}'); a(f's_cselect_b32 s{b+1}, s15, s{b+1}')
        a(f's_mov_b32 s{b+2}, {1 << 19}'); a(f's_cselect_b32 s{b+2}, {1 << 20}, s{b+2}')
    a(f's_branch {lD2}')
    a.label(lF2)
    a(f's_cmp_eq_u32 s{sFOLD}, 2'); a(f's_cselect_b32 s{sX}, s18, s12'); a(f's_cselect_b32 s{sX+1}, s19, s13')
    a(f's_mov_b32 s{sX+2}, {1 << 19}')
    for j in range(3):
        b = sB[j]
        a(f's_mov_b32 s{b}, s100'); a(f's_mov_b32 s{b+1}, s101'); a(f's_mov_b32 s{b+2}, {1 << 20}')
    a.label(lD2)
    TCH = T0 + 5
    if touch:
        lW, lT = a.new('K1TW'), a.new('K1TD')
        a(f's_mov_b32 s92, s{sX}'); a(f's_mov_b32 s93, s{sX+1}'); a(f's_mov_b32 s94, s{sX+2}'); a(f's_mov_b32 s95, {SRD3}')
        a(f'v_mov_b32 {v(TCH)}, {v(VX0)}')
        a(f's_lshr_b32 s{sT2}, s2, 3')
        a(f's_cmp_ge_u32 s{sW8}, 2'); a(f's_cbranch_scc1 {lW}')
        a(f's_lshr_b32 s{sT2}, s{sT2}, 2'); a(f's_cmp_lg_u32 s{sFOLD}, 0'); a(f's_cselect_b32 s{sT2}, s{sCT}, s{sT2}')
        a(f's_add_u32 s{sT2}, s{sT2}, 1'); a(f's_lshl_b32 s{sT2}, s{sT2}, 7')
        a(f'v_and_b32 {t0}, 0xfffffc00, {v(VX0)}')
        a(f'v_lshrrev_b32 {t1}, 3, {L}'); a(f's_lshl_b32 s{sT}, s{sW8}, 4'); a(f'v_add_u32 {t1}, s{sT}, {t1}'); a(f'v_lshlrev_b32 {t1}, 10, {t1}')
        a(f'v_sub_u32 {t0}, {t0}, {t1}')
        a(f's_lshl_b32 s{sT}, s{sW8}, 6'); a(f'v_add_u32 {t1}, s{sT}, {L}'); a(f'v_lshl_add_u32 {t0}, {t1}, 10, {t0}')
        a(f'v_add_u32 {v(TCH)}, s{sT2}, {t0}')
        a(f's_branch {lT}')
        a.label(lW)
        a(f's_and_b32 s{sT2}, s{sT2}, 3'); a(f's_cmp_lg_u32 s{sFOLD}, 0'); a(f's_cselect_b32 s{sT2}, s{sRT}, s{sT2}'); a(f's_and_b32 s{sT2}, s{sT2}, 3')
        a(f's_mul_i32 s{sT2}, s{sT2}, 96'); a(f's_and_b32 s{sT}, s{sW8}, 1'); a(f's_mul_i32 s{sT}, s{sT}, 48'); a(f's_add_u32 s{sT2}, s{sT2}, s{sT}'); a(f's_add_u32 s{sT2}, s{sT2}, 128')
        a(f'v_min_u32 {t0}, 47, {L}'); a(f'v_add_u32 {t0}, s{sT2}, {t0}')
        a(f's_sub_u32 s{sT}, s{sW8}, 2'); a(f's_lshr_b32 s{sT}, s{sT}, 1')
        for j in range(3):
            lj = a.new('K1TJ')
            a(f's_cmp_lg_u32 s{sT}, {j}'); a(f's_cbranch_scc1 {lj}')
            a(f's_lshr_b32 s{sT2}, s{sSW[j]}, 6'); a(f'v_mul_lo_u32 {t0}, {t0}, s{sT2}'); a(f'v_add_u32 {v(TCH)}, s{sOW[j]}, {t0}')
            a(f's_mov_b32 s92, s{sB[j]}'); a(f's_mov_b32 s93, s{sB[j]+1}'); a(f's_mov_b32 s94, s{sB[j]+2}'); a(f's_mov_b32 s95, {SRD3}')
            a.label(lj)
        a.label(lT)
    dma(0); a('s_barrier'); dma(1)
    if touch: a(f'buffer_load_dword {v(TCH+1)}, {v(TCH)}, s[92:95], 0 offen')
    if prio:
        a('s_setprio 0')
        if prio == 1:
            lp = a.new('K1P')
            a(f's_cmp_lt_u32 s{sW8}, 4'); a(f's_cbranch_scc1 {lp}'); a('s_setprio 1'); a.label(lp)
    P.stamp()

    a(f'v_and_b32 {t0}, 15, {L}'); a(f'v_lshrrev_b32 {t1}, 4, {L}')
    a(f'v_lshrrev_b32 {t2}, 1, {t0}'); a(f'v_xor_b32 {t2}, {t2}, {t1}')
    a(f'v_lshlrev_b32 {t2}, 4, {t2}'); a(f'v_lshl_add_u32 {t2}, {t0}, 7, {t2}')
    a(f's_lshl_b32 s{sT}, s{sWR}, 13')
    a(f'v_add_u32 {v(AX)}, s{sT}, {t2}'); a(f'v_xor_b32 {v(AX+1)}, 64, {v(AX)}')
    a(f's_lshl_b32 s{sT}, s{sWC}, 11')
    a(f'v_add_u32 {v(AXS)}, s{sT}, {v(AX)}'); a(f'v_add_u32 {v(AXS+1)}, s{sT}, {v(AX+1)}')
    for b in (AX, AXS):
        a(f'v_add_u32 {v(b+2)}, {2*STG}, {v(b)}'); a(f'v_add_u32 {v(b+3)}, {2*STG}, {v(b+1)}')
    a(f'v_bfe_u32 {t2}, {L}, 2, 2')
    a(f'v_lshl_add_u32 {t3}, {t1}, 3, {t2}'); a(f'v_lshlrev_b32 {t3}, 7, {t3}')
    a(f'v_lshrrev_b32 {t2}, 1, {t2}'); a(f'v_and_b32 {t4}, 1, {t1}'); a(f'v_lshl_or_b32 {t2}, {t4}, 1, {t2}'); a(f'v_lshlrev_b32 {t2}, 1, {t2}')
    a(f'v_bfe_u32 {t4}, {L}, 1, 1'); a(f's_lshl_b32 s{sT}, s{sWC}, 1'); a(f'v_or_b32 {t4}, s{sT}, {t4}')
    a(f'v_xor_b32 {t2}, {t2}, {t4}'); a(f'v_lshl_add_u32 {t3}, {t2}, 4, {t3}')
    a(f'v_and_b32 {t4}, 1, {L}'); a(f'v_lshl_add_u32 {t3}, {t4}, 3, {t3}')
    a(f'v_add_u32 {v(AW)}, 16384, {t3}'); a(f'v_add_u32 {v(AW+1)}, {16384 + 2*STG}, {t3}')
    ST, CS, GSL, GTL = 0, 1024, 4096, 8192
    A_STW, A_CSW, A_CSR, A_STR, VA, VG, VS, VC0, VJ3, VGA, VGL, VTS = range(158, 170)
    a(f'v_and_b32 {t0}, 15, {L}'); a(f'v_lshrrev_b32 {t1}, 4, {L}')
    a(f'v_and_b32 {v(VJ3)}, 3, {t0}')
    a(f's_lshl_b32 s{sT}, s{sW8}, 4'); a(f'v_add_u32 {t2}, s{sT}, {t0}'); a(f'v_lshlrev_b32 {v(A_STW)}, 3, {t2}')
    a(f'v_lshlrev_b32 {t3}, 4, {t1}'); a(f's_mul_i32 s{sT}, s{sW8}, 192'); a(f'v_add_u32 {v(A_CSW)}, s{sT}, {t3}')
    a(f's_mul_i32 s{sT}, s{sWC}, 192'); a(f'v_add_u32 {v(A_CSR)}, s{sT}, {t3}')
    a(f's_lshl_b32 s{sT}, s{sWR}, 9'); a(f'v_lshl_add_u32 {v(A_STR)}, {t0}, 3, s{sT}')
    a(f'v_lshlrev_b32 {v(VA)}, 4, {L}')
    a(f'v_and_b32 {t2}, 1, {t1}'); a(f'v_lshl_add_u32 {t2}, {t2}, 4, {t0}')
    a(f'v_lshrrev_b32 {t3}, 1, {t1}')
    a(f's_lshl_b32 s{sT}, s{sWC}, 1'); a(f'v_or_b32 {t4}, s{sT}, {t3}'); a(f'v_and_b32 {v(VG)}, 7, {t0}'); a(f'v_xor_b32 {t4}, {t4}, {v(VG)}')
    a(f'v_lshlrev_b32 {t4}, 4, {t4}'); a(f'v_lshl_add_u32 {v(VG)}, {t2}, 7, {t4}')
    a(f's_lshl_b32 s{sT}, s{sWR}, 13'); a(f'v_add_u32 {v(VG)}, s{sT}, {v(VG)}')
    a(f'v_lshlrev_b32 {v(VS)}, 3, {t2}'); a(f'v_lshl_add_u32 {v(VS)}, {t3}, 2, {v(VS)}')
    a(f's_lshl_b32 s{sT}, s{sWC}, 10'); a(f's_lshl_b32 s{sT2}, s{sWR}, 9'); a(f's_add_u32 s{sT}, s{sT}, s{sT2}'); a(f'v_add_u32 {v(VS)}, s{sT}, {v(VS)}')
    a(f'v_mov_b32 {v(VC0)}, {f32(GC0)}')
    a(f'v_lshrrev_b32 {t2}, 3, {L}'); a(f'v_and_b32 {t3}, 7, {L}'); a(f'v_xor_b32 {t4}, {t3}, {t2}')
    a(f'v_lshlrev_b32 {t4}, 4, {t4}'); a(f'v_lshl_add_u32 {t4}, {t2}, 7, {t4}'); a(f's_lshl_b32 s{sT}, s{sW8}, 11'); a(f'v_add_u32 {v(VGL)}, s{sT}, {t4}')
    a(f'v_lshlrev_b32 {t2}, 10, {t2}'); a(f'v_lshl_add_u32 {v(VGA)}, {t3}, 4, {t2}')
    a(f's_lshl_b32 s{sT}, s{sW8}, 8'); a(f'v_lshl_add_u32 {v(VTS)}, {L}, 2, s{sT}')
    a(f'v_lshrrev_b32 {t3}, 2, {t0}'); a(f'v_cmp_eq_u32 s[94:95], {t3}, {t1}'); a(f'v_cmp_eq_u32 s[96:97], 0, {t0}')
    for i in range(4): a(f'v_mov_b32 {v(ONES+i)}, 0x3f803f80')
    for i in range(AC, AC+12): a(f'v_mov_b32 {v(i)}, 0')

    def reads(u, stats):
        st, h = u >> 1, u & 1
        r = st % R; hi = 1 if r == 2 else 0; off = (r & 1) * STG if r < 2 else 0; se = u & 1
        out = []
        for s_ in range(4):
            out.append(f'ds_read_b128 {v(fr(se,"x",s_),4)}, {v(AX + 2*hi + h)} offset:{off + s_*2048}')
        if stats: out.append(f'ds_read_b128 {v(fr(se,"xs"),4)}, {v(AXS + 2*hi + h)} offset:{off}')
        for j in range(3):
            for e in range(2):
                out.append(f'ds_read_b64_tr_b16 {v(fr(se,"w",j)+2*e,2)}, {v(AW + hi)} offset:{off + j*8192 + h*4096 + e*512}')
        return out
    def mfmas(u, wr):
        se = u & 1; out = []
        first = (u == 0)
        mm = lambda d, x, y, z=False: f'v_mfma_f32_16x16x32_bf16 {v(d,4)}, {v(x,4)}, {v(y,4)}, {"0" if z else v(d,4)}'
        for j in range(3):
            for s_ in range(4):
                d = ACC + (j*4+s_)*4
                out.append(mm(d, fr(se,'w',j), fr(se,'x',s_), first) if wr < 2 else mm(d, fr(se,'x',s_), fr(se,'w',j), first))
        if wr < 2:
            out.insert(4, mm(AS, ONES, fr(se,'xs'), first))
            out.insert(9, mm(AG, fr(se,'xs'), fr(se,'xs'), first))
            for j in range(3):
                if (j + u + wr) % 2 == 0: out.append(mm(AC + 4*j, fr(se,'w',j), ONES))
        return out

    TR = FR
    def stats_items():
        d, mean, var_ = v(TR), v(TR+2), v(TR+3)
        o = []
        o.append(f'v_cmp_eq_u32 vcc, 1, {v(VJ3)}\nv_cndmask_b32 {d}, {v(AG)}, {v(AG+1)}, vcc')
        o.append(f'v_cmp_eq_u32 vcc, 2, {v(VJ3)}\nv_cndmask_b32 {d}, {d}, {v(AG+2)}, vcc')
        o.append(f'v_cmp_eq_u32 vcc, 3, {v(VJ3)}\nv_cndmask_b32 {d}, {d}, {v(AG+3)}, vcc')
        o.append(f's_mov_b32 s{sT2}, {f32(1/512)}\nv_mul_f32 {mean}, s{sT2}, {v(AS)}\nv_mul_f32 {d}, s{sT2}, {d}')
        o.append(f'v_fma_f32 {var_}, -{mean}, {mean}, {d}\ns_mov_b32 s{sT2}, {f32(1e-5)}')
        o.append(f'v_max_f32 {var_}, 0, {var_}\nv_add_f32 {var_}, s{sT2}, {var_}')
        o.append(f'v_rsq_f32 {var_}, {var_}\nv_sub_f32 {mean}, 0, {mean}')
        o.append(f's_mov_b64 exec, s[96:97]\n' + '\n'.join(f'ds_write_b128 {v(A_CSW)}, {v(AC+4*j,4)} offset:{CS + j*64}' for j in range(3)) + '\ns_mov_b64 exec, -1')
        o.append(f's_mov_b64 exec, s[94:95]\nds_write_b64 {v(A_STW)}, {v(TR+2,2)} offset:{ST}\ns_mov_b64 exec, -1')
        return o
    a(f's_waitcnt vmcnt({6 if touch else 5})'); a('s_barrier')
    P.stamp()
    labs = [a.new('K1V') for _ in range(3)]
    lE, lEF = a.new('K1EPI'), a.new('K1EPF')
    a(f's_cmp_lg_u32 s{sFOLD}, 0'); a(f's_cbranch_scc1 {labs[2]}')
    a(f's_cmp_eq_u32 s{sWR}, 1'); a(f's_cbranch_scc1 {labs[1]}')
    for var in range(3):
        a.label(labs[var])
        stats = var < 2
        for l in reads(0, stats): a(l)
        pend = dma_groups(2)
        issued = 3
        for u in range(2*NST):
            st = u >> 1
            if u & 1 and st + 1 < NST:
                assert not pend
                a(f's_waitcnt vmcnt({5*(issued - (st+2)) + (1 if touch and st == 0 else 0)}) lgkmcnt(0)')
                a('s_barrier')
                if st in (1, 3, 5):
                    n0 = P.n; P.n = 4 + st // 2; P.stamp(); P.n = n0
                if issued < NST:
                    pend = dma_groups(issued); issued += 1
            else:
                a('s_waitcnt lgkmcnt(0)')
            rd = reads(u + 1, stats) if u + 1 < 2*NST else []
            mf = mfmas(u, var)
            quota = len(pend) if (u == 0 or not (u & 1)) else min(3, len(pend))
            last = (u == 2*NST - 1) and var < 2
            if last:
                mf = [m for m in mf if m.split()[1].startswith(('v[48:', 'v[52:', 'v[56:', 'v[60:', 'v[64:'))] + [m for m in mf if not m.split()[1].startswith(('v[48:', 'v[52:', 'v[56:', 'v[60:', 'v[64:'))]
                items = stats_items(); nst_ = len(mf) - 12
                for i, m in enumerate(mf):
                    a(m)
                    if i >= nst_ + 2 and items: a(items.pop(0))
                for it_ in items: a(it_)
                continue
            n = max(len(rd), len(mf))
            slots = [1 + (k * (len(mf) - 1)) // quota for k in range(quota)] if quota else []
            post = None
            for i in range(n):
                if i in slots:
                    pre, post = pend.pop(0)
                    for l in pre: a(l)
                if i < len(mf): a(mf[i])
                if post:
                    for l in post: a(l)
                    post = None
                if i < len(rd): a(rd[i])
        if var == 0: a(f's_branch {lE}')
        if var == 1: a(f's_branch {lE}')
    P.n = 7; P.stamp()
    PK = FR
    a(f'v_and_b32 {t0}, 15, {L}'); a(f'v_lshrrev_b32 {t1}, 4, {L}')
    a(f's_and_b32 s{sT}, s{sWC}, 1'); a(f's_lshl_b32 s{sT}, s{sT}, 4')
    a(f'v_add_u32 {t2}, s{sT}, {t0}'); a(f'v_lshrrev_b32 {t3}, 1, {t1}'); a(f'v_lshl_add_u32 {t2}, {t3}, 5, {t2}'); a(f'v_lshlrev_b32 {t2}, 4, {t2}')
    a(f'v_and_b32 {t4}, 1, {t1}'); a(f'v_lshl_add_u32 {t2}, {t4}, 3, {t2}')
    a(f's_cmp_eq_u32 s{sFOLD}, 2'); a(f's_mov_b32 s{sT3}, {WO1}'); a(f's_cselect_b32 s{sT3}, {WO2}, s{sT3}')
    a(f's_lshl_b32 s{sT}, s{sRT}, 3'); a(f's_lshl_b32 s{sT2}, s{sWR}, 2'); a(f's_add_u32 s{sT}, s{sT}, s{sT2}'); a(f's_lshl_b32 s{sT}, s{sT}, 10')
    a(f's_add_u32 s{sT3}, s{sT3}, s{sT}')
    for j in range(3):
        lS = a.new('K1FS')
        a(f's_cmp_eq_u32 s{sTY[j]}, 3'); a(f's_cbranch_scc1 {lS}')
        a(f's_lshl_b32 s{sT}, s{sOB[j]}, 1'); a(f's_lshr_b32 s{sT2}, s{sWC}, 1'); a(f's_add_u32 s{sT}, s{sT}, s{sT2}'); a(f's_mul_i32 s{sT}, s{sT}, {S32}')
        a(f's_add_u32 s{sT}, s{sT}, s{sT3}')
        for s_ in range(4):
            b = ACC + (j*4+s_)*4; p = PK + 2*s_
            a(f'v_cvt_pk_bf16_f32 {v(p)}, {v(b)}, {v(b+1)}'); a(f'v_cvt_pk_bf16_f32 {v(p+1)}, {v(b+2)}, {v(b+3)}')
            a(f'buffer_store_dwordx2 {v(p,2)}, {t2}, s[{sWs}:{sWs+3}], s{sT} offen offset:{s_*1024}{stf}')
        a.label(lS)
    a('s_branch K1_FIN')

    a.label(lE)
    P.n = 7; P.stamp()
    a('s_waitcnt lgkmcnt(0)'); a('s_barrier')
    P.stamp()
    STA = TR + 12
    for s_ in range(4): a(f'ds_read_b64 {v(STA+2*s_,2)}, {v(A_STR)} offset:{ST + s_*128}')
    for j in range(3):
        a(f'ds_read_b128 {v(AC+4*j,4)}, {v(A_CSR)} offset:{CS + j*64}')
        a(f'ds_read_b128 {v(TR+4*j,4)}, {v(A_CSR)} offset:{CS + 768 + j*64}')
    sRB = sM0
    a(f's_lshl_b32 s{sRB}, s{sRT}, 2'); a(f's_lshl_b32 s{sT}, s{sWR}, 1'); a(f's_add_u32 s{sRB}, s{sRB}, s{sT}')
    GC = TR + 48
    for i, c in enumerate((GC0, GC0, GC1, GC1, 1.0, 1.0)): a(f'v_mov_b32 {v(GC+i)}, {f32(c)}')
    a('s_waitcnt lgkmcnt(0)')
    for i in range(12): a(f'v_add_f32 {v(AC+i)}, {v(AC+i)}, {v(TR+i)}')
    a(f'v_and_b32 {t0}, 15, {L}'); a(f'v_lshrrev_b32 {t1}, 4, {L}')
    PK = TR + 24
    GT = TR + 40
    def pack(j, pair, p):
        b = ACC + (j*4 + 2*pair)*4
        a(f'v_cvt_pk_bf16_f32 {v(p)}, {v(b)}, {v(b+1)}'); a(f'v_cvt_pk_bf16_f32 {v(p+1)}, {v(b+2)}, {v(b+3)}')
        a(f'v_cvt_pk_bf16_f32 {v(p+2)}, {v(b+4)}, {v(b+5)}'); a(f'v_cvt_pk_bf16_f32 {v(p+3)}, {v(b+6)}, {v(b+7)}')
        a(f'v_permlane16_swap_b32 {v(p)}, {v(p+2)}'); a(f'v_permlane16_swap_b32 {v(p+1)}, {v(p+3)}')
    for j in range(3):
        lN, lG, lFS = a.new('K1N'), a.new('K1G'), a.new('K1FS')
        ty, bi = sTY[j], sOB[j]
        if j == 0:
            a(f's_cmp_eq_u32 s{ty}, 3'); a(f's_cbranch_scc1 {lN}')
        for s_ in range(4):
            for r in (0, 2):
                x = ACC + (j*4+s_)*4 + r
                a(f'v_pk_fma_f32 {v(x,2)}, {v(STA+2*s_,2)}, {v(AC+4*j+r,2)}, {v(x,2)} op_sel_hi:[0,1,1]')
        for s_ in range(4):
            for r in (0, 2):
                x = ACC + (j*4+s_)*4 + r
                a(f'v_pk_mul_f32 {v(x,2)}, {v(x,2)}, {v(STA+2*s_,2)} op_sel:[0,1] op_sel_hi:[1,1]')
        if j > 0:
            if j == 1:
                a(f's_cmp_eq_u32 s{ty}, 0'); a(f's_cbranch_scc1 {lFS}')
            for h in range(2):
                gelu_block(a, ACC + j*16 + 8*h, 8, GT, GC)
            if j == 2:
                P.stamp()
                a(f's_cmp_eq_u32 s{ty}, 2'); a(f's_cbranch_scc1 {lG}')
        a.label(lFS)
        a(f's_lshr_b32 s{sT}, s{bi}, 3'); a(f's_mul_i32 s{sT}, s{sT}, {REG}')
        if QF: a(f's_add_u32 s{sT}, s{sT}, {QF}')
        a(f's_and_b32 s{sT2}, s{bi}, 7'); a(f's_lshl_b32 s{sT2}, s{sT2}, 2'); a(f's_add_u32 s{sT2}, s{sT2}, s{sWC}'); a(f's_lshl_b32 s{sT2}, s{sT2}, 10')
        a(f's_add_u32 s{sT}, s{sT}, s{sT2}'); a(f's_mul_i32 s{sT2}, s{sRB}, {S32}'); a(f's_add_u32 s{sT}, s{sT}, s{sT2}')
        for pair in range(2):
            p = PK + 4*pair
            pack(j, pair, p)
            if pair: a(f's_add_u32 s{sT}, s{sT}, {S32}')
            a(f'buffer_store_dwordx4 {v(p,4)}, {v(VA)}, s[{sWs}:{sWs+3}], s{sT} offen{stf}')
        if j == 2:
            a(f's_branch {lN}')
            a.label(lG)
            a(f's_and_b32 s{sT3}, s{bi}, 7')
            sGS = sC1
            a(f's_lshl_b32 s{sGS}, s{sT3}, 14'); a(f's_add_u32 s{sGS}, s{sGS}, {GS}')
            a(f's_lshl_b32 s{sT}, s{sRT}, 7'); a(f's_lshl_b32 s{sT2}, s{sW8}, 4'); a(f's_add_u32 s{sT}, s{sT}, s{sT2}'); a(f's_lshl_b32 s{sT}, s{sT}, 10')
            a(f's_lshl_b32 s{sT2}, s{sT3}, 7'); a(f's_add_u32 s{sT}, s{sT}, s{sT2}'); a(f's_add_u32 s{sT}, s{sT}, {G}')
            SQ = PK + 8
            TQ_ = GT
            for pair in range(2):
                for sl in range(2):
                    b = ACC + (j*4 + 2*pair + sl)*4; q = TQ_ + 4*sl
                    a(f'v_pk_add_f32 {v(q,2)}, {v(b,2)}, {v(b+2,2)}'); a(f'v_pk_mul_f32 {v(q+2,2)}, {v(b,2)}, {v(b,2)}')
                    a(f'v_pk_fma_f32 {v(q+2,2)}, {v(b+2,2)}, {v(b+2,2)}, {v(q+2,2)}')
                for sl in range(2):
                    q = TQ_ + 4*sl
                    a(f'v_add_f32 {v(SQ+sl)}, {v(q)}, {v(q+1)}'); a(f'v_add_f32 {v(SQ+2+sl)}, {v(q+2)}, {v(q+3)}')
                p = PK + 4*pair
                pack(j, pair, p)
                a(f'ds_write_b128 {v(VG)}, {v(p,4)} offset:{GTL + pair*4096}')
                a(f'v_permlane16_swap_b32 {v(SQ)}, {v(SQ+1)}'); a(f'v_permlane16_swap_b32 {v(SQ+2)}, {v(SQ+3)}')
                a(f'v_add_f32 {v(SQ)}, {v(SQ)}, {v(SQ+1)}'); a(f'v_add_f32 {v(SQ+2)}, {v(SQ+2)}, {v(SQ+3)}')
                a(f'v_permlane32_swap_b32 {v(SQ)}, {v(SQ+2)}')
                a(f'v_add_f32 {v(SQ)}, {v(SQ)}, {v(SQ+2)}')
                a(f'ds_write_b32 {v(VS)}, {v(SQ)} offset:{GSL + pair*256}')
            a('s_waitcnt lgkmcnt(0)'); a('s_barrier')
            a(f'ds_read_b128 {v(PK,4)}, {v(VGL)} offset:{GTL}'); a(f'ds_read_b128 {v(PK+4,4)}, {v(VGL)} offset:{GTL + 1024}')
            lK = a.new('K1GK')
            a(f's_cmp_ge_u32 s{sW8}, 4'); a(f's_cbranch_scc1 {lK}')
            for w in range(4): a(f'ds_read_b32 {v(SQ+w)}, {v(VTS)} offset:{GSL + w*1024}')
            a(f's_lshl_b32 s{sT2}, s{sRT}, 10'); a(f's_add_u32 s{sT2}, s{sT2}, s{sGS}')
            a('s_waitcnt lgkmcnt(0)')
            a(f'v_add_f32 {v(SQ)}, {v(SQ)}, {v(SQ+1)}'); a(f'v_add_f32 {v(SQ+2)}, {v(SQ+2)}, {v(SQ+3)}'); a(f'v_add_f32 {v(SQ)}, {v(SQ)}, {v(SQ+2)}')
            a(f'buffer_store_dword {v(SQ)}, {v(VTS)}, s[{sWs}:{sWs+3}], s{sT2} offen{stf}')
            a.label(lK)
            a('s_waitcnt lgkmcnt(0)')
            a(f'buffer_store_dwordx4 {v(PK,4)}, {v(VGA)}, s[{sWs}:{sWs+3}], s{sT} offen{stf}')
            a(f's_add_u32 s{sT}, s{sT}, 8192')
            a(f'buffer_store_dwordx4 {v(PK+4,4)}, {v(VGA)}, s[{sWs}:{sWs+3}], s{sT} offen{stf}')
            if j == 1: a('s_barrier')
        a.label(lN)
        if j < 2: P.stamp()
    a.label('K1_FIN')
    P.n = 12; P.stamp()
    if prof: a('s_waitcnt vmcnt(0)')
    P.stamp(); P.real()
    P.finish(sW8, sWs, sWs+1)
    a.label('K1_END')
    a('s_endpgm')
    return dict(name=name, body=a.text(), grid=256, block=512, lds=R*STG, vgpr=172, agpr=0, sgpr=102)
```

```python
from common import *

SCALE = LOG2E / (512 ** 0.5)
KT_BYTES = 131072
CV_W = 9216
TRS = 272
NPART = 32

def build(name='k2_kernel', prof=False, prio=0, stf=' sc1', CH=2, LA=9, LA0=9):
    a = Asm()
    P = Prof(a, prof, 1)
    LANE, T0 = 0, 2
    L = v(LANE); t0, t1, t2, t3, t4 = (v(T0 + i) for i in range(5))
    sW, sD = 8, 12
    sW8, sXC, sSL, sT, sT2, sT3 = 16, 17, 18, 19, 20, 21
    sA, sB, sOUT, sKT, sJOB, sM0, sOA, sOB, sML = 22, 23, 24, 25, 26, 27, 28, 29, 30
    a('s_cmp_ge_u32 s2, 256'); a('s_cbranch_scc1 K2_END')
    P.real(); P.stamp()
    a('s_load_dwordx2 s[4:5], s[0:1], 88'); a('s_load_dwordx2 s[6:7], s[0:1], 48')
    a(f'v_lshrrev_b32 {t0}, 6, v0'); a(f'v_and_b32 {L}, 63, v0')
    a(f'v_readfirstlane_b32 s{sW8}, {t0}')
    a(f's_and_b32 s{sXC}, s2, 7'); a(f's_lshr_b32 s{sSL}, s2, 3')
    a(f's_cmp_ge_u32 s{sSL}, 24'); a('s_cbranch_scc1 K2_CONV')
    a(f's_cmp_ge_u32 s{sW8}, 4'); a('s_cbranch_scc1 K2_END')

    KB, QR, ACC = 32, 64, 192
    lV, lJ = a.new('K2V'), a.new('K2J')
    a(f's_cmp_ge_u32 s{sSL}, 16'); a(f's_cbranch_scc1 {lV}')
    a(f's_mov_b32 s{sJOB}, 0')
    a(f's_lshr_b32 s{sT}, s{sXC}, 2'); a(f's_lshl_b32 s{sT}, s{sT}, 5')
    a(f's_and_b32 s{sKT}, s{sXC}, 1'); a(f's_lshl_b32 s{sKT}, s{sKT}, 2'); a(f's_lshr_b32 s{sT2}, s{sSL}, 2'); a(f's_add_u32 s{sKT}, s{sKT}, s{sT2}')
    a(f's_lshr_b32 s{sT2}, s{sXC}, 1'); a(f's_and_b32 s{sT2}, s{sT2}, 1'); a(f's_lshl_b32 s{sT2}, s{sT2}, 2')
    a(f's_and_b32 s{sT3}, s{sSL}, 3'); a(f's_add_u32 s{sT2}, s{sT2}, s{sT3}')
    a(f's_lshl_b32 s{sT2}, s{sT2}, 2'); a(f's_add_u32 s{sT2}, s{sT2}, s{sT}'); a(f's_add_u32 s{sT2}, s{sT2}, s{sW8}')
    a(f's_lshl_b32 s{sA}, s{sKT}, 2'); a(f's_add_u32 s{sA}, s{sA}, s{sT}'); a(f's_mul_i32 s{sA}, s{sA}, {S32}'); a(f's_add_u32 s{sA}, s{sA}, {KF}')
    a(f's_mul_i32 s{sB}, s{sT2}, {S32}'); a(f's_add_u32 s{sB}, s{sB}, {QF}')
    a(f's_mul_i32 s{sOUT}, s{sT2}, {S64}'); a(f's_lshl_b32 s{sT3}, s{sKT}, 13'); a(f's_add_u32 s{sOUT}, s{sOUT}, s{sT3}'); a(f's_add_u32 s{sOUT}, s{sOUT}, {PF}')
    a(f's_lshl_b32 s{sML}, s{sT2}, 3'); a(f's_add_u32 s{sML}, s{sML}, s{sKT}'); a(f's_lshl_b32 s{sML}, s{sML}, 8'); a(f's_add_u32 s{sML}, s{sML}, {ML}')
    a(f's_branch {lJ}')
    a.label(lV)
    a(f's_mov_b32 s{sJOB}, 1')
    a(f's_sub_u32 s{sT3}, s{sSL}, 16')
    a(f's_lshr_b32 s{sT}, s{sT3}, 2'); a(f's_lshl_b32 s{sT2}, s{sXC}, 1'); a(f's_add_u32 s{sT}, s{sT}, s{sT2}')
    a(f's_and_b32 s{sKT}, s{sT}, 7')
    a(f's_mul_i32 s{sA}, s{sT}, {4*S32}'); a(f's_add_u32 s{sA}, s{sA}, {VF}')
    a(f's_and_b32 s{sT3}, s{sT3}, 3'); a(f's_lshl_b32 s{sT3}, s{sT3}, 2'); a(f's_add_u32 s{sT3}, s{sT3}, s{sW8}')
    a(f's_mul_i32 s{sB}, s{sT3}, {S32}'); a(f's_add_u32 s{sB}, s{sB}, {WO1}')
    a(f's_lshr_b32 s{sT}, s{sT}, 3'); a(f's_lshl_b32 s{sT}, s{sT}, 4'); a(f's_add_u32 s{sT}, s{sT}, s{sT3}')
    a(f's_mul_i32 s{sOUT}, s{sT}, {S64}'); a(f's_lshl_b32 s{sT3}, s{sKT}, 13'); a(f's_add_u32 s{sOUT}, s{sOUT}, s{sT3}'); a(f's_add_u32 s{sOUT}, s{sOUT}, {VT}')
    a.label(lJ)
    VL16, RA, RB = 8, 9, 10
    a(f'v_lshlrev_b32 {v(VL16)}, 4, {L}')
    a(f'v_mov_b32 {v(RA)}, {v(VL16)}'); a(f'v_add_u32 {v(RB)}, 65536, {v(VL16)}')
    a(f's_lshl_b32 s{sM0}, s{sW8}, 15')
    a(f's_mul_i32 s{sOA}, s{sW8}, {S32}'); a(f's_add_u32 s{sOA}, s{sOA}, s{sA}'); a(f's_mov_b32 s{sOB}, s{sB}')
    a('s_waitcnt lgkmcnt(0)')
    srd(a, sW, 4, 5, WS_BYTES)
    def kload(k):
        if k % 4 == 0: a(f's_add_u32 m0, s{sM0}, {k*1024}')
        a(f'buffer_load_dwordx4 {v(VL16)}, s[{sW}:{sW+3}], s{sOA} offen offset:{(k%4)*1024} lds')
        a(f'buffer_load_dwordx4 {v(QR + 4*k, 4)}, {v(VL16)}, s[{sW}:{sW+3}], s{sOB} offen offset:{(k%4)*1024}')
        if k % 4 == 3:
            a(f's_add_u32 s{sOA}, s{sOA}, 4096'); a(f's_add_u32 s{sOB}, s{sOB}, 4096')
    for k in range(LA0): kload(k)
    P.stamp()
    def kreads(ks):
        se = ks & 1
        for kb in range(4):
            base = RA if kb < 2 else RB
            a(f'ds_read_b128 {v(KB + se*16 + kb*4, 4)}, {v(base)} offset:{(kb & 1)*32768 + ks*1024}')
    issued = LA0
    a(f's_waitcnt vmcnt({2*(issued - CH)})'); a('s_barrier')
    P.stamp()
    kreads(0)
    for ks in range(32):
        if ks + 1 < 32:
            if (ks + 1) % CH == 0:
                a(f's_waitcnt vmcnt({2*(issued - (ks + 1 + CH))})'); a('s_barrier')
                if ks + 1 in (8, 16, 24): P.stamp()
            kreads(ks + 1)
            a('s_waitcnt lgkmcnt(4)')
        else:
            a('s_waitcnt lgkmcnt(0)')
        se = ks & 1
        for kb in range(4):
            d = ACC + 16*kb
            a(f'v_mfma_f32_32x32x16_bf16 {v(d,16)}, {v(KB + se*16 + kb*4, 4)}, {v(QR + 4*ks, 4)}, {"0" if ks == 0 else v(d,16)}')
            if issued < 32 and (kb == 0 or (kb == 2 and issued - (ks + 1) < LA)):
                kload(issued); issued += 1
    P.stamp()
    lSE, lVE = a.new('K2SE'), a.new('K2VE')
    PK = 32
    def store_frags():
        for kb in range(4):
            for h in range(2):
                p = PK + ((kb*2+h) % 4) * 4
                b = ACC + 16*kb + 8*h
                for i in range(4):
                    a(f'v_cvt_pk_bf16_f32 {v(p+i)}, {v(b+2*i)}, {v(b+2*i+1)}')
                f = kb*2 + h
                a(f's_add_u32 s{sT}, s{sOUT}, {(f//4)*4096}') if f % 4 == 0 else None
                a(f'buffer_store_dwordx4 {v(p,4)}, {v(VL16)}, s[{sW}:{sW+3}], s{sT} offen offset:{(f%4)*1024}{stf}')
    a(f's_cmp_eq_u32 s{sJOB}, 0'); a(f's_cbranch_scc1 {lSE}')
    store_frags()
    P.stamp()
    if prof: a('s_waitcnt vmcnt(0)')
    P.stamp(); P.real(); P.finish(sW8, 4, 5); P.n = 8
    a('s_endpgm')
    a.label(lSE)
    lNM = a.new('K2NM')
    a('s_nop 7'); a('s_nop 7')
    a(f's_cmp_lg_u32 s{sKT}, 7'); a(f's_cbranch_scc1 {lNM}')
    for j in range(4, 16): a(f'v_mov_b32 {v(ACC+48+j)}, 0xff800000')
    a.label(lNM)
    M, M2, SUM = 12, 13, 14
    a(f'v_max3_f32 {v(M)}, {v(ACC)}, {v(ACC+1)}, {v(ACC+2)}')
    a(f'v_max3_f32 {v(M2)}, {v(ACC+3)}, {v(ACC+4)}, {v(ACC+5)}')
    i = 6
    while i + 3 < 64:
        a(f'v_max3_f32 {v(M)}, {v(M)}, {v(ACC+i)}, {v(ACC+i+1)}')
        a(f'v_max3_f32 {v(M2)}, {v(M2)}, {v(ACC+i+2)}, {v(ACC+i+3)}')
        i += 4
    a(f'v_max3_f32 {v(M)}, {v(M)}, {v(ACC+62)}, {v(ACC+63)}')
    a(f'v_max_f32 {v(M)}, {v(M)}, {v(M2)}')
    a(f'v_mov_b32 {v(M2)}, {v(M)}')
    a(f'v_permlane32_swap_b32 {v(M)}, {v(M2)}')
    a(f'v_max_f32 {v(M)}, {v(M)}, {v(M2)}')
    a(f's_mov_b32 s{sT2}, {f32(SCALE)}')
    a(f'v_mul_f32 {v(M)}, s{sT2}, {v(M)}')
    CC, NM, S2 = 16, 18, 20
    a(f'v_mov_b32 {v(CC)}, s{sT2}'); a(f'v_mov_b32 {v(CC+1)}, s{sT2}')
    a(f'v_sub_f32 {v(NM)}, 0, {v(M)}'); a(f'v_sub_f32 {v(NM+1)}, 0, {v(M)}')
    for i in range(4): a(f'v_mov_b32 {v(S2+i)}, 0')
    for kb in range(4):
        for h in range(2):
            b = ACC + 16*kb + 8*h
            for i in range(4): a(f'v_pk_fma_f32 {v(b+2*i,2)}, {v(b+2*i,2)}, {v(CC,2)}, {v(NM,2)}')
            for i in range(8): a(f'v_exp_f32 {v(b+i)}, {v(b+i)}')
            p = PK + ((kb*2+h) % 4) * 4
            for i in range(4):
                a(f'v_cvt_pk_bf16_f32 {v(p+i)}, {v(b+2*i)}, {v(b+2*i+1)}')
            f = kb*2 + h
            if f % 4 == 0: a(f's_add_u32 s{sT}, s{sOUT}, {(f//4)*4096}')
            a(f'buffer_store_dwordx4 {v(p,4)}, {v(VL16)}, s[{sW}:{sW+3}], s{sT} offen offset:{(f%4)*1024}{stf}')
            for i in range(4): a(f'v_pk_add_f32 {v(S2+2*(i&1),2)}, {v(S2+2*(i&1),2)}, {v(b+2*i,2)}')
    a(f'v_add_f32 {v(SUM)}, {v(S2)}, {v(S2+1)}'); a(f'v_add_f32 {v(M2)}, {v(S2+2)}, {v(S2+3)}')
    a(f'v_add_f32 {v(SUM)}, {v(SUM)}, {v(M2)}')
    a(f'v_mov_b32 {v(M2)}, {v(SUM)}')
    a(f'v_permlane32_swap_b32 {v(SUM)}, {v(M2)}')
    a(f'v_add_f32 {v(SUM)}, {v(SUM)}, {v(M2)}')
    a(f'v_cmp_gt_u32 vcc, 32, {L}')
    a(f'v_cndmask_b32 {v(SUM)}, {v(SUM)}, {v(M)}, vcc')
    a(f'v_lshlrev_b32 {t0}, 2, {L}')
    a(f'buffer_store_dword {v(SUM)}, {t0}, s[{sW}:{sW+3}], s{sML} offen{stf}')
    P.stamp()
    if prof: a('s_waitcnt vmcnt(0)')
    P.stamp(); P.real(); P.finish(sW8, 4, 5); P.n = 2
    a('s_endpgm')

    a.label('K2_CONV')
    sCG, sRT, sR0, sLB, sBB, sUO, sPR = 24, 25, 26, 27, 28, 29, 22
    GT_, WT_, ST_, PR_ = 0, 40960, 49152, 51200
    PRW = 9760
    NT_, TW_ = 0, 5664
    BF, AF, DD, UR = 16, 92, 112, 144
    SP, GQ, SR = 160, 192, 200
    VG_, VST, VNT, VB, VA_, VU = 8, 9, 10, 11, 12, 13
    a(f's_sub_u32 s{sT}, s{sSL}, 24')
    a(f's_lshl_b32 s{sRT}, s{sXC}, 1'); a(f's_and_b32 s{sT2}, s{sT}, 1'); a(f's_add_u32 s{sRT}, s{sRT}, s{sT2}')
    a(f's_lshr_b32 s{sCG}, s{sT}, 1')
    a(f's_lshl_b32 s{sR0}, s{sRT}, 7'); a(f's_sub_u32 s{sR0}, s{sR0}, 16')
    a(f'v_lshrrev_b32 {t0}, 4, {L}'); a(f'v_and_b32 {t1}, 15, {L}')
    a(f'v_lshlrev_b32 {t2}, 2, {t0}'); a(f'v_xor_b32 {t1}, {t1}, {t2}'); a(f'v_lshlrev_b32 {t1}, 4, {t1}')
    a(f's_lshl_b32 s{sT}, s{sCG}, 8'); a(f'v_add_u32 {t1}, s{sT}, {t1}')
    a(f's_mul_i32 s{sT}, s{sW8}, 20'); a(f's_add_u32 s{sT3}, s{sT}, s{sR0}'); a(f'v_add_u32 {t2}, s{sT3}, {t0}')
    a(f's_mul_i32 s{sT2}, s{sW8}, 5120')
    a('s_waitcnt lgkmcnt(0)')
    srd(a, sW, 4, 5, WS_BYTES)
    a(f'v_min_u32 {t3}, 19, {L}'); a(f'v_add_u32 {v(SR)}, s{sT}, {t3}')
    a(f'v_add_u32 {v(SR+2)}, s{sR0}, {v(SR)}')
    a(f'v_max_i32 {t3}, 0, {v(SR+2)}'); a(f'v_min_i32 {t3}, 2047, {t3}'); a(f'v_lshlrev_b32 {t3}, 3, {t3}')
    for p_ in range(8):
        a(f's_mov_b32 s{sLB}, {GS + p_*16384}')
        a(f'buffer_load_dwordx2 {v(SP+2*p_,2)}, {t3}, s[{sW}:{sW+3}], s{sLB} offen')
    a(f's_mov_b32 s{sLB}, {G}')
    for i in range(5):
        a(f'v_add_u32 {t3}, {4*i}, {t2}'); a(f'v_max_i32 {t3}, 0, {t3}'); a(f'v_min_i32 {t3}, 2047, {t3}')
        a(f'v_lshl_add_u32 {t3}, {t3}, 10, {t1}')
        a(f's_add_u32 m0, s{sT2}, {GT_ + i*1024}')
        a(f'buffer_load_dwordx4 {t3}, s[{sW}:{sW+3}], s{sLB} offen lds')
    srd(a, sD, 6, 7, 31 * 1024)
    a(f's_lshl_b32 s{sT2}, s{sW8}, 2'); a(f'v_add_u32 {t3}, s{sT2}, {t0}'); a(f'v_lshl_add_u32 {t3}, {t3}, 10, {t1}')
    a(f's_lshl_b32 s{sT2}, s{sW8}, 10'); a(f's_add_u32 m0, s{sT2}, {WT_}')
    a(f'buffer_load_dwordx4 {t3}, s[{sD}:{sD+3}], 0 offen lds')
    P.stamp()
    a(f's_lshr_b32 s{sBB}, s{sRT}, 3'); a(f's_lshl_b32 s{sBB}, s{sBB}, 10')
    a(f's_mul_i32 s{sPR}, s{sW8}, {PRW}'); a(f's_add_u32 s{sPR}, s{sPR}, {PR_}')
    for i in range(4): a(f'v_mov_b32 {v(GQ+i)}, 0')
    a(f'v_lshlrev_b32 {t0}, 4, {L}'); a(f'v_add_u32 {t0}, s{sPR}, {t0}')
    for i in range(4): a(f'ds_write_b128 {t0}, {v(GQ,4)} offset:{TW_ + i*1024}')
    a(f'v_bfe_u32 {t0}, {L}, 2, 2'); a(f'v_lshrrev_b32 {t2}, 4, {L}'); a(f'v_bfe_u32 {t3}, {L}, 1, 1')
    a(f's_lshl_b32 s{sT}, s{sW8}, 1'); a(f'v_or_b32 {t3}, s{sT}, {t3}'); a(f'v_lshlrev_b32 {t4}, 2, {t0}'); a(f'v_xor_b32 {t3}, {t3}, {t4}')
    a(f'v_lshlrev_b32 {t3}, 4, {t3}'); a(f'v_lshl_add_u32 {t3}, {t0}, 8, {t3}'); a(f'v_lshl_add_u32 {t3}, {t2}, 10, {t3}')
    a(f'v_and_b32 {t4}, 1, {L}'); a(f'v_lshl_add_u32 {v(VG_)}, {t4}, 3, {t3}')
    a(f'v_lshlrev_b32 {v(VST)}, 5, {t2}')
    a(f'v_and_b32 {t0}, 15, {L}'); a(f'v_mul_u32_u24 {t3}, 352, {t0}'); a(f'v_lshl_add_u32 {t3}, {t2}, 3, {t3}')
    a(f'v_lshrrev_b32 {t4}, 3, {t0}'); a(f'v_lshl_add_u32 {t3}, {t4}, 3, {t3}'); a(f'v_add_u32 {v(VNT)}, s{sPR}, {t3}')
    a(f'v_mul_u32_u24 {t3}, 200, {t0}'); a(f'v_lshl_add_u32 {t3}, {t2}, 3, {t3}'); a(f'v_add_u32 {t1}, s{sPR}, {t3}')
    a(f'v_lshrrev_b32 {t0}, 2, {L}'); a(f'v_and_b32 {t2}, 3, {L}')
    a(f'v_mul_u32_u24 {t3}, 352, {t0}'); a(f'v_lshl_add_u32 {t3}, {t2}, 3, {t3}')
    a(f'v_lshrrev_b32 {t4}, 3, {t0}'); a(f'v_lshl_add_u32 {t3}, {t4}, 3, {t3}'); a(f'v_add_u32 {v(VB)}, s{sPR}, {t3}')
    a(f'v_mul_u32_u24 {t3}, 200, {t0}'); a(f'v_lshlrev_b32 {t4}, 1, {t2}'); a(f'v_sub_u32 {t3}, {t3}, {t4}')
    a(f'v_and_b32 {t4}, 1, {t2}'); a(f'v_mul_u32_u24 {t4}, 94, {t4}'); a(f'v_sub_u32 {t3}, {t3}, {t4}'); a(f'v_add_u32 {t3}, 108, {t3}')
    a(f'v_add_u32 {v(VA_)}, s{sPR}, {t3}')
    a(f'v_lshlrev_b32 {v(VU)}, 4, {L}')
    a(f's_lshl_b32 s{sT}, s{sRT}, 2'); a(f's_mul_i32 s{sT}, s{sT}, {S32}')
    a(f's_lshl_b32 s{sT2}, s{sCG}, 3'); a(f's_add_u32 s{sT2}, s{sT2}, s{sW8}'); a(f's_lshl_b32 s{sT2}, s{sT2}, 10'); a(f's_add_u32 s{sUO}, s{sT}, s{sT2}')
    a('s_waitcnt vmcnt(6)')
    P.stamp()
    a(f's_mov_b32 s{sT}, {f32(1/512)}'); a(f's_mov_b32 s{sT2}, {f32(1e-5)}')
    b = SP
    for step in (8, 4, 2):
        for i in range(step): a(f'v_add_f32 {v(b+i)}, {v(b+i)}, {v(b+step+i)}')
    a(f'v_mul_f32 {v(b)}, s{sT}, {v(b)}'); a(f'v_mul_f32 {v(b+1)}, s{sT}, {v(b+1)}')
    a(f'v_fma_f32 {v(b+1)}, -{v(b)}, {v(b)}, {v(b+1)}')
    a(f'v_max_f32 {v(b+1)}, 0, {v(b+1)}'); a(f'v_add_f32 {v(b+1)}, s{sT2}, {v(b+1)}')
    a(f'v_rsq_f32 {v(b+2)}, {v(b+1)}')
    a(f'v_mul_f32 {v(b+3)}, {v(b)}, {v(b+2)}'); a(f'v_sub_f32 {v(b+3)}, 0, {v(b+3)}')
    a(f'v_subrev_u32 {t0}, s{sBB}, {v(SR+2)}')
    a(f'v_cmp_gt_u32 vcc, 1000, {t0}')
    a(f'v_cndmask_b32 {v(b+2)}, 0, {v(b+2)}, vcc'); a(f'v_cndmask_b32 {v(b+3)}, 0, {v(b+3)}, vcc')
    a(f'v_lshlrev_b32 {t0}, 3, {v(SR)}')
    a(f'ds_write_b64 {t0}, {v(b+2,2)} offset:{ST_}')
    a('s_waitcnt vmcnt(0) lgkmcnt(0)'); a('s_barrier')
    P.stamp()
    a(f's_add_u32 s{sT}, s{sUO}, {UF}')
    for f in range(4):
        a(f'buffer_load_dwordx4 {v(UR+4*f,4)}, {v(VU)}, s[{sW}:{sW+3}], s{sT} offen')
        if f < 3: a(f's_add_u32 s{sT}, s{sT}, {S32}')
    TQ = 204
    GR = SP
    AB = BF
    for aa in range(2): a(f'ds_read_b64_tr_b16 {v(TQ+2*aa,2)}, {v(VG_)} offset:{WT_ + aa*4096}')
    for aa in range(10):
        a(f'ds_read_b64_tr_b16 {v(GR+2*aa,2)}, {v(VG_)} offset:{GT_ + aa*4096}')
        a(f'ds_read_b128 {v(AB + aa*8, 4)}, {v(VST)} offset:{ST_ + aa*128}')
        a(f'ds_read_b128 {v(AB + aa*8 + 4, 4)}, {v(VST)} offset:{ST_ + aa*128 + 16}')
    a('s_waitcnt lgkmcnt(15)')
    for aa in range(2):
        o = TW_ + aa*32
        a(f'ds_write_b64 {t1}, {v(TQ+2*aa,2)} offset:{o + 16}')
        a(f'ds_write_b16 {t1}, {v(TQ+2*aa)} offset:{o + 96 + 14}'); a(f'ds_write_b16_d16_hi {t1}, {v(TQ+2*aa)} offset:{o + 96 + 16}')
        a(f'ds_write_b16 {t1}, {v(TQ+2*aa+1)} offset:{o + 96 + 18}'); a(f'ds_write_b16_d16_hi {t1}, {v(TQ+2*aa+1)} offset:{o + 96 + 20}')
    NQ = 184
    a('s_waitcnt lgkmcnt(10)')
    for aa in range(10):
        q = AB + aa*8; g0 = GR + 2*aa; nq = NQ + 4*(aa & 1)
        a(f'v_lshlrev_b32 {v(nq)}, 16, {v(g0)}'); a(f'v_and_b32 {v(nq+1)}, 0xffff0000, {v(g0)}')
        a(f'v_lshlrev_b32 {v(nq+2)}, 16, {v(g0+1)}'); a(f'v_and_b32 {v(nq+3)}, 0xffff0000, {v(g0+1)}')
        for e in range(4): a(f'v_fma_f32 {v(nq+e)}, {v(nq+e)}, {v(q+2*e)}, {v(q+2*e+1)}')
        a(f'v_cvt_pk_bf16_f32 {v(g0)}, {v(nq)}, {v(nq+1)}'); a(f'v_cvt_pk_bf16_f32 {v(g0+1)}, {v(nq+2)}, {v(nq+3)}')
        a(f'ds_write_b64 {v(VNT)}, {v(g0,2)} offset:{NT_ + aa*32}')
    a('s_waitcnt lgkmcnt(0)')
    P.stamp()
    for kk in range(9): a(f'ds_read2_b32 {v(AF+2*kk,2)}, {v(VA_)} offset0:{(TW_//4 + 2*kk) if TW_//4 + 2*kk < 255 else 0} offset1:0') if False else None
    a(f'v_add_u32 {v(VA_)}, {TW_}, {v(VA_)}')
    for kk in range(9): a(f'ds_read2_b32 {v(AF+2*kk,2)}, {v(VA_)} offset0:{2*kk} offset1:{2*kk+1}')
    for s_ in range(37): a(f'ds_read_b64 {v(BF+2*s_,2)}, {v(VB)} offset:{NT_ + s_*8}')
    a('s_waitcnt lgkmcnt(0)')
    for kk in range(9):
        for q in range(8):
            d = DD + 4*q
            a(f'v_mfma_f32_4x4x4_16b_bf16 {v(d,4)}, {v(AF+2*kk,2)}, {v(BF+2*(4*q+kk),2)}, {"0" if kk == 0 else v(d,4)}')
    P.stamp()
    a(f'v_lshrrev_b32 {t0}, 2, {L}'); a(f'v_and_b32 {t2}, 3, {L}'); a(f'v_mul_u32_u24 {t3}, 288, {t0}'); a(f'v_lshl_add_u32 {t3}, {t2}, 3, {t3}')
    a(f'v_add_u32 {t3}, s{sPR}, {t3}')
    CP = BF
    for q in range(8):
        a(f'v_cvt_pk_bf16_f32 {v(CP+2*q)}, {v(DD+4*q)}, {v(DD+4*q+1)}'); a(f'v_cvt_pk_bf16_f32 {v(CP+2*q+1)}, {v(DD+4*q+2)}, {v(DD+4*q+3)}')
        a(f'ds_write_b64 {t3}, {v(CP+2*q,2)} offset:{q*32}')
    a(f'v_lshrrev_b32 {t0}, 5, {L}'); a(f'v_bfe_u32 {t1}, {L}, 2, 2'); a(f'v_lshl_add_u32 {t0}, {t0}, 3, {t1}'); a(f'v_mul_u32_u24 {t0}, 288, {t0}')
    a(f'v_bfe_u32 {t1}, {L}, 4, 1'); a(f'v_lshl_add_u32 {t0}, {t1}, 5, {t0}'); a(f'v_and_b32 {t1}, 3, {L}'); a(f'v_lshl_add_u32 {t0}, {t1}, 3, {t0}')
    a(f'v_add_u32 {t2}, s{sPR}, {t0}')
    a('s_waitcnt lgkmcnt(0)')
    CR = BF + 16
    for f in range(4):
        for e in range(2):
            a(f'ds_read_b64_tr_b16 {v(CR+4*f+2*e,2)}, {t2} offset:{e*4*288 + f*64}')
    a('s_waitcnt vmcnt(0)')
    a(f's_add_u32 s{sT}, s{sUO}, {UC}')
    TM = DD
    for f in range(4):
        a(f's_waitcnt lgkmcnt({2*(3-f)})')
        for d in range(4):
            u = UR + 4*f + d; c = CR + 4*f + d; m = TM + 4*d
            a(f'v_lshlrev_b32 {v(m)}, 16, {v(u)}'); a(f'v_and_b32 {v(m+1)}, 0xffff0000, {v(u)}')
            a(f'v_lshlrev_b32 {v(m+2)}, 16, {v(c)}'); a(f'v_and_b32 {v(m+3)}, 0xffff0000, {v(c)}')
        for d in range(4):
            m = TM + 4*d
            a(f'v_mul_f32 {v(m)}, {v(m)}, {v(m+2)}'); a(f'v_mul_f32 {v(m+1)}, {v(m+1)}, {v(m+3)}')
        for d in range(4):
            u = UR + 4*f + d; m = TM + 4*d
            a(f'v_cvt_pk_bf16_f32 {v(u)}, {v(m)}, {v(m+1)}')
        a(f'buffer_store_dwordx4 {v(UR+4*f,4)}, {v(VU)}, s[{sW}:{sW+3}], s{sT} offen{stf}')
        if f < 3: a(f's_add_u32 s{sT}, s{sT}, {S32}')
    P.n = 8; P.stamp()
    if prof: a('s_waitcnt vmcnt(0)')
    P.stamp(); P.real(); P.finish(sW8, 4, 5)
    a.label('K2_END')
    a('s_endpgm')
    return dict(name=name, body=a.text(), grid=256, block=512, lds=max(KT_BYTES, 51200 + 8*9760), vgpr=256, agpr=0, sgpr=102 if prof else 64)
```

```python
from common import *

def build(name='k3_kernel', prof=False, LA=16, XSTEP=82, RING=24, CH=4, LA0=16):
    a = Asm()
    P = Prof(a, prof, 2)
    vm = VM(a)
    LANE, T0 = 0, 2
    L = v(LANE); t0, t1, t2, t3, t4 = (v(T0 + i) for i in range(5))
    sW, sX, sO = 8, 12, 16
    sW8, sXC, sSL, sT, sT2, sT3 = 20, 21, 22, 23, 24, 25
    sB, sRT, sJT, sML, sS1, sS2, sM0 = 26, 27, 28, 29, 30, 31, 32
    assert RING >= LA + CH and RING % CH == 0
    def ldsoff(k): return ((k // CH) % (RING // CH)) * CH * 4096 + (k % CH) * 1024
    XT = RING * 4096
    TT, XA = 64, 80
    FR = 32
    VL16, VML, RA, RB = 8, 9, 10, 11
    VXO = 12
    RA2, RB2, RA3, RB3 = 14, 15, 16, 17
    MLR = 112
    XR = 48
    NSTEP = 96
    a('s_cmp_ge_u32 s2, 256'); a('s_cbranch_scc1 K3_END')
    P.real(); P.stamp()
    a('s_load_dwordx2 s[4:5], s[0:1], 88'); a('s_load_dwordx2 s[6:7], s[0:1], 0'); a('s_load_dwordx2 s[18:19], s[0:1], 72')
    a(f'v_lshrrev_b32 {t0}, 6, v0'); a(f'v_and_b32 {L}, 63, v0')
    a(f'v_readfirstlane_b32 s{sW8}, {t0}')
    a(f's_and_b32 s{sXC}, s2, 7'); a(f's_lshr_b32 s{sSL}, s2, 3')
    a(f's_lshr_b32 s{sB}, s{sXC}, 2')
    a(f's_and_b32 s{sRT}, s{sXC}, 3'); a(f's_lshl_b32 s{sRT}, s{sRT}, 2'); a(f's_and_b32 s{sT}, s{sSL}, 3'); a(f's_add_u32 s{sRT}, s{sRT}, s{sT}')
    a(f's_lshr_b32 s{sJT}, s{sSL}, 2')
    a(f'v_lshlrev_b32 {v(VL16)}, 4, {L}')
    a(f's_lshl_b32 s{sT}, s{sB}, 5'); a(f's_lshl_b32 s{sT2}, s{sRT}, 1'); a(f's_add_u32 s{sT}, s{sT}, s{sT2}')
    a(f's_and_b32 s{sT3}, s{sW8}, 1')
    a(f's_add_u32 s{sT2}, s{sT}, s{sT3}')
    a(f's_lshl_b32 s{sML}, s{sT2}, 11'); a(f's_add_u32 s{sML}, s{sML}, {ML}')
    lR, lS = a.new('K3A'), a.new('K3B')
    a(f's_cmp_ge_u32 s{sW8}, 2'); a(f's_cbranch_scc1 {lR}')
    a(f's_lshl_b32 s{sT}, s{sJT}, 1'); a(f's_add_u32 s{sT}, s{sT}, s{sT3}')
    a(f's_mul_i32 s{sS1}, s{sT}, {S32}'); a(f's_add_u32 s{sS1}, s{sS1}, {WO2}')
    a(f's_lshl_b32 s{sT2}, s{sB}, 4'); a(f's_add_u32 s{sT}, s{sT}, s{sT2}'); a(f's_mul_i32 s{sS2}, s{sT}, {S64}'); a(f's_add_u32 s{sS2}, s{sS2}, {VT}')
    a(f's_branch {lS}')
    a.label(lR)
    a(f's_mul_i32 s{sS1}, s{sT2}, {S32}'); a(f's_add_u32 s{sS1}, s{sS1}, {UC}')
    a(f's_mul_i32 s{sS2}, s{sT2}, {S64}'); a(f's_add_u32 s{sS2}, s{sS2}, {PF}')
    a.label(lS)
    a(f's_mul_i32 s{sM0}, s{sW8}, {CH*1024}')
    a('s_waitcnt lgkmcnt(0)')
    srd(a, sW, 4, 5, WS_BYTES)
    def dma(k):
        src = sS1 if k < 32 else sS2
        if k % 4 == 0: a(f's_add_u32 m0, s{sM0}, {ldsoff(k)}')
        vm.issue(f'buffer_load_dwordx4 {v(VL16)}, s[{sW}:{sW+3}], s{src} offen offset:{(k%4)*1024} lds', ('f', k))
        if k % 4 == 3: a(f's_add_u32 s{src}, s{src}, 4096')
    for k in range(LA0): dma(k)
    P.stamp()
    a(f's_lshr_b32 s{sT}, s{sW8}, 1'); a(f's_mul_i32 s{sT}, s{sT}, {CH*1024}'); a(f'v_add_u32 {v(RA)}, s{sT}, {v(VL16)}')
    a(f's_and_b32 s{sT}, s{sW8}, 1'); a(f's_add_u32 s{sT}, s{sT}, 2'); a(f's_mul_i32 s{sT}, s{sT}, {CH*1024}'); a(f'v_add_u32 {v(RB)}, s{sT}, {v(VL16)}')
    a(f'v_add_u32 {v(RA2)}, 49152, {v(RA)}'); a(f'v_add_u32 {v(RB2)}, 49152, {v(RB)}'); a(f'v_add_u32 {v(RA3)}, 98304, {v(RA)}'); a(f'v_add_u32 {v(RB3)}, 98304, {v(RB)}')
    srd(a, sX, 6, 7, OUT_BYTES)
    a(f's_mov_b32 s{sO}, s18'); a(f's_mov_b32 s{sO+1}, s19'); a(f's_mov_b32 s{sO+2}, {OUT_BYTES}'); a(f's_mov_b32 s{sO+3}, {SRD3}')
    a(f'v_and_b32 {t0}, 31, {L}'); a(f'v_lshlrev_b32 {v(VML)}, 2, {t0}')
    a(f'v_lshrrev_b32 {t0}, 3, {L}'); a(f'v_and_b32 {t1}, 7, {L}'); a(f'v_xor_b32 {t2}, {t1}, {t0}')
    a(f's_lshl_b32 s{sT}, s{sW8}, 4'); a(f's_lshl_b32 s{sT2}, s{sRT}, 6'); a(f's_add_u32 s{sT}, s{sT}, s{sT2}')
    a(f'v_add_u32 {t0}, s{sT}, {t0}')
    a(f's_mul_i32 s{sT}, s{sB}, 1000'); a(f's_lshl_b32 s{sT2}, s{sJT}, 7')
    for k in range(2):
        a(f'v_add_u32 {t3}, {8*k}, {t0}'); a(f'v_add_u32 {t4}, s{sT}, {t3}'); a(f'v_lshlrev_b32 {t4}, 10, {t4}')
        a(f'v_lshl_add_u32 {t4}, {t2}, 4, {t4}'); a(f'v_add_u32 {t4}, s{sT2}, {t4}')
        a(f'v_cmp_gt_u32 vcc, 1000, {t3}'); a(f'v_mov_b32 {t3}, 0x7ffffff0')
        a(f'v_cndmask_b32 {v(VXO+k)}, {t3}, {t4}, vcc')

    def factors():
        o = []
        m = MLR; l = m + 8
        o += [f'v_max3_f32 {t0}, {v(m)}, {v(m+1)}, {v(m+2)}', f'v_max3_f32 {t1}, {v(m+3)}, {v(m+4)}, {v(m+5)}',
              f'v_max3_f32 {t0}, {t0}, {v(m+6)}, {v(m+7)}', f'v_max_f32 {t0}, {t0}, {t1}']
        o += [f'v_sub_f32 {v(m+t)}, {v(m+t)}, {t0}' for t in range(8)]
        o += [f'v_exp_f32 {v(m+t)}, {v(m+t)}' for t in range(8)]
        o += [f'v_mul_f32 {t1}, {v(m)}, {v(l)}', f'v_mul_f32 {t0}, {v(m+1)}, {v(l+1)}']
        for t in range(2, 8, 2):
            o += [f'v_fmac_f32 {t1}, {v(m+t)}, {v(l+t)}', f'v_fmac_f32 {t0}, {v(m+t+1)}, {v(l+t+1)}']
        o += [f'v_add_f32 {t1}, {t1}, {t0}', f'v_rcp_f32 {t1}, {t1}']
        o += [f'v_mul_f32 {v(m+t)}, {v(m+t)}, {t1}' for t in range(8)]
        return o
    def reads(k):
        se = k & 1; off = ldsoff(k); hi = off // 49152; off -= hi * 49152
        a(f'ds_read_b128 {v(FR + se*8, 4)}, {v((RA, RA2, RA3)[hi])} offset:{off}'); a(f'ds_read_b128 {v(FR + se*8 + 4, 4)}, {v((RB, RB2, RB3)[hi])} offset:{off}')
    issued = LA0
    vm.wait(('f', CH - 1)); a('s_barrier')
    P.stamp()
    reads(0)
    side = []
    for k in range(NSTEP):
        if k + 1 < NSTEP:
            if (k + 1) % CH == 0:
                vm.wait(('f', k + CH)); a('s_barrier')
                if k + 1 in (16, 32, 48, 64, 80): P.stamp()
            reads(k + 1)
            a('s_waitcnt lgkmcnt(2)')
        else:
            a('s_waitcnt lgkmcnt(0)')
        if k < 32: d, first = TT, k == 0
        else:
            tile = (k - 32) // 8; d, first = XA + 16*(tile & 1), (k - 32) % 8 == 0
            if first and tile >= 1:
                pass
        se = k & 1
        a(f'v_mfma_f32_32x32x16_bf16 {v(d,16)}, {v(FR + se*8, 4)}, {v(FR + se*8 + 4, 4)}, {"0" if first else v(d,16)}')
        if issued < NSTEP:
            dma(issued); issued += 1
            if issued < NSTEP and issued - (k + 1) < LA:
                dma(issued); issued += 1
        if k == 2:
            for tt in range(8):
                for q in range(2):
                    vm.issue(f'buffer_load_dword {v(MLR + q*8 + tt)}, {v(VML)}, s[{sW}:{sW+3}], s{sML} offen offset:{tt*256 + q*128}', 'ml')
        if k == 16:
            vm.wait('ml'); side = factors()
        if k == XSTEP:
            a(f's_lshl_b32 s{sT}, s{sW8}, 11')
            for kk in range(2):
                a(f's_add_u32 m0, s{sT}, {XT + 1024*kk}')
                vm.issue(f'buffer_load_dwordx4 {v(VXO+kk)}, s[{sX}:{sX+3}], 0 offen lds', 'x')
            a(f's_add_u32 m0, s{sM0}, {ldsoff((issued - 1) // 4 * 4)}')
        if k >= 42 and (k - 32) % 8 == 2:
            tp = (k - 32) // 8 - 1
            side += [f'v_fmac_f32 {v(TT+j)}, {v(XA + 16*(tp & 1) + j)}, {v(MLR + tp)}' for j in range(16)]
        for _ in range(min(4, len(side))): a(side.pop(0))
    assert not side
    P.stamp()
    for j in range(16): a(f'v_fmac_f32 {v(TT+j)}, {v(XA + 16 + j)}, {v(MLR + 7)}')
    A0 = TT
    for hh in range(2):
        for r in range(4):
            a(f'v_permlane32_swap_b32 {v(A0 + 8*hh + r)}, {v(A0 + 8*hh + 4 + r)}')
    a(f'v_and_b32 {t0}, 31, {L}'); a(f'v_lshrrev_b32 {t1}, 5, {L}'); a(f's_lshr_b32 s{sT}, s{sW8}, 1'); a(f's_lshl_b32 s{sT}, s{sT}, 2')
    a(f'v_or_b32 {t1}, s{sT}, {t1}'); a(f'v_and_b32 {t2}, 7, {t0}'); a(f'v_xor_b32 {t1}, {t1}, {t2}')
    a(f's_and_b32 s{sT}, s{sW8}, 1'); a(f's_lshl_b32 s{sT}, s{sT}, 12'); a(f's_add_u32 s{sT}, s{sT}, {XT}'); a(f'v_lshlrev_b32 {t0}, 7, {t0}'); a(f'v_add_u32 {t0}, s{sT}, {t0}')
    a(f'v_lshl_add_u32 {t2}, {t1}, 4, {t0}'); a(f'v_xor_b32 {t1}, 2, {t1}'); a(f'v_lshl_add_u32 {t1}, {t1}, 4, {t0}')
    a('s_waitcnt vmcnt(0)'); a('s_barrier')
    a(f'ds_read_b128 {v(XR,4)}, {t2}'); a(f'ds_read_b128 {v(XR+4,4)}, {t1}')
    a('s_waitcnt lgkmcnt(0)')
    for hh in range(2):
        for d in range(4):
            x = XR + 4*hh + d; c = A0 + 8*hh + 2*d
            a(f'v_lshlrev_b32 {t3}, 16, {v(x)}'); a(f'v_and_b32 {t4}, 0xffff0000, {v(x)}')
            a(f'v_add_f32 {v(c)}, {v(c)}, {t3}'); a(f'v_add_f32 {v(c+1)}, {v(c+1)}, {t4}')
            a(f'v_cvt_pk_bf16_f32 {v(x)}, {v(c)}, {v(c+1)}')
        a(f'ds_write_b128 {t2 if hh == 0 else t1}, {v(XR+4*hh,4)}')
    a('s_waitcnt lgkmcnt(0)'); a('s_barrier')
    P.stamp()
    a(f's_lshl_b32 s{sT}, s{sW8}, 11'); a(f's_add_u32 s{sT}, s{sT}, {XT}'); a(f'v_add_u32 {t0}, s{sT}, {v(VL16)}')
    a(f'ds_read_b128 {v(XR,4)}, {t0}'); a(f'ds_read_b128 {v(XR+4,4)}, {t0} offset:1024')
    a('s_waitcnt lgkmcnt(1)')
    a(f'buffer_store_dwordx4 {v(XR,4)}, {v(VXO)}, s[{sO}:{sO+3}], 0 offen')
    a('s_waitcnt lgkmcnt(0)')
    a(f'buffer_store_dwordx4 {v(XR+4,4)}, {v(VXO+1)}, s[{sO}:{sO+3}], 0 offen')
    P.stamp()
    if prof: a('s_waitcnt vmcnt(0)')
    P.stamp(); P.real(); P.finish(sW8, 4, 5)
    a.label('K3_END')
    a('s_endpgm')
    return dict(name=name, body=a.text(), grid=256, block=256, lds=XT + 8192, vgpr=128, agpr=0, sgpr=102 if prof else 64)
```

```python
from common import *

R = 3
STG = 40960
NST = 8
GC0 = -2.0 * 0.7978845608028654 * LOG2E
GC1 = GC0 * 0.044715

def gelu_block(a, y0, n, t0, vC):
    P2 = range(0, n, 2)
    for i in P2: a(f'v_pk_mul_f32 {v(t0+i,2)}, {v(y0+i,2)}, {v(y0+i,2)}')
    for i in P2: a(f'v_pk_fma_f32 {v(t0+i,2)}, {v(t0+i,2)}, {v(vC+2,2)}, {v(vC,2)}')
    for i in P2: a(f'v_pk_mul_f32 {v(t0+i,2)}, {v(t0+i,2)}, {v(y0+i,2)}')
    for i in range(n): a(f'v_exp_f32 {v(t0+i)}, {v(t0+i)}')
    for i in P2: a(f'v_pk_add_f32 {v(t0+i,2)}, {v(t0+i,2)}, {v(vC+4,2)}')
    for i in range(n): a(f'v_rcp_f32 {v(t0+i)}, {v(t0+i)}')
    for i in P2: a(f'v_pk_mul_f32 {v(y0+i,2)}, {v(y0+i,2)}, {v(t0+i,2)}')

def build(name='k1_kernel', prof=False, touch=False, xf=' nt', wf='', prio=0, stf=' sc1', rot=2, wmap=0, dwpf=1):
    a = Asm()
    P = Prof(a, prof, 0)
    ACC = 0
    AS, AG, AC = 48, 52, 56
    FR = 68
    ONES = 132
    AX, AXS, AW = 136, 140, 144
    VX0, VX1, VW = 146, 147, 148
    LANE, T0 = 151, 152
    def fr(st, what, i=0):
        b = FR + st * 32
        return {'x': b + 4 * i, 'xs': b + 16, 'w': b + 20 + 4 * i}[what]
    sX, sWs = 24, 28
    sB = [32, 36, 40]
    sW8, sWR, sWC, sRT, sCT, sFOLD = 44, 45, 46, 47, 48, 49
    sOX, sOW, sSW, sM0 = 50, [51, 52, 53], [54, 55, 56], 57
    sTY, sOB = [58, 59, 60], [61, 62, 63]
    sT, sT2, sT3, sC1 = 20, 21, 22, 23
    L = v(LANE); t0, t1, t2, t3, t4 = (v(T0 + i) for i in range(5))

    if wmap != 1:
        a('s_cmp_ge_u32 s2, 248'); a('s_cbranch_scc0 K1_GO')
        if dwpf:
            a('s_cmp_lg_u32 s2, 248'); a('s_cbranch_scc1 K1_IDLE')
            a('s_load_dwordx2 s[4:5], s[0:1], 48'); a('v_lshlrev_b32 v1, 7, v0'); a('s_waitcnt lgkmcnt(0)')
            srd(a, 8, 4, 5, 31 * 1024)
            a('buffer_load_dword v2, v1, s[8:11], 0 offen')
            a.label('K1_IDLE')
        a('s_branch K1_END')
    else:
        a('s_cmp_ge_u32 s2, 256'); a('s_cbranch_scc1 K1_OUT')
        a('s_and_b32 s20, s2, 7'); a('s_cmp_lt_u32 s20, 6'); a('s_cbranch_scc1 K1_GO')
        a('s_cmp_lt_u32 s2, 224'); a('s_cbranch_scc1 K1_GO')
        a.label('K1_OUT')
        a('s_branch K1_END')
    a.label('K1_GO')
    if prio: a('s_setprio 3')
    P.real(); P.stamp()
    a('s_load_dwordx16 s[4:19], s[0:1], 0')
    a('s_load_dwordx2 s[100:101], s[0:1], 64')
    a('s_load_dwordx2 s[98:99], s[0:1], 88')
    a(f'v_lshrrev_b32 {t0}, 6, v0'); a(f'v_and_b32 {L}, 63, v0')
    a(f'v_readfirstlane_b32 s{sW8}, {t0}')
    a(f's_and_b32 s{sT}, s2, 7'); a(f's_lshr_b32 s{sT2}, s2, 3')
    if wmap != 1:
        a(f's_cmp_ge_u32 s{sT2}, 28'); a(f's_cselect_b32 s{sFOLD}, 1, 0')
    else:
        a(f's_cmp_ge_u32 s{sT2}, 16'); a(f's_cselect_b32 s{sFOLD}, 1, 0'); a(f's_cmp_ge_u32 s{sT}, 6'); a(f's_cselect_b32 s{sFOLD}, s{sFOLD}, 0')
    a(f's_lshr_b32 s{sWR}, s{sW8}, 2'); a(f's_and_b32 s{sWC}, s{sW8}, 3')
    a(f's_lshl_b32 s{sM0}, s{sW8}, 10')
    lF, lD = a.new('K1F'), a.new('K1D')
    a(f's_cmp_eq_u32 s{sFOLD}, 1'); a(f's_cbranch_scc1 {lF}')
    if wmap == 0:
        a(f's_and_b32 s{sRT}, s{sT}, 3'); a(f's_lshl_b32 s{sRT}, s{sRT}, 2'); a(f's_and_b32 s{sT3}, s{sT2}, 3'); a(f's_add_u32 s{sRT}, s{sRT}, s{sT3}')
        a(f's_lshr_b32 s{sCT}, s{sT}, 2'); a(f's_mul_i32 s{sCT}, s{sCT}, 7'); a(f's_lshr_b32 s{sT3}, s{sT2}, 2'); a(f's_add_u32 s{sCT}, s{sCT}, s{sT3}')
    elif wmap == 2:
        a(f's_lshr_b32 s{sRT}, s{sT}, 1'); a(f's_lshl_b32 s{sRT}, s{sRT}, 2'); a(f's_and_b32 s{sT3}, s{sT2}, 3'); a(f's_add_u32 s{sRT}, s{sRT}, s{sT3}')
        a(f's_and_b32 s{sCT}, s{sT}, 1'); a(f's_mul_i32 s{sCT}, s{sCT}, 7'); a(f's_lshr_b32 s{sT3}, s{sT2}, 2'); a(f's_add_u32 s{sCT}, s{sCT}, s{sT3}')
    else:
        a(f's_and_b32 s{sRT}, s{sT2}, 15')
        a(f's_lshl_b32 s{sCT}, s{sT}, 1'); a(f's_lshr_b32 s{sT3}, s{sT2}, 4'); a(f's_add_u32 s{sCT}, s{sCT}, s{sT3}')
        a(f's_add_u32 s{sT3}, s{sT}, 6'); a(f's_cmp_ge_u32 s{sT}, 6'); a(f's_cselect_b32 s{sCT}, s{sT3}, s{sCT}')
    for j in range(3):
        bi = sOB[j]
        if j == 0:
            a(f's_lshl_b32 s{bi}, s{sCT}, 1'); a(f's_cmp_ge_u32 s{sCT}, 12'); a(f's_cselect_b32 s{bi}, 0, s{bi}')
        elif j == 1:
            a(f's_lshl_b32 s{bi}, s{sCT}, 1'); a(f's_add_u32 s{sT}, s{bi}, 1'); a(f's_add_u32 s{sT2}, s{bi}, 4')
            a(f's_cmp_ge_u32 s{sCT}, 12'); a(f's_cselect_b32 s{bi}, s{sT2}, s{sT}')
        else:
            a(f's_add_u32 s{sT}, s{sCT}, 32'); a(f's_add_u32 s{sT2}, s{sCT}, 16')
            a(f's_cmp_ge_u32 s{sCT}, 8'); a(f's_cselect_b32 s{sT}, s{sT2}, s{sT}')
            a(f's_lshl_b32 s{sT2}, s{sCT}, 1'); a(f's_add_u32 s{sT2}, s{sT2}, 5')
            a(f's_cmp_ge_u32 s{sCT}, 12'); a(f's_cselect_b32 s{bi}, s{sT2}, s{sT}')
        a(f's_lshr_b32 s{sT}, s{bi}, 3'); a(f's_and_b32 s{sT2}, s{bi}, 7')
        a(f's_cmp_ge_u32 s{sT}, 3'); a(f's_cselect_b32 s{sSW[j]}, 11, 10')
        a(f's_sub_u32 s{sTY[j]}, s{sT}, 2'); a(f's_max_i32 s{sTY[j]}, s{sTY[j]}, 0')
        if j == 0:
            a(f's_cmp_ge_u32 s{sCT}, 12'); a(f's_cselect_b32 s{sTY[j]}, 3, s{sTY[j]}')
        a(f's_lshl_b32 s{sOW[j]}, s{sT2}, 7'); a(f's_cmp_eq_u32 s{sT}, 4'); a(f's_cselect_b32 s{sT3}, 1024, 0'); a(f's_add_u32 s{sOW[j]}, s{sOW[j]}, s{sT3}')
    a(f's_lshr_b32 s{sT3}, s{sRT}, 3'); a(f's_mul_i32 s{sT3}, s{sT3}, 1000')
    a(f's_and_b32 s{sT}, s{sRT}, 7'); a(f's_lshl_b32 s{sT}, s{sT}, 7'); a(f's_add_u32 s{sOX}, s{sT3}, s{sT}'); a(f's_lshl_b32 s{sOX}, s{sOX}, 10')
    a(f's_branch {lD}')
    a.label(lF)
    if wmap != 1:
        a(f's_sub_u32 s{sCT}, s{sT2}, 28')
        a(f's_and_b32 s{sRT}, s{sT}, 3')
        a(f's_lshr_b32 s{sT3}, s{sT}, 2')
    else:
        a(f's_sub_u32 s{sT2}, s{sT2}, 16'); a(f's_mul_i32 s{sRT}, s{sT2}, 21846'); a(f's_lshr_b32 s{sRT}, s{sRT}, 16')
        a(f's_mul_i32 s{sT3}, s{sRT}, 3'); a(f's_sub_u32 s{sCT}, s{sT2}, s{sT3}')
        a(f's_sub_u32 s{sT3}, s{sT}, 6')
    a(f's_lshl_b32 s{sOX}, s{sRT}, 17')
    for j in range(3):
        a(f's_mov_b32 s{sSW[j]}, 10')
        a(f's_mul_i32 s{sOB[j]}, s{sCT}, 3'); a(f's_add_u32 s{sOB[j]}, s{sOB[j]}, {j}')
        a(f's_cmp_ge_u32 s{sOB[j]}, 8'); a(f's_cselect_b32 s{sTY[j]}, 3, 0'); a(f's_min_u32 s{sOB[j]}, s{sOB[j]}, 7')
        a(f's_lshl_b32 s{sOW[j]}, s{sOB[j]}, 7'); a(f's_lshl_b32 s{sT}, s{sT3}, 19'); a(f's_add_u32 s{sOW[j]}, s{sOW[j]}, s{sT}')
    a(f's_add_u32 s{sFOLD}, s{sT3}, 1')
    a.label(lD)
    a(f'v_lshrrev_b32 {t0}, 3, {L}')
    a(f'v_and_b32 {t1}, 7, {L}')
    a(f'v_lshrrev_b32 {t2}, 1, {t0}')
    a(f'v_xor_b32 {t3}, {t2}, {t1}')
    a(f's_lshl_b32 s{sT}, s{sW8}, 4')
    a(f'v_add_u32 {t4}, s{sT}, {t0}'); a(f'v_lshlrev_b32 {t4}, 10, {t4}'); a(f'v_add_u32 {t4}, s{sOX}, {t4}')
    a(f's_mov_b32 s{sOX}, 0')
    a(f'v_lshl_add_u32 {v(VX0)}, {t3}, 4, {t4}')
    a(f'v_xor_b32 {t3}, 4, {t3}'); a(f'v_add_u32 {t4}, 8192, {t4}')
    a(f'v_lshl_add_u32 {v(VX1)}, {t3}, 4, {t4}')
    a(f'v_and_b32 {t2}, 1, {t2}'); a(f's_and_b32 s{sT}, s{sW8}, 1'); a(f's_lshl_b32 s{sT}, s{sT}, 1')
    a(f'v_or_b32 {t2}, s{sT}, {t2}'); a(f'v_lshlrev_b32 {t2}, 1, {t2}'); a(f'v_xor_b32 {t2}, {t2}, {t1}'); a(f'v_lshlrev_b32 {t2}, 4, {t2}')
    a(f's_lshl_b32 s{sT}, s{sW8}, 3'); a(f'v_add_u32 {t0}, s{sT}, {t0}')
    for j in range(3):
        a(f'v_lshlrev_b32 {v(VW+j)}, s{sSW[j]}, {t0}'); a(f'v_add_u32 {v(VW+j)}, {v(VW+j)}, {t2}'); a(f'v_add_u32 {v(VW+j)}, s{sOW[j]}, {v(VW+j)}')
        a(f's_add_u32 s{sSW[j]}, s{sSW[j]}, 6')
    sKS = sC1
    if rot:
        a(f's_lshr_b32 s{sT2}, s2, 3'); a(f's_and_b32 s{sT}, s{sT2}, 3'); a(f's_lshl_b32 s{sT}, s{sT}, 1'); a(f's_lshr_b32 s{sT2}, s{sT2}, 2')
        a(f's_add_u32 s{sT}, s{sT}, s{sT2}'); a(f's_and_b32 s{sT2}, s2, 1'); a(f's_add_u32 s{sT}, s{sT}, s{sT2}')
        a(f's_mul_i32 s{sT2}, s{sCT}, 3'); a(f's_lshl_b32 s{sT3}, s{sRT}, 1'); a(f's_add_u32 s{sT2}, s{sT2}, s{sT3}')
        a(f's_cmp_lg_u32 s{sFOLD}, 0'); a(f's_cselect_b32 s{sKS}, s{sT2}, s{sT}'); a(f's_and_b32 s{sKS}, s{sKS}, 7')
        if rot == 2:
            a(f's_lshr_b32 s{sT2}, s2, 3'); a(f's_lshr_b32 s{sT}, s{sT2}, 2'); a(f's_add_u32 s{sT}, s{sT}, s{sT2}')
            a(f's_and_b32 s{sT}, s{sT}, 1'); a(f's_lshl_b32 s{sKS}, s{sT}, 2')
        if rot == 4:
            a(f's_add_u32 s{sT}, s{sRT}, s{sCT}'); a(f's_and_b32 s{sT}, s{sT}, 1'); a(f's_lshl_b32 s{sKS}, s{sT}, 2')
        if rot == 3:
            a(f's_lshr_b32 s{sT2}, s2, 3'); a(f's_lshr_b32 s{sT}, s{sT2}, 2'); a(f's_and_b32 s{sT2}, s{sT2}, 3'); a(f's_add_u32 s{sT}, s{sT}, s{sT2}')
            a(f's_mul_i32 s{sT2}, s{sT}, 21846'); a(f's_lshr_b32 s{sT2}, s{sT2}, 16'); a(f's_mul_i32 s{sT2}, s{sT2}, 3'); a(f's_sub_u32 s{sT}, s{sT}, s{sT2}')
            a(f's_mul_i32 s{sKS}, s{sT}, 3')
    else:
        a(f's_mov_b32 s{sKS}, 0')
    a(f's_lshl_b32 s{sOX}, s{sKS}, 7')

    def dma_groups(st):
        base = (st % R) * STG
        g = []
        g.append(([f's_lshl_b32 s{sT}, s{sM0}, 1', f's_add_u32 m0, s{sT}, {base}'],
                  [f'buffer_load_dwordx4 {v(VX0)}, s[{sX}:{sX+3}], s{sOX} offen{xf} lds']))
        g.append(([f's_add_u32 m0, m0, 1024'],
                  [f'buffer_load_dwordx4 {v(VX1)}, s[{sX}:{sX+3}], s{sOX} offen{xf} lds']))
        for j in range(3):
            post = [f'buffer_load_dwordx4 {v(VW+j)}, s[{sB[j]}:{sB[j]+3}], s{sOW[j]} offen{wf} lds']
            if j == 2: post += [f's_add_u32 s{sKS}, s{sKS}, 1', f's_and_b32 s{sKS}, s{sKS}, 7', f's_lshl_b32 s{sOX}, s{sKS}, 7']
            g.append(([f's_lshl_b32 s{sOW[j]}, s{sKS}, s{sSW[j]}', f's_add_u32 m0, s{sM0}, {base + 16384 + j*8192}'], post))
        return g
    def dma(st):
        for pre, post in dma_groups(st):
            for l in pre + post: a(l)
    a('s_waitcnt lgkmcnt(0)')
    lF2, lD2 = a.new('K1F2'), a.new('K1D2')
    a(f's_mov_b32 s{sWs}, s98'); a(f's_mov_b32 s{sWs+1}, s99'); a(f's_mov_b32 s{sWs+2}, {WS_BYTES}'); a(f's_mov_b32 s{sWs+3}, {SRD3}')
    a(f's_mov_b32 s{sX+3}, {SRD3}')
    for j in range(3): a(f's_mov_b32 s{sB[j]+3}, {SRD3}')
    a(f's_cmp_lg_u32 s{sFOLD}, 0'); a(f's_cbranch_scc1 {lF2}')
    a(f's_mov_b32 s{sX}, s4'); a(f's_mov_b32 s{sX+1}, s5'); a(f's_mov_b32 s{sX+2}, {OUT_BYTES}')
    for j in range(3):
        b = sB[j]
        a(f's_lshr_b32 s{sT}, s{sOB[j]}, 3')
        a(f's_cmp_eq_u32 s{sT}, 1'); a(f's_cselect_b32 s{b}, s8, s6'); a(f's_cselect_b32 s{b+1}, s9, s7')
        a(f's_cmp_eq_u32 s{sT}, 2'); a(f's_cselect_b32 s{b}, s10, s{b}'); a(f's_cselect_b32 s{b+1}, s11, s{b+1}')
        a(f's_cmp_ge_u32 s{sT}, 3'); a(f's_cselect_b32 s{b}, s14, s{b}'); a(f's_cselect_b32 s{b+1}, s15, s{b+1}')
        a(f's_mov_b32 s{b+2}, {1 << 19}'); a(f's_cselect_b32 s{b+2}, {1 << 20}, s{b+2}')
    a(f's_branch {lD2}')
    a.label(lF2)
    a(f's_cmp_eq_u32 s{sFOLD}, 2'); a(f's_cselect_b32 s{sX}, s18, s12'); a(f's_cselect_b32 s{sX+1}, s19, s13')
    a(f's_mov_b32 s{sX+2}, {1 << 19}')
    for j in range(3):
        b = sB[j]
        a(f's_mov_b32 s{b}, s100'); a(f's_mov_b32 s{b+1}, s101'); a(f's_mov_b32 s{b+2}, {1 << 20}')
    a.label(lD2)
    TCH = T0 + 5
    if touch:
        lW, lT = a.new('K1TW'), a.new('K1TD')
        a(f's_mov_b32 s92, s{sX}'); a(f's_mov_b32 s93, s{sX+1}'); a(f's_mov_b32 s94, s{sX+2}'); a(f's_mov_b32 s95, {SRD3}')
        a(f'v_mov_b32 {v(TCH)}, {v(VX0)}')
        a(f's_lshr_b32 s{sT2}, s2, 3')
        a(f's_cmp_ge_u32 s{sW8}, 2'); a(f's_cbranch_scc1 {lW}')
        a(f's_lshr_b32 s{sT2}, s{sT2}, 2'); a(f's_cmp_lg_u32 s{sFOLD}, 0'); a(f's_cselect_b32 s{sT2}, s{sCT}, s{sT2}')
        a(f's_add_u32 s{sT2}, s{sT2}, 1'); a(f's_lshl_b32 s{sT2}, s{sT2}, 7')
        a(f'v_and_b32 {t0}, 0xfffffc00, {v(VX0)}')
        a(f'v_lshrrev_b32 {t1}, 3, {L}'); a(f's_lshl_b32 s{sT}, s{sW8}, 4'); a(f'v_add_u32 {t1}, s{sT}, {t1}'); a(f'v_lshlrev_b32 {t1}, 10, {t1}')
        a(f'v_sub_u32 {t0}, {t0}, {t1}')
        a(f's_lshl_b32 s{sT}, s{sW8}, 6'); a(f'v_add_u32 {t1}, s{sT}, {L}'); a(f'v_lshl_add_u32 {t0}, {t1}, 10, {t0}')
        a(f'v_add_u32 {v(TCH)}, s{sT2}, {t0}')
        a(f's_branch {lT}')
        a.label(lW)
        a(f's_and_b32 s{sT2}, s{sT2}, 3'); a(f's_cmp_lg_u32 s{sFOLD}, 0'); a(f's_cselect_b32 s{sT2}, s{sRT}, s{sT2}'); a(f's_and_b32 s{sT2}, s{sT2}, 3')
        a(f's_mul_i32 s{sT2}, s{sT2}, 96'); a(f's_and_b32 s{sT}, s{sW8}, 1'); a(f's_mul_i32 s{sT}, s{sT}, 48'); a(f's_add_u32 s{sT2}, s{sT2}, s{sT}'); a(f's_add_u32 s{sT2}, s{sT2}, 128')
        a(f'v_min_u32 {t0}, 47, {L}'); a(f'v_add_u32 {t0}, s{sT2}, {t0}')
        a(f's_sub_u32 s{sT}, s{sW8}, 2'); a(f's_lshr_b32 s{sT}, s{sT}, 1')
        for j in range(3):
            lj = a.new('K1TJ')
            a(f's_cmp_lg_u32 s{sT}, {j}'); a(f's_cbranch_scc1 {lj}')
            a(f's_lshr_b32 s{sT2}, s{sSW[j]}, 6'); a(f'v_mul_lo_u32 {t0}, {t0}, s{sT2}'); a(f'v_add_u32 {v(TCH)}, s{sOW[j]}, {t0}')
            a(f's_mov_b32 s92, s{sB[j]}'); a(f's_mov_b32 s93, s{sB[j]+1}'); a(f's_mov_b32 s94, s{sB[j]+2}'); a(f's_mov_b32 s95, {SRD3}')
            a.label(lj)
        a.label(lT)
    dma(0); a('s_barrier'); dma(1)
    if touch: a(f'buffer_load_dword {v(TCH+1)}, {v(TCH)}, s[92:95], 0 offen')
    if prio:
        a('s_setprio 0')
        if prio == 1:
            lp = a.new('K1P')
            a(f's_cmp_lt_u32 s{sW8}, 4'); a(f's_cbranch_scc1 {lp}'); a('s_setprio 1'); a.label(lp)
    P.stamp()

    a(f'v_and_b32 {t0}, 15, {L}'); a(f'v_lshrrev_b32 {t1}, 4, {L}')
    a(f'v_lshrrev_b32 {t2}, 1, {t0}'); a(f'v_xor_b32 {t2}, {t2}, {t1}')
    a(f'v_lshlrev_b32 {t2}, 4, {t2}'); a(f'v_lshl_add_u32 {t2}, {t0}, 7, {t2}')
    a(f's_lshl_b32 s{sT}, s{sWR}, 13')
    a(f'v_add_u32 {v(AX)}, s{sT}, {t2}'); a(f'v_xor_b32 {v(AX+1)}, 64, {v(AX)}')
    a(f's_lshl_b32 s{sT}, s{sWC}, 11')
    a(f'v_add_u32 {v(AXS)}, s{sT}, {v(AX)}'); a(f'v_add_u32 {v(AXS+1)}, s{sT}, {v(AX+1)}')
    for b in (AX, AXS):
        a(f'v_add_u32 {v(b+2)}, {2*STG}, {v(b)}'); a(f'v_add_u32 {v(b+3)}, {2*STG}, {v(b+1)}')
    a(f'v_bfe_u32 {t2}, {L}, 2, 2')
    a(f'v_lshl_add_u32 {t3}, {t1}, 3, {t2}'); a(f'v_lshlrev_b32 {t3}, 7, {t3}')
    a(f'v_lshrrev_b32 {t2}, 1, {t2}'); a(f'v_and_b32 {t4}, 1, {t1}'); a(f'v_lshl_or_b32 {t2}, {t4}, 1, {t2}'); a(f'v_lshlrev_b32 {t2}, 1, {t2}')
    a(f'v_bfe_u32 {t4}, {L}, 1, 1'); a(f's_lshl_b32 s{sT}, s{sWC}, 1'); a(f'v_or_b32 {t4}, s{sT}, {t4}')
    a(f'v_xor_b32 {t2}, {t2}, {t4}'); a(f'v_lshl_add_u32 {t3}, {t2}, 4, {t3}')
    a(f'v_and_b32 {t4}, 1, {L}'); a(f'v_lshl_add_u32 {t3}, {t4}, 3, {t3}')
    a(f'v_add_u32 {v(AW)}, 16384, {t3}'); a(f'v_add_u32 {v(AW+1)}, {16384 + 2*STG}, {t3}')
    ST, CS, GSL, GTL = 0, 1024, 4096, 8192
    A_STW, A_CSW, A_CSR, A_STR, VA, VG, VS, VC0, VJ3, VGA, VGL, VTS = range(158, 170)
    a(f'v_and_b32 {t0}, 15, {L}'); a(f'v_lshrrev_b32 {t1}, 4, {L}')
    a(f'v_and_b32 {v(VJ3)}, 3, {t0}')
    a(f's_lshl_b32 s{sT}, s{sW8}, 4'); a(f'v_add_u32 {t2}, s{sT}, {t0}'); a(f'v_lshlrev_b32 {v(A_STW)}, 3, {t2}')
    a(f'v_lshlrev_b32 {t3}, 4, {t1}'); a(f's_mul_i32 s{sT}, s{sW8}, 192'); a(f'v_add_u32 {v(A_CSW)}, s{sT}, {t3}')
    a(f's_mul_i32 s{sT}, s{sWC}, 192'); a(f'v_add_u32 {v(A_CSR)}, s{sT}, {t3}')
    a(f's_lshl_b32 s{sT}, s{sWR}, 9'); a(f'v_lshl_add_u32 {v(A_STR)}, {t0}, 3, s{sT}')
    a(f'v_lshlrev_b32 {v(VA)}, 4, {L}')
    a(f'v_and_b32 {t2}, 1, {t1}'); a(f'v_lshl_add_u32 {t2}, {t2}, 4, {t0}')
    a(f'v_lshrrev_b32 {t3}, 1, {t1}')
    a(f's_lshl_b32 s{sT}, s{sWC}, 1'); a(f'v_or_b32 {t4}, s{sT}, {t3}'); a(f'v_and_b32 {v(VG)}, 7, {t0}'); a(f'v_xor_b32 {t4}, {t4}, {v(VG)}')
    a(f'v_lshlrev_b32 {t4}, 4, {t4}'); a(f'v_lshl_add_u32 {v(VG)}, {t2}, 7, {t4}')
    a(f's_lshl_b32 s{sT}, s{sWR}, 13'); a(f'v_add_u32 {v(VG)}, s{sT}, {v(VG)}')
    a(f'v_lshlrev_b32 {v(VS)}, 3, {t2}'); a(f'v_lshl_add_u32 {v(VS)}, {t3}, 2, {v(VS)}')
    a(f's_lshl_b32 s{sT}, s{sWC}, 10'); a(f's_lshl_b32 s{sT2}, s{sWR}, 9'); a(f's_add_u32 s{sT}, s{sT}, s{sT2}'); a(f'v_add_u32 {v(VS)}, s{sT}, {v(VS)}')
    a(f'v_mov_b32 {v(VC0)}, {f32(GC0)}')
    a(f'v_lshrrev_b32 {t2}, 3, {L}'); a(f'v_and_b32 {t3}, 7, {L}'); a(f'v_xor_b32 {t4}, {t3}, {t2}')
    a(f'v_lshlrev_b32 {t4}, 4, {t4}'); a(f'v_lshl_add_u32 {t4}, {t2}, 7, {t4}'); a(f's_lshl_b32 s{sT}, s{sW8}, 11'); a(f'v_add_u32 {v(VGL)}, s{sT}, {t4}')
    a(f'v_lshlrev_b32 {t2}, 10, {t2}'); a(f'v_lshl_add_u32 {v(VGA)}, {t3}, 4, {t2}')
    a(f's_lshl_b32 s{sT}, s{sW8}, 8'); a(f'v_lshl_add_u32 {v(VTS)}, {L}, 2, s{sT}')
    a(f'v_lshrrev_b32 {t3}, 2, {t0}'); a(f'v_cmp_eq_u32 s[94:95], {t3}, {t1}'); a(f'v_cmp_eq_u32 s[96:97], 0, {t0}')
    for i in range(4): a(f'v_mov_b32 {v(ONES+i)}, 0x3f803f80')
    for i in range(AC, AC+12): a(f'v_mov_b32 {v(i)}, 0')

    def reads(u, stats):
        st, h = u >> 1, u & 1
        r = st % R; hi = 1 if r == 2 else 0; off = (r & 1) * STG if r < 2 else 0; se = u & 1
        out = []
        for s_ in range(4):
            out.append(f'ds_read_b128 {v(fr(se,"x",s_),4)}, {v(AX + 2*hi + h)} offset:{off + s_*2048}')
        if stats: out.append(f'ds_read_b128 {v(fr(se,"xs"),4)}, {v(AXS + 2*hi + h)} offset:{off}')
        for j in range(3):
            for e in range(2):
                out.append(f'ds_read_b64_tr_b16 {v(fr(se,"w",j)+2*e,2)}, {v(AW + hi)} offset:{off + j*8192 + h*4096 + e*512}')
        return out
    def mfmas(u, wr):
        se = u & 1; out = []
        first = (u == 0)
        mm = lambda d, x, y, z=False: f'v_mfma_f32_16x16x32_bf16 {v(d,4)}, {v(x,4)}, {v(y,4)}, {"0" if z else v(d,4)}'
        for j in range(3):
            for s_ in range(4):
                d = ACC + (j*4+s_)*4
                out.append(mm(d, fr(se,'w',j), fr(se,'x',s_), first) if wr < 2 else mm(d, fr(se,'x',s_), fr(se,'w',j), first))
        if wr < 2:
            out.insert(4, mm(AS, ONES, fr(se,'xs'), first))
            out.insert(9, mm(AG, fr(se,'xs'), fr(se,'xs'), first))
            for j in range(3):
                if (j + u + wr) % 2 == 0: out.append(mm(AC + 4*j, fr(se,'w',j), ONES))
        return out

    TR = FR
    def stats_items():
        d, mean, var_ = v(TR), v(TR+2), v(TR+3)
        o = []
        o.append(f'v_cmp_eq_u32 vcc, 1, {v(VJ3)}\nv_cndmask_b32 {d}, {v(AG)}, {v(AG+1)}, vcc')
        o.append(f'v_cmp_eq_u32 vcc, 2, {v(VJ3)}\nv_cndmask_b32 {d}, {d}, {v(AG+2)}, vcc')
        o.append(f'v_cmp_eq_u32 vcc, 3, {v(VJ3)}\nv_cndmask_b32 {d}, {d}, {v(AG+3)}, vcc')
        o.append(f's_mov_b32 s{sT2}, {f32(1/512)}\nv_mul_f32 {mean}, s{sT2}, {v(AS)}\nv_mul_f32 {d}, s{sT2}, {d}')
        o.append(f'v_fma_f32 {var_}, -{mean}, {mean}, {d}\ns_mov_b32 s{sT2}, {f32(1e-5)}')
        o.append(f'v_max_f32 {var_}, 0, {var_}\nv_add_f32 {var_}, s{sT2}, {var_}')
        o.append(f'v_rsq_f32 {var_}, {var_}\nv_sub_f32 {mean}, 0, {mean}')
        o.append(f's_mov_b64 exec, s[96:97]\n' + '\n'.join(f'ds_write_b128 {v(A_CSW)}, {v(AC+4*j,4)} offset:{CS + j*64}' for j in range(3)) + '\ns_mov_b64 exec, -1')
        o.append(f's_mov_b64 exec, s[94:95]\nds_write_b64 {v(A_STW)}, {v(TR+2,2)} offset:{ST}\ns_mov_b64 exec, -1')
        return o
    a(f's_waitcnt vmcnt({6 if touch else 5})'); a('s_barrier')
    P.stamp()
    labs = [a.new('K1V') for _ in range(3)]
    lE, lEF = a.new('K1EPI'), a.new('K1EPF')
    a(f's_cmp_lg_u32 s{sFOLD}, 0'); a(f's_cbranch_scc1 {labs[2]}')
    a(f's_cmp_eq_u32 s{sWR}, 1'); a(f's_cbranch_scc1 {labs[1]}')
    for var in range(3):
        a.label(labs[var])
        stats = var < 2
        for l in reads(0, stats): a(l)
        pend = dma_groups(2)
        issued = 3
        for u in range(2*NST):
            st = u >> 1
            if u & 1 and st + 1 < NST:
                assert not pend
                a(f's_waitcnt vmcnt({5*(issued - (st+2)) + (1 if touch and st == 0 else 0)}) lgkmcnt(0)')
                a('s_barrier')
                if st in (1, 3, 5):
                    n0 = P.n; P.n = 4 + st // 2; P.stamp(); P.n = n0
                if issued < NST:
                    pend = dma_groups(issued); issued += 1
            else:
                a('s_waitcnt lgkmcnt(0)')
            rd = reads(u + 1, stats) if u + 1 < 2*NST else []
            mf = mfmas(u, var)
            quota = len(pend) if (u == 0 or not (u & 1)) else min(3, len(pend))
            last = (u == 2*NST - 1) and var < 2
            if last:
                mf = [m for m in mf if m.split()[1].startswith(('v[48:', 'v[52:', 'v[56:', 'v[60:', 'v[64:'))] + [m for m in mf if not m.split()[1].startswith(('v[48:', 'v[52:', 'v[56:', 'v[60:', 'v[64:'))]
                items = stats_items(); nst_ = len(mf) - 12
                for i, m in enumerate(mf):
                    a(m)
                    if i >= nst_ + 2 and items: a(items.pop(0))
                for it_ in items: a(it_)
                continue
            n = max(len(rd), len(mf))
            slots = [1 + (k * (len(mf) - 1)) // quota for k in range(quota)] if quota else []
            post = None
            for i in range(n):
                if i in slots:
                    pre, post = pend.pop(0)
                    for l in pre: a(l)
                if i < len(mf): a(mf[i])
                if post:
                    for l in post: a(l)
                    post = None
                if i < len(rd): a(rd[i])
        if var == 0: a(f's_branch {lE}')
        if var == 1: a(f's_branch {lE}')
    P.n = 7; P.stamp()
    PK = FR
    a(f'v_and_b32 {t0}, 15, {L}'); a(f'v_lshrrev_b32 {t1}, 4, {L}')
    a(f's_and_b32 s{sT}, s{sWC}, 1'); a(f's_lshl_b32 s{sT}, s{sT}, 4')
    a(f'v_add_u32 {t2}, s{sT}, {t0}'); a(f'v_lshrrev_b32 {t3}, 1, {t1}'); a(f'v_lshl_add_u32 {t2}, {t3}, 5, {t2}'); a(f'v_lshlrev_b32 {t2}, 4, {t2}')
    a(f'v_and_b32 {t4}, 1, {t1}'); a(f'v_lshl_add_u32 {t2}, {t4}, 3, {t2}')
    a(f's_cmp_eq_u32 s{sFOLD}, 2'); a(f's_mov_b32 s{sT3}, {WO1}'); a(f's_cselect_b32 s{sT3}, {WO2}, s{sT3}')
    a(f's_lshl_b32 s{sT}, s{sRT}, 3'); a(f's_lshl_b32 s{sT2}, s{sWR}, 2'); a(f's_add_u32 s{sT}, s{sT}, s{sT2}'); a(f's_lshl_b32 s{sT}, s{sT}, 10')
    a(f's_add_u32 s{sT3}, s{sT3}, s{sT}')
    for j in range(3):
        lS = a.new('K1FS')
        a(f's_cmp_eq_u32 s{sTY[j]}, 3'); a(f's_cbranch_scc1 {lS}')
        a(f's_lshl_b32 s{sT}, s{sOB[j]}, 1'); a(f's_lshr_b32 s{sT2}, s{sWC}, 1'); a(f's_add_u32 s{sT}, s{sT}, s{sT2}'); a(f's_mul_i32 s{sT}, s{sT}, {S32}')
        a(f's_add_u32 s{sT}, s{sT}, s{sT3}')
        for s_ in range(4):
            b = ACC + (j*4+s_)*4; p = PK + 2*s_
            a(f'v_cvt_pk_bf16_f32 {v(p)}, {v(b)}, {v(b+1)}'); a(f'v_cvt_pk_bf16_f32 {v(p+1)}, {v(b+2)}, {v(b+3)}')
            a(f'buffer_store_dwordx2 {v(p,2)}, {t2}, s[{sWs}:{sWs+3}], s{sT} offen offset:{s_*1024}{stf}')
        a.label(lS)
    a('s_branch K1_FIN')

    a.label(lE)
    P.n = 7; P.stamp()
    a('s_waitcnt lgkmcnt(0)'); a('s_barrier')
    P.stamp()
    STA = TR + 12
    for s_ in range(4): a(f'ds_read_b64 {v(STA+2*s_,2)}, {v(A_STR)} offset:{ST + s_*128}')
    for j in range(3):
        a(f'ds_read_b128 {v(AC+4*j,4)}, {v(A_CSR)} offset:{CS + j*64}')
        a(f'ds_read_b128 {v(TR+4*j,4)}, {v(A_CSR)} offset:{CS + 768 + j*64}')
    sRB = sM0
    a(f's_lshl_b32 s{sRB}, s{sRT}, 2'); a(f's_lshl_b32 s{sT}, s{sWR}, 1'); a(f's_add_u32 s{sRB}, s{sRB}, s{sT}')
    GC = TR + 48
    for i, c in enumerate((GC0, GC0, GC1, GC1, 1.0, 1.0)): a(f'v_mov_b32 {v(GC+i)}, {f32(c)}')
    a('s_waitcnt lgkmcnt(0)')
    for i in range(12): a(f'v_add_f32 {v(AC+i)}, {v(AC+i)}, {v(TR+i)}')
    a(f'v_and_b32 {t0}, 15, {L}'); a(f'v_lshrrev_b32 {t1}, 4, {L}')
    PK = TR + 24
    GT = TR + 40
    def pack(j, pair, p):
        b = ACC + (j*4 + 2*pair)*4
        a(f'v_cvt_pk_bf16_f32 {v(p)}, {v(b)}, {v(b+1)}'); a(f'v_cvt_pk_bf16_f32 {v(p+1)}, {v(b+2)}, {v(b+3)}')
        a(f'v_cvt_pk_bf16_f32 {v(p+2)}, {v(b+4)}, {v(b+5)}'); a(f'v_cvt_pk_bf16_f32 {v(p+3)}, {v(b+6)}, {v(b+7)}')
        a(f'v_permlane16_swap_b32 {v(p)}, {v(p+2)}'); a(f'v_permlane16_swap_b32 {v(p+1)}, {v(p+3)}')
    for j in range(3):
        lN, lG, lFS = a.new('K1N'), a.new('K1G'), a.new('K1FS')
        ty, bi = sTY[j], sOB[j]
        if j == 0:
            a(f's_cmp_eq_u32 s{ty}, 3'); a(f's_cbranch_scc1 {lN}')
        for s_ in range(4):
            for r in (0, 2):
                x = ACC + (j*4+s_)*4 + r
                a(f'v_pk_fma_f32 {v(x,2)}, {v(STA+2*s_,2)}, {v(AC+4*j+r,2)}, {v(x,2)} op_sel_hi:[0,1,1]')
        for s_ in range(4):
            for r in (0, 2):
                x = ACC + (j*4+s_)*4 + r
                a(f'v_pk_mul_f32 {v(x,2)}, {v(x,2)}, {v(STA+2*s_,2)} op_sel:[0,1] op_sel_hi:[1,1]')
        if j > 0:
            if j == 1:
                a(f's_cmp_eq_u32 s{ty}, 0'); a(f's_cbranch_scc1 {lFS}')
            for h in range(2):
                gelu_block(a, ACC + j*16 + 8*h, 8, GT, GC)
            if j == 2:
                P.stamp()
                a(f's_cmp_eq_u32 s{ty}, 2'); a(f's_cbranch_scc1 {lG}')
        a.label(lFS)
        a(f's_lshr_b32 s{sT}, s{bi}, 3'); a(f's_mul_i32 s{sT}, s{sT}, {REG}')
        if QF: a(f's_add_u32 s{sT}, s{sT}, {QF}')
        a(f's_and_b32 s{sT2}, s{bi}, 7'); a(f's_lshl_b32 s{sT2}, s{sT2}, 2'); a(f's_add_u32 s{sT2}, s{sT2}, s{sWC}'); a(f's_lshl_b32 s{sT2}, s{sT2}, 10')
        a(f's_add_u32 s{sT}, s{sT}, s{sT2}'); a(f's_mul_i32 s{sT2}, s{sRB}, {S32}'); a(f's_add_u32 s{sT}, s{sT}, s{sT2}')
        for pair in range(2):
            p = PK + 4*pair
            pack(j, pair, p)
            if pair: a(f's_add_u32 s{sT}, s{sT}, {S32}')
            a(f'buffer_store_dwordx4 {v(p,4)}, {v(VA)}, s[{sWs}:{sWs+3}], s{sT} offen{stf}')
        if j == 2:
            a(f's_branch {lN}')
            a.label(lG)
            a(f's_and_b32 s{sT3}, s{bi}, 7')
            sGS = sC1
            a(f's_lshl_b32 s{sGS}, s{sT3}, 14'); a(f's_add_u32 s{sGS}, s{sGS}, {GS}')
            a(f's_lshl_b32 s{sT}, s{sRT}, 7'); a(f's_lshl_b32 s{sT2}, s{sW8}, 4'); a(f's_add_u32 s{sT}, s{sT}, s{sT2}'); a(f's_lshl_b32 s{sT}, s{sT}, 10')
            a(f's_lshl_b32 s{sT2}, s{sT3}, 7'); a(f's_add_u32 s{sT}, s{sT}, s{sT2}'); a(f's_add_u32 s{sT}, s{sT}, {G}')
            SQ = PK + 8
            TQ_ = GT
            for pair in range(2):
                for sl in range(2):
                    b = ACC + (j*4 + 2*pair + sl)*4; q = TQ_ + 4*sl
                    a(f'v_pk_add_f32 {v(q,2)}, {v(b,2)}, {v(b+2,2)}'); a(f'v_pk_mul_f32 {v(q+2,2)}, {v(b,2)}, {v(b,2)}')
                    a(f'v_pk_fma_f32 {v(q+2,2)}, {v(b+2,2)}, {v(b+2,2)}, {v(q+2,2)}')
                for sl in range(2):
                    q = TQ_ + 4*sl
                    a(f'v_add_f32 {v(SQ+sl)}, {v(q)}, {v(q+1)}'); a(f'v_add_f32 {v(SQ+2+sl)}, {v(q+2)}, {v(q+3)}')
                p = PK + 4*pair
                pack(j, pair, p)
                a(f'ds_write_b128 {v(VG)}, {v(p,4)} offset:{GTL + pair*4096}')
                a(f'v_permlane16_swap_b32 {v(SQ)}, {v(SQ+1)}'); a(f'v_permlane16_swap_b32 {v(SQ+2)}, {v(SQ+3)}')
                a(f'v_add_f32 {v(SQ)}, {v(SQ)}, {v(SQ+1)}'); a(f'v_add_f32 {v(SQ+2)}, {v(SQ+2)}, {v(SQ+3)}')
                a(f'v_permlane32_swap_b32 {v(SQ)}, {v(SQ+2)}')
                a(f'v_add_f32 {v(SQ)}, {v(SQ)}, {v(SQ+2)}')
                a(f'ds_write_b32 {v(VS)}, {v(SQ)} offset:{GSL + pair*256}')
            a('s_waitcnt lgkmcnt(0)'); a('s_barrier')
            a(f'ds_read_b128 {v(PK,4)}, {v(VGL)} offset:{GTL}'); a(f'ds_read_b128 {v(PK+4,4)}, {v(VGL)} offset:{GTL + 1024}')
            lK = a.new('K1GK')
            a(f's_cmp_ge_u32 s{sW8}, 4'); a(f's_cbranch_scc1 {lK}')
            for w in range(4): a(f'ds_read_b32 {v(SQ+w)}, {v(VTS)} offset:{GSL + w*1024}')
            a(f's_lshl_b32 s{sT2}, s{sRT}, 10'); a(f's_add_u32 s{sT2}, s{sT2}, s{sGS}')
            a('s_waitcnt lgkmcnt(0)')
            a(f'v_add_f32 {v(SQ)}, {v(SQ)}, {v(SQ+1)}'); a(f'v_add_f32 {v(SQ+2)}, {v(SQ+2)}, {v(SQ+3)}'); a(f'v_add_f32 {v(SQ)}, {v(SQ)}, {v(SQ+2)}')
            a(f'buffer_store_dword {v(SQ)}, {v(VTS)}, s[{sWs}:{sWs+3}], s{sT2} offen{stf}')
            a.label(lK)
            a('s_waitcnt lgkmcnt(0)')
            a(f'buffer_store_dwordx4 {v(PK,4)}, {v(VGA)}, s[{sWs}:{sWs+3}], s{sT} offen{stf}')
            a(f's_add_u32 s{sT}, s{sT}, 8192')
            a(f'buffer_store_dwordx4 {v(PK+4,4)}, {v(VGA)}, s[{sWs}:{sWs+3}], s{sT} offen{stf}')
            if j == 1: a('s_barrier')
        a.label(lN)
        if j < 2: P.stamp()
    a.label('K1_FIN')
    P.n = 12; P.stamp()
    if prof: a('s_waitcnt vmcnt(0)')
    P.stamp(); P.real()
    P.finish(sW8, sWs, sWs+1)
    a.label('K1_END')
    a('s_endpgm')
    return dict(name=name, body=a.text(), grid=256, block=512, lds=R*STG, vgpr=172, agpr=0, sgpr=102)
```

```python
from common import *

SCALE = LOG2E / (512 ** 0.5)
KT_BYTES = 131072
CV_W = 9216
TRS = 272
NPART = 32

def build(name='k2_kernel', prof=False, prio=0, stf=' sc1', CH=2, LA=9, LA0=9, xpf=1):
    a = Asm()
    P = Prof(a, prof, 1)
    LANE, T0 = 0, 2
    L = v(LANE); t0, t1, t2, t3, t4 = (v(T0 + i) for i in range(5))
    sW, sD = 8, 12
    sW8, sXC, sSL, sT, sT2, sT3 = 16, 17, 18, 19, 20, 21
    sA, sB, sOUT, sKT, sJOB, sM0, sOA, sOB, sML = 22, 23, 24, 25, 26, 27, 28, 29, 30
    a('s_cmp_ge_u32 s2, 256'); a('s_cbranch_scc1 K2_END')
    P.real(); P.stamp()
    a('s_load_dwordx2 s[4:5], s[0:1], 88'); a('s_load_dwordx2 s[6:7], s[0:1], 48'); a('s_load_dwordx2 s[34:35], s[0:1], 0')
    a(f'v_lshrrev_b32 {t0}, 6, v0'); a(f'v_and_b32 {L}, 63, v0')
    a(f'v_readfirstlane_b32 s{sW8}, {t0}')
    a(f's_and_b32 s{sXC}, s2, 7'); a(f's_lshr_b32 s{sSL}, s2, 3')
    a(f's_cmp_ge_u32 s{sSL}, 24'); a('s_cbranch_scc1 K2_CONV')
    a(f's_cmp_ge_u32 s{sW8}, 4'); a('s_cbranch_scc1 K2_END')

    KB, QR, ACC = 32, 64, 192
    lV, lJ = a.new('K2V'), a.new('K2J')
    a(f's_cmp_ge_u32 s{sSL}, 16'); a(f's_cbranch_scc1 {lV}')
    a(f's_mov_b32 s{sJOB}, 0')
    a(f's_lshr_b32 s{sT}, s{sXC}, 2'); a(f's_lshl_b32 s{sT}, s{sT}, 5')
    a(f's_and_b32 s{sKT}, s{sXC}, 1'); a(f's_lshl_b32 s{sKT}, s{sKT}, 2'); a(f's_lshr_b32 s{sT2}, s{sSL}, 2'); a(f's_add_u32 s{sKT}, s{sKT}, s{sT2}')
    a(f's_lshr_b32 s{sT2}, s{sXC}, 1'); a(f's_and_b32 s{sT2}, s{sT2}, 1'); a(f's_lshl_b32 s{sT2}, s{sT2}, 2')
    a(f's_and_b32 s{sT3}, s{sSL}, 3'); a(f's_add_u32 s{sT2}, s{sT2}, s{sT3}')
    a(f's_lshl_b32 s{sT2}, s{sT2}, 2'); a(f's_add_u32 s{sT2}, s{sT2}, s{sT}'); a(f's_add_u32 s{sT2}, s{sT2}, s{sW8}')
    a(f's_lshl_b32 s{sA}, s{sKT}, 2'); a(f's_add_u32 s{sA}, s{sA}, s{sT}'); a(f's_mul_i32 s{sA}, s{sA}, {S32}'); a(f's_add_u32 s{sA}, s{sA}, {KF}')
    a(f's_mul_i32 s{sB}, s{sT2}, {S32}'); a(f's_add_u32 s{sB}, s{sB}, {QF}')
    a(f's_mul_i32 s{sOUT}, s{sT2}, {S64}'); a(f's_lshl_b32 s{sT3}, s{sKT}, 13'); a(f's_add_u32 s{sOUT}, s{sOUT}, s{sT3}'); a(f's_add_u32 s{sOUT}, s{sOUT}, {PF}')
    a(f's_lshl_b32 s{sML}, s{sT2}, 3'); a(f's_add_u32 s{sML}, s{sML}, s{sKT}'); a(f's_lshl_b32 s{sML}, s{sML}, 8'); a(f's_add_u32 s{sML}, s{sML}, {ML}')
    a(f's_branch {lJ}')
    a.label(lV)
    a(f's_mov_b32 s{sJOB}, 1')
    a(f's_sub_u32 s{sT3}, s{sSL}, 16')
    a(f's_lshr_b32 s{sT}, s{sT3}, 2'); a(f's_lshl_b32 s{sT2}, s{sXC}, 1'); a(f's_add_u32 s{sT}, s{sT}, s{sT2}')
    a(f's_and_b32 s{sKT}, s{sT}, 7')
    a(f's_mul_i32 s{sA}, s{sT}, {4*S32}'); a(f's_add_u32 s{sA}, s{sA}, {VF}')
    a(f's_and_b32 s{sT3}, s{sT3}, 3'); a(f's_lshl_b32 s{sT3}, s{sT3}, 2'); a(f's_add_u32 s{sT3}, s{sT3}, s{sW8}')
    a(f's_mul_i32 s{sB}, s{sT3}, {S32}'); a(f's_add_u32 s{sB}, s{sB}, {WO1}')
    a(f's_lshr_b32 s{sT}, s{sT}, 3'); a(f's_lshl_b32 s{sT}, s{sT}, 4'); a(f's_add_u32 s{sT}, s{sT}, s{sT3}')
    a(f's_mul_i32 s{sOUT}, s{sT}, {S64}'); a(f's_lshl_b32 s{sT3}, s{sKT}, 13'); a(f's_add_u32 s{sOUT}, s{sOUT}, s{sT3}'); a(f's_add_u32 s{sOUT}, s{sOUT}, {VT}')
    a.label(lJ)
    VL16, RA, RB = 8, 9, 10
    a(f'v_lshlrev_b32 {v(VL16)}, 4, {L}')
    a(f'v_mov_b32 {v(RA)}, {v(VL16)}'); a(f'v_add_u32 {v(RB)}, 65536, {v(VL16)}')
    a(f's_lshl_b32 s{sM0}, s{sW8}, 15')
    a(f's_mul_i32 s{sOA}, s{sW8}, {S32}'); a(f's_add_u32 s{sOA}, s{sOA}, s{sA}'); a(f's_mov_b32 s{sOB}, s{sB}')
    a('s_waitcnt lgkmcnt(0)')
    srd(a, sW, 4, 5, WS_BYTES)
    def kload(k):
        if k % 4 == 0: a(f's_add_u32 m0, s{sM0}, {k*1024}')
        a(f'buffer_load_dwordx4 {v(VL16)}, s[{sW}:{sW+3}], s{sOA} offen offset:{(k%4)*1024} lds')
        a(f'buffer_load_dwordx4 {v(QR + 4*k, 4)}, {v(VL16)}, s[{sW}:{sW+3}], s{sOB} offen offset:{(k%4)*1024}')
        if k % 4 == 3:
            a(f's_add_u32 s{sOA}, s{sOA}, 4096'); a(f's_add_u32 s{sOB}, s{sOB}, 4096')
    for k in range(LA0): kload(k)
    P.stamp()
    def kreads(ks):
        se = ks & 1
        for kb in range(4):
            base = RA if kb < 2 else RB
            a(f'ds_read_b128 {v(KB + se*16 + kb*4, 4)}, {v(base)} offset:{(kb & 1)*32768 + ks*1024}')
    issued = LA0
    a(f's_waitcnt vmcnt({2*(issued - CH)})'); a('s_barrier')
    P.stamp()
    kreads(0)
    for ks in range(32):
        if ks + 1 < 32:
            if (ks + 1) % CH == 0:
                a(f's_waitcnt vmcnt({2*(issued - (ks + 1 + CH))})'); a('s_barrier')
                if ks + 1 in (8, 16, 24): P.stamp()
            kreads(ks + 1)
            a('s_waitcnt lgkmcnt(4)')
        else:
            a('s_waitcnt lgkmcnt(0)')
        se = ks & 1
        for kb in range(4):
            d = ACC + 16*kb
            a(f'v_mfma_f32_32x32x16_bf16 {v(d,16)}, {v(KB + se*16 + kb*4, 4)}, {v(QR + 4*ks, 4)}, {"0" if ks == 0 else v(d,16)}')
            if issued < 32 and (kb == 0 or (kb == 2 and issued - (ks + 1) < LA)):
                kload(issued); issued += 1
    P.stamp()
    lSE, lVE = a.new('K2SE'), a.new('K2VE')
    PK = 32
    def store_frags():
        for kb in range(4):
            for h in range(2):
                p = PK + ((kb*2+h) % 4) * 4
                b = ACC + 16*kb + 8*h
                for i in range(4):
                    a(f'v_cvt_pk_bf16_f32 {v(p+i)}, {v(b+2*i)}, {v(b+2*i+1)}')
                f = kb*2 + h
                a(f's_add_u32 s{sT}, s{sOUT}, {(f//4)*4096}') if f % 4 == 0 else None
                a(f'buffer_store_dwordx4 {v(p,4)}, {v(VL16)}, s[{sW}:{sW+3}], s{sT} offen offset:{(f%4)*1024}{stf}')
    a(f's_cmp_eq_u32 s{sJOB}, 0'); a(f's_cbranch_scc1 {lSE}')
    store_frags()
    if xpf:
        srd(a, 36, 34, 35, OUT_BYTES)
        a(f's_lshl_b32 s{sT}, s{sXC}, 3'); a(f's_sub_u32 s{sT2}, s{sSL}, 16'); a(f's_add_u32 s{sT}, s{sT}, s{sT2}')
        a(f's_lshl_b32 s{sT}, s{sT}, 2'); a(f's_add_u32 s{sT}, s{sT}, s{sW8}'); a(f's_lshl_b32 s{sT}, s{sT}, 13')
        a(f'v_lshl_add_u32 {t0}, {L}, 7, s{sT}')
        a(f'buffer_load_dword {t1}, {t0}, s[36:39], 0 offen')
    P.stamp()
    if prof: a('s_waitcnt vmcnt(0)')
    P.stamp(); P.real(); P.finish(sW8, 4, 5); P.n = 8
    a('s_endpgm')
    a.label(lSE)
    lNM = a.new('K2NM')
    a('s_nop 7'); a('s_nop 7')
    a(f's_cmp_lg_u32 s{sKT}, 7'); a(f's_cbranch_scc1 {lNM}')
    for j in range(4, 16): a(f'v_mov_b32 {v(ACC+48+j)}, 0xff800000')
    a.label(lNM)
    M, M2, SUM = 12, 13, 14
    a(f'v_max3_f32 {v(M)}, {v(ACC)}, {v(ACC+1)}, {v(ACC+2)}')
    a(f'v_max3_f32 {v(M2)}, {v(ACC+3)}, {v(ACC+4)}, {v(ACC+5)}')
    i = 6
    while i + 3 < 64:
        a(f'v_max3_f32 {v(M)}, {v(M)}, {v(ACC+i)}, {v(ACC+i+1)}')
        a(f'v_max3_f32 {v(M2)}, {v(M2)}, {v(ACC+i+2)}, {v(ACC+i+3)}')
        i += 4
    a(f'v_max3_f32 {v(M)}, {v(M)}, {v(ACC+62)}, {v(ACC+63)}')
    a(f'v_max_f32 {v(M)}, {v(M)}, {v(M2)}')
    a(f'v_mov_b32 {v(M2)}, {v(M)}')
    a(f'v_permlane32_swap_b32 {v(M)}, {v(M2)}')
    a(f'v_max_f32 {v(M)}, {v(M)}, {v(M2)}')
    a(f's_mov_b32 s{sT2}, {f32(SCALE)}')
    a(f'v_mul_f32 {v(M)}, s{sT2}, {v(M)}')
    CC, NM, S2 = 16, 18, 20
    a(f'v_mov_b32 {v(CC)}, s{sT2}'); a(f'v_mov_b32 {v(CC+1)}, s{sT2}')
    a(f'v_sub_f32 {v(NM)}, 0, {v(M)}'); a(f'v_sub_f32 {v(NM+1)}, 0, {v(M)}')
    for i in range(4): a(f'v_mov_b32 {v(S2+i)}, 0')
    for kb in range(4):
        for h in range(2):
            b = ACC + 16*kb + 8*h
            for i in range(4): a(f'v_pk_fma_f32 {v(b+2*i,2)}, {v(b+2*i,2)}, {v(CC,2)}, {v(NM,2)}')
            for i in range(8): a(f'v_exp_f32 {v(b+i)}, {v(b+i)}')
            p = PK + ((kb*2+h) % 4) * 4
            for i in range(4):
                a(f'v_cvt_pk_bf16_f32 {v(p+i)}, {v(b+2*i)}, {v(b+2*i+1)}')
            f = kb*2 + h
            if f % 4 == 0: a(f's_add_u32 s{sT}, s{sOUT}, {(f//4)*4096}')
            a(f'buffer_store_dwordx4 {v(p,4)}, {v(VL16)}, s[{sW}:{sW+3}], s{sT} offen offset:{(f%4)*1024}{stf}')
            for i in range(4): a(f'v_pk_add_f32 {v(S2+2*(i&1),2)}, {v(S2+2*(i&1),2)}, {v(b+2*i,2)}')
    a(f'v_add_f32 {v(SUM)}, {v(S2)}, {v(S2+1)}'); a(f'v_add_f32 {v(M2)}, {v(S2+2)}, {v(S2+3)}')
    a(f'v_add_f32 {v(SUM)}, {v(SUM)}, {v(M2)}')
    a(f'v_mov_b32 {v(M2)}, {v(SUM)}')
    a(f'v_permlane32_swap_b32 {v(SUM)}, {v(M2)}')
    a(f'v_add_f32 {v(SUM)}, {v(SUM)}, {v(M2)}')
    a(f'v_cmp_gt_u32 vcc, 32, {L}')
    a(f'v_cndmask_b32 {v(SUM)}, {v(SUM)}, {v(M)}, vcc')
    a(f'v_lshlrev_b32 {t0}, 2, {L}')
    a(f'buffer_store_dword {v(SUM)}, {t0}, s[{sW}:{sW+3}], s{sML} offen{stf}')
    P.stamp()
    if prof: a('s_waitcnt vmcnt(0)')
    P.stamp(); P.real(); P.finish(sW8, 4, 5); P.n = 2
    a('s_endpgm')

    a.label('K2_CONV')
    sCG, sRT, sR0, sLB, sBB, sUO, sPR = 24, 25, 26, 27, 28, 29, 22
    GT_, WT_, ST_, PR_ = 0, 40960, 49152, 51200
    PRW = 9760
    NT_, TW_ = 0, 5664
    BF, AF, DD, UR = 16, 92, 112, 144
    SP, GQ, SR = 160, 192, 200
    VG_, VST, VNT, VB, VA_, VU = 8, 9, 10, 11, 12, 13
    a(f's_sub_u32 s{sT}, s{sSL}, 24')
    a(f's_lshl_b32 s{sRT}, s{sXC}, 1'); a(f's_and_b32 s{sT2}, s{sT}, 1'); a(f's_add_u32 s{sRT}, s{sRT}, s{sT2}')
    a(f's_lshr_b32 s{sCG}, s{sT}, 1')
    a(f's_lshl_b32 s{sR0}, s{sRT}, 7'); a(f's_sub_u32 s{sR0}, s{sR0}, 16')
    a(f'v_lshrrev_b32 {t0}, 4, {L}'); a(f'v_and_b32 {t1}, 15, {L}')
    a(f'v_lshlrev_b32 {t2}, 2, {t0}'); a(f'v_xor_b32 {t1}, {t1}, {t2}'); a(f'v_lshlrev_b32 {t1}, 4, {t1}')
    a(f's_lshl_b32 s{sT}, s{sCG}, 8'); a(f'v_add_u32 {t1}, s{sT}, {t1}')
    a(f's_mul_i32 s{sT}, s{sW8}, 20'); a(f's_add_u32 s{sT3}, s{sT}, s{sR0}'); a(f'v_add_u32 {t2}, s{sT3}, {t0}')
    a(f's_mul_i32 s{sT2}, s{sW8}, 5120')
    a('s_waitcnt lgkmcnt(0)')
    srd(a, sW, 4, 5, WS_BYTES)
    a(f'v_min_u32 {t3}, 19, {L}'); a(f'v_add_u32 {v(SR)}, s{sT}, {t3}')
    a(f'v_add_u32 {v(SR+2)}, s{sR0}, {v(SR)}')
    a(f'v_max_i32 {t3}, 0, {v(SR+2)}'); a(f'v_min_i32 {t3}, 2047, {t3}'); a(f'v_lshlrev_b32 {t3}, 3, {t3}')
    for p_ in range(8):
        a(f's_mov_b32 s{sLB}, {GS + p_*16384}')
        a(f'buffer_load_dwordx2 {v(SP+2*p_,2)}, {t3}, s[{sW}:{sW+3}], s{sLB} offen')
    a(f's_mov_b32 s{sLB}, {G}')
    for i in range(5):
        a(f'v_add_u32 {t3}, {4*i}, {t2}'); a(f'v_max_i32 {t3}, 0, {t3}'); a(f'v_min_i32 {t3}, 2047, {t3}')
        a(f'v_lshl_add_u32 {t3}, {t3}, 10, {t1}')
        a(f's_add_u32 m0, s{sT2}, {GT_ + i*1024}')
        a(f'buffer_load_dwordx4 {t3}, s[{sW}:{sW+3}], s{sLB} offen lds')
    srd(a, sD, 6, 7, 31 * 1024)
    a(f's_lshl_b32 s{sT2}, s{sW8}, 2'); a(f'v_add_u32 {t3}, s{sT2}, {t0}'); a(f'v_lshl_add_u32 {t3}, {t3}, 10, {t1}')
    a(f's_lshl_b32 s{sT2}, s{sW8}, 10'); a(f's_add_u32 m0, s{sT2}, {WT_}')
    a(f'buffer_load_dwordx4 {t3}, s[{sD}:{sD+3}], 0 offen lds')
    P.stamp()
    a(f's_lshr_b32 s{sBB}, s{sRT}, 3'); a(f's_lshl_b32 s{sBB}, s{sBB}, 10')
    a(f's_mul_i32 s{sPR}, s{sW8}, {PRW}'); a(f's_add_u32 s{sPR}, s{sPR}, {PR_}')
    for i in range(4): a(f'v_mov_b32 {v(GQ+i)}, 0')
    a(f'v_lshlrev_b32 {t0}, 4, {L}'); a(f'v_add_u32 {t0}, s{sPR}, {t0}')
    for i in range(4): a(f'ds_write_b128 {t0}, {v(GQ,4)} offset:{TW_ + i*1024}')
    a(f'v_bfe_u32 {t0}, {L}, 2, 2'); a(f'v_lshrrev_b32 {t2}, 4, {L}'); a(f'v_bfe_u32 {t3}, {L}, 1, 1')
    a(f's_lshl_b32 s{sT}, s{sW8}, 1'); a(f'v_or_b32 {t3}, s{sT}, {t3}'); a(f'v_lshlrev_b32 {t4}, 2, {t0}'); a(f'v_xor_b32 {t3}, {t3}, {t4}')
    a(f'v_lshlrev_b32 {t3}, 4, {t3}'); a(f'v_lshl_add_u32 {t3}, {t0}, 8, {t3}'); a(f'v_lshl_add_u32 {t3}, {t2}, 10, {t3}')
    a(f'v_and_b32 {t4}, 1, {L}'); a(f'v_lshl_add_u32 {v(VG_)}, {t4}, 3, {t3}')
    a(f'v_lshlrev_b32 {v(VST)}, 5, {t2}')
    a(f'v_and_b32 {t0}, 15, {L}'); a(f'v_mul_u32_u24 {t3}, 352, {t0}'); a(f'v_lshl_add_u32 {t3}, {t2}, 3, {t3}')
    a(f'v_lshrrev_b32 {t4}, 3, {t0}'); a(f'v_lshl_add_u32 {t3}, {t4}, 3, {t3}'); a(f'v_add_u32 {v(VNT)}, s{sPR}, {t3}')
    a(f'v_mul_u32_u24 {t3}, 200, {t0}'); a(f'v_lshl_add_u32 {t3}, {t2}, 3, {t3}'); a(f'v_add_u32 {t1}, s{sPR}, {t3}')
    a(f'v_lshrrev_b32 {t0}, 2, {L}'); a(f'v_and_b32 {t2}, 3, {L}')
    a(f'v_mul_u32_u24 {t3}, 352, {t0}'); a(f'v_lshl_add_u32 {t3}, {t2}, 3, {t3}')
    a(f'v_lshrrev_b32 {t4}, 3, {t0}'); a(f'v_lshl_add_u32 {t3}, {t4}, 3, {t3}'); a(f'v_add_u32 {v(VB)}, s{sPR}, {t3}')
    a(f'v_mul_u32_u24 {t3}, 200, {t0}'); a(f'v_lshlrev_b32 {t4}, 1, {t2}'); a(f'v_sub_u32 {t3}, {t3}, {t4}')
    a(f'v_and_b32 {t4}, 1, {t2}'); a(f'v_mul_u32_u24 {t4}, 94, {t4}'); a(f'v_sub_u32 {t3}, {t3}, {t4}'); a(f'v_add_u32 {t3}, 108, {t3}')
    a(f'v_add_u32 {v(VA_)}, s{sPR}, {t3}')
    a(f'v_lshlrev_b32 {v(VU)}, 4, {L}')
    a(f's_lshl_b32 s{sT}, s{sRT}, 2'); a(f's_mul_i32 s{sT}, s{sT}, {S32}')
    a(f's_lshl_b32 s{sT2}, s{sCG}, 3'); a(f's_add_u32 s{sT2}, s{sT2}, s{sW8}'); a(f's_lshl_b32 s{sT2}, s{sT2}, 10'); a(f's_add_u32 s{sUO}, s{sT}, s{sT2}')
    a('s_waitcnt vmcnt(6)')
    P.stamp()
    a(f's_mov_b32 s{sT}, {f32(1/512)}'); a(f's_mov_b32 s{sT2}, {f32(1e-5)}')
    b = SP
    for step in (8, 4, 2):
        for i in range(step): a(f'v_add_f32 {v(b+i)}, {v(b+i)}, {v(b+step+i)}')
    a(f'v_mul_f32 {v(b)}, s{sT}, {v(b)}'); a(f'v_mul_f32 {v(b+1)}, s{sT}, {v(b+1)}')
    a(f'v_fma_f32 {v(b+1)}, -{v(b)}, {v(b)}, {v(b+1)}')
    a(f'v_max_f32 {v(b+1)}, 0, {v(b+1)}'); a(f'v_add_f32 {v(b+1)}, s{sT2}, {v(b+1)}')
    a(f'v_rsq_f32 {v(b+2)}, {v(b+1)}')
    a(f'v_mul_f32 {v(b+3)}, {v(b)}, {v(b+2)}'); a(f'v_sub_f32 {v(b+3)}, 0, {v(b+3)}')
    a(f'v_subrev_u32 {t0}, s{sBB}, {v(SR+2)}')
    a(f'v_cmp_gt_u32 vcc, 1000, {t0}')
    a(f'v_cndmask_b32 {v(b+2)}, 0, {v(b+2)}, vcc'); a(f'v_cndmask_b32 {v(b+3)}, 0, {v(b+3)}, vcc')
    a(f'v_lshlrev_b32 {t0}, 3, {v(SR)}')
    a(f'ds_write_b64 {t0}, {v(b+2,2)} offset:{ST_}')
    a('s_waitcnt vmcnt(0) lgkmcnt(0)'); a('s_barrier')
    P.stamp()
    a(f's_add_u32 s{sT}, s{sUO}, {UF}')
    for f in range(4):
        a(f'buffer_load_dwordx4 {v(UR+4*f,4)}, {v(VU)}, s[{sW}:{sW+3}], s{sT} offen')
        if f < 3: a(f's_add_u32 s{sT}, s{sT}, {S32}')
    TQ = 204
    GR = SP
    AB = BF
    for aa in range(2): a(f'ds_read_b64_tr_b16 {v(TQ+2*aa,2)}, {v(VG_)} offset:{WT_ + aa*4096}')
    for aa in range(10):
        a(f'ds_read_b64_tr_b16 {v(GR+2*aa,2)}, {v(VG_)} offset:{GT_ + aa*4096}')
        a(f'ds_read_b128 {v(AB + aa*8, 4)}, {v(VST)} offset:{ST_ + aa*128}')
        a(f'ds_read_b128 {v(AB + aa*8 + 4, 4)}, {v(VST)} offset:{ST_ + aa*128 + 16}')
    a('s_waitcnt lgkmcnt(15)')
    for aa in range(2):
        o = TW_ + aa*32
        a(f'ds_write_b64 {t1}, {v(TQ+2*aa,2)} offset:{o + 16}')
        a(f'ds_write_b16 {t1}, {v(TQ+2*aa)} offset:{o + 96 + 14}'); a(f'ds_write_b16_d16_hi {t1}, {v(TQ+2*aa)} offset:{o + 96 + 16}')
        a(f'ds_write_b16 {t1}, {v(TQ+2*aa+1)} offset:{o + 96 + 18}'); a(f'ds_write_b16_d16_hi {t1}, {v(TQ+2*aa+1)} offset:{o + 96 + 20}')
    NQ = 184
    a('s_waitcnt lgkmcnt(10)')
    for aa in range(10):
        q = AB + aa*8; g0 = GR + 2*aa; nq = NQ + 4*(aa & 1)
        a(f'v_lshlrev_b32 {v(nq)}, 16, {v(g0)}'); a(f'v_and_b32 {v(nq+1)}, 0xffff0000, {v(g0)}')
        a(f'v_lshlrev_b32 {v(nq+2)}, 16, {v(g0+1)}'); a(f'v_and_b32 {v(nq+3)}, 0xffff0000, {v(g0+1)}')
        for e in range(4): a(f'v_fma_f32 {v(nq+e)}, {v(nq+e)}, {v(q+2*e)}, {v(q+2*e+1)}')
        a(f'v_cvt_pk_bf16_f32 {v(g0)}, {v(nq)}, {v(nq+1)}'); a(f'v_cvt_pk_bf16_f32 {v(g0+1)}, {v(nq+2)}, {v(nq+3)}')
        a(f'ds_write_b64 {v(VNT)}, {v(g0,2)} offset:{NT_ + aa*32}')
    a('s_waitcnt lgkmcnt(0)')
    P.stamp()
    for kk in range(9): a(f'ds_read2_b32 {v(AF+2*kk,2)}, {v(VA_)} offset0:{(TW_//4 + 2*kk) if TW_//4 + 2*kk < 255 else 0} offset1:0') if False else None
    a(f'v_add_u32 {v(VA_)}, {TW_}, {v(VA_)}')
    for kk in range(9): a(f'ds_read2_b32 {v(AF+2*kk,2)}, {v(VA_)} offset0:{2*kk} offset1:{2*kk+1}')
    for s_ in range(37): a(f'ds_read_b64 {v(BF+2*s_,2)}, {v(VB)} offset:{NT_ + s_*8}')
    a('s_waitcnt lgkmcnt(0)')
    for kk in range(9):
        for q in range(8):
            d = DD + 4*q
            a(f'v_mfma_f32_4x4x4_16b_bf16 {v(d,4)}, {v(AF+2*kk,2)}, {v(BF+2*(4*q+kk),2)}, {"0" if kk == 0 else v(d,4)}')
    P.stamp()
    a(f'v_lshrrev_b32 {t0}, 2, {L}'); a(f'v_and_b32 {t2}, 3, {L}'); a(f'v_mul_u32_u24 {t3}, 288, {t0}'); a(f'v_lshl_add_u32 {t3}, {t2}, 3, {t3}')
    a(f'v_add_u32 {t3}, s{sPR}, {t3}')
    CP = BF
    for q in range(8):
        a(f'v_cvt_pk_bf16_f32 {v(CP+2*q)}, {v(DD+4*q)}, {v(DD+4*q+1)}'); a(f'v_cvt_pk_bf16_f32 {v(CP+2*q+1)}, {v(DD+4*q+2)}, {v(DD+4*q+3)}')
        a(f'ds_write_b64 {t3}, {v(CP+2*q,2)} offset:{q*32}')
    a(f'v_lshrrev_b32 {t0}, 5, {L}'); a(f'v_bfe_u32 {t1}, {L}, 2, 2'); a(f'v_lshl_add_u32 {t0}, {t0}, 3, {t1}'); a(f'v_mul_u32_u24 {t0}, 288, {t0}')
    a(f'v_bfe_u32 {t1}, {L}, 4, 1'); a(f'v_lshl_add_u32 {t0}, {t1}, 5, {t0}'); a(f'v_and_b32 {t1}, 3, {L}'); a(f'v_lshl_add_u32 {t0}, {t1}, 3, {t0}')
    a(f'v_add_u32 {t2}, s{sPR}, {t0}')
    a('s_waitcnt lgkmcnt(0)')
    CR = BF + 16
    for f in range(4):
        for e in range(2):
            a(f'ds_read_b64_tr_b16 {v(CR+4*f+2*e,2)}, {t2} offset:{e*4*288 + f*64}')
    a('s_waitcnt vmcnt(0)')
    a(f's_add_u32 s{sT}, s{sUO}, {UC}')
    TM = DD
    for f in range(4):
        a(f's_waitcnt lgkmcnt({2*(3-f)})')
        for d in range(4):
            u = UR + 4*f + d; c = CR + 4*f + d; m = TM + 4*d
            a(f'v_lshlrev_b32 {v(m)}, 16, {v(u)}'); a(f'v_and_b32 {v(m+1)}, 0xffff0000, {v(u)}')
            a(f'v_lshlrev_b32 {v(m+2)}, 16, {v(c)}'); a(f'v_and_b32 {v(m+3)}, 0xffff0000, {v(c)}')
        for d in range(4):
            m = TM + 4*d
            a(f'v_mul_f32 {v(m)}, {v(m)}, {v(m+2)}'); a(f'v_mul_f32 {v(m+1)}, {v(m+1)}, {v(m+3)}')
        for d in range(4):
            u = UR + 4*f + d; m = TM + 4*d
            a(f'v_cvt_pk_bf16_f32 {v(u)}, {v(m)}, {v(m+1)}')
        a(f'buffer_store_dwordx4 {v(UR+4*f,4)}, {v(VU)}, s[{sW}:{sW+3}], s{sT} offen{stf}')
        if f < 3: a(f's_add_u32 s{sT}, s{sT}, {S32}')
    P.n = 8; P.stamp()
    if prof: a('s_waitcnt vmcnt(0)')
    P.stamp(); P.real(); P.finish(sW8, 4, 5)
    a.label('K2_END')
    a('s_endpgm')
    return dict(name=name, body=a.text(), grid=256, block=512, lds=max(KT_BYTES, 51200 + 8*9760), vgpr=256, agpr=0, sgpr=102 if prof else 64)
```

```python
from common import *

def build(name='k3_kernel', prof=False, LA=16, XSTEP=70, RING=24, CH=4, LA0=16, delta=0.0, hoist=1):
    a = Asm()
    P = Prof(a, prof, 2)
    vm = VM(a)
    LANE, T0 = 0, 2
    L = v(LANE); t0, t1, t2, t3, t4 = (v(T0 + i) for i in range(5))
    sW, sX, sO = 8, 12, 16
    sW8, sXC, sSL, sT, sT2, sT3 = 20, 21, 22, 23, 24, 25
    sB, sRT, sJT, sML, sS1, sS2, sM0 = 26, 27, 28, 29, 30, 31, 32
    assert RING >= LA + CH and RING % CH == 0
    def ldsoff(k): return ((k // CH) % (RING // CH)) * CH * 4096 + (k % CH) * 1024
    XT = RING * 4096
    TT, XA = 64, 80
    FR = 32
    VL16, VML, RA, RB = 8, 9, 10, 11
    VXO = 12
    RA2, RB2, RA3, RB3 = 14, 15, 16, 17
    MLR = 112
    XR = 48
    NSTEP = 96
    a('s_cmp_ge_u32 s2, 256'); a('s_cbranch_scc1 K3_END')
    P.real(); P.stamp()
    a('s_load_dwordx2 s[4:5], s[0:1], 88'); a('s_load_dwordx2 s[6:7], s[0:1], 0'); a('s_load_dwordx2 s[18:19], s[0:1], 72')
    a(f'v_lshrrev_b32 {t0}, 6, v0'); a(f'v_and_b32 {L}, 63, v0')
    a(f'v_readfirstlane_b32 s{sW8}, {t0}')
    a(f's_and_b32 s{sXC}, s2, 7'); a(f's_lshr_b32 s{sSL}, s2, 3')
    a(f's_lshr_b32 s{sB}, s{sXC}, 2')
    a(f's_and_b32 s{sRT}, s{sXC}, 3'); a(f's_lshl_b32 s{sRT}, s{sRT}, 2'); a(f's_and_b32 s{sT}, s{sSL}, 3'); a(f's_add_u32 s{sRT}, s{sRT}, s{sT}')
    a(f's_lshr_b32 s{sJT}, s{sSL}, 2')
    a(f'v_lshlrev_b32 {v(VL16)}, 4, {L}')
    a(f's_lshl_b32 s{sT}, s{sB}, 5'); a(f's_lshl_b32 s{sT2}, s{sRT}, 1'); a(f's_add_u32 s{sT}, s{sT}, s{sT2}')
    a(f's_and_b32 s{sT3}, s{sW8}, 1')
    a(f's_add_u32 s{sT2}, s{sT}, s{sT3}')
    a(f's_lshl_b32 s{sML}, s{sT2}, 11'); a(f's_add_u32 s{sML}, s{sML}, {ML}')
    lR, lS = a.new('K3A'), a.new('K3B')
    a(f's_cmp_ge_u32 s{sW8}, 2'); a(f's_cbranch_scc1 {lR}')
    a(f's_lshl_b32 s{sT}, s{sJT}, 1'); a(f's_add_u32 s{sT}, s{sT}, s{sT3}')
    a(f's_mul_i32 s{sS1}, s{sT}, {S32}'); a(f's_add_u32 s{sS1}, s{sS1}, {WO2}')
    a(f's_lshl_b32 s{sT2}, s{sB}, 4'); a(f's_add_u32 s{sT}, s{sT}, s{sT2}'); a(f's_mul_i32 s{sS2}, s{sT}, {S64}'); a(f's_add_u32 s{sS2}, s{sS2}, {VT}')
    a(f's_branch {lS}')
    a.label(lR)
    a(f's_mul_i32 s{sS1}, s{sT2}, {S32}'); a(f's_add_u32 s{sS1}, s{sS1}, {UC}')
    a(f's_mul_i32 s{sS2}, s{sT2}, {S64}'); a(f's_add_u32 s{sS2}, s{sS2}, {PF}')
    a.label(lS)
    a(f's_mul_i32 s{sM0}, s{sW8}, {CH*1024}')
    a('s_waitcnt lgkmcnt(0)')
    srd(a, sW, 4, 5, WS_BYTES)
    def dma(k):
        src = sS1 if k < 32 else sS2
        if k % 4 == 0: a(f's_add_u32 m0, s{sM0}, {ldsoff(k)}')
        vm.issue(f'buffer_load_dwordx4 {v(VL16)}, s[{sW}:{sW+3}], s{src} offen offset:{(k%4)*1024} lds', ('f', k))
        if k % 4 == 3: a(f's_add_u32 s{src}, s{src}, 4096')
    for k in range(LA0): dma(k)
    P.stamp()
    a(f's_lshr_b32 s{sT}, s{sW8}, 1'); a(f's_mul_i32 s{sT}, s{sT}, {CH*1024}'); a(f'v_add_u32 {v(RA)}, s{sT}, {v(VL16)}')
    a(f's_and_b32 s{sT}, s{sW8}, 1'); a(f's_add_u32 s{sT}, s{sT}, 2'); a(f's_mul_i32 s{sT}, s{sT}, {CH*1024}'); a(f'v_add_u32 {v(RB)}, s{sT}, {v(VL16)}')
    a(f'v_add_u32 {v(RA2)}, 49152, {v(RA)}'); a(f'v_add_u32 {v(RB2)}, 49152, {v(RB)}'); a(f'v_add_u32 {v(RA3)}, 98304, {v(RA)}'); a(f'v_add_u32 {v(RB3)}, 98304, {v(RB)}')
    srd(a, sX, 6, 7, OUT_BYTES)
    a(f's_mov_b32 s{sO}, s18'); a(f's_mov_b32 s{sO+1}, s19'); a(f's_mov_b32 s{sO+2}, {OUT_BYTES}'); a(f's_mov_b32 s{sO+3}, {SRD3}')
    a(f'v_and_b32 {t0}, 31, {L}'); a(f'v_lshlrev_b32 {v(VML)}, 2, {t0}')
    a(f'v_lshrrev_b32 {t0}, 3, {L}'); a(f'v_and_b32 {t1}, 7, {L}'); a(f'v_xor_b32 {t2}, {t1}, {t0}')
    a(f's_lshl_b32 s{sT}, s{sW8}, 4'); a(f's_lshl_b32 s{sT2}, s{sRT}, 6'); a(f's_add_u32 s{sT}, s{sT}, s{sT2}')
    a(f'v_add_u32 {t0}, s{sT}, {t0}')
    a(f's_mul_i32 s{sT}, s{sB}, 1000'); a(f's_lshl_b32 s{sT2}, s{sJT}, 7')
    for k in range(2):
        a(f'v_add_u32 {t3}, {8*k}, {t0}'); a(f'v_add_u32 {t4}, s{sT}, {t3}'); a(f'v_lshlrev_b32 {t4}, 10, {t4}')
        a(f'v_lshl_add_u32 {t4}, {t2}, 4, {t4}'); a(f'v_add_u32 {t4}, s{sT2}, {t4}')
        a(f'v_cmp_gt_u32 vcc, 1000, {t3}'); a(f'v_mov_b32 {t3}, 0x7ffffff0')
        a(f'v_cndmask_b32 {v(VXO+k)}, {t3}, {t4}, vcc')

    def factors():
        o = []
        m = MLR; l = m + 8
        o += [f'v_max3_f32 {t0}, {v(m)}, {v(m+1)}, {v(m+2)}', f'v_max3_f32 {t1}, {v(m+3)}, {v(m+4)}, {v(m+5)}',
              f'v_max3_f32 {t0}, {t0}, {v(m+6)}, {v(m+7)}', f'v_max_f32 {t0}, {t0}, {t1}']
        o += [f'v_sub_f32 {v(m+t)}, {v(m+t)}, {t0}' for t in range(8)]
        o += [f'v_exp_f32 {v(m+t)}, {v(m+t)}' for t in range(8)]
        o += [f'v_mul_f32 {t1}, {v(m)}, {v(l)}', f'v_mul_f32 {t0}, {v(m+1)}, {v(l+1)}']
        for t in range(2, 8, 2):
            o += [f'v_fmac_f32 {t1}, {v(m+t)}, {v(l+t)}', f'v_fmac_f32 {t0}, {v(m+t+1)}, {v(l+t+1)}']
        o += [f'v_add_f32 {t1}, {t1}, {t0}', f'v_rcp_f32 {t1}, {t1}']
        o += [f'v_mul_f32 {v(m+t)}, {v(m+t)}, {t1}' for t in range(8)]
        return o
    AO0, AO1 = 18, 19
    def out_addr():
        return [f'v_and_b32 {t0}, 31, {L}', f'v_lshrrev_b32 {t1}, 5, {L}', f's_lshr_b32 s{sT}, s{sW8}, 1\ns_lshl_b32 s{sT}, s{sT}, 2\nv_or_b32 {t1}, s{sT}, {t1}',
                f'v_and_b32 {t2}, 7, {t0}', f'v_xor_b32 {t1}, {t1}, {t2}',
                f's_and_b32 s{sT}, s{sW8}, 1\ns_lshl_b32 s{sT}, s{sT}, 12\ns_add_u32 s{sT}, s{sT}, {XT}\nv_lshlrev_b32 {t0}, 7, {t0}\nv_add_u32 {t0}, s{sT}, {t0}',
                f'v_lshl_add_u32 {v(AO0)}, {t1}, 4, {t0}', f'v_xor_b32 {t1}, 2, {t1}', f'v_lshl_add_u32 {v(AO1)}, {t1}, 4, {t0}']
    def reads(k):
        se = k & 1; off = ldsoff(k); hi = off // 49152; off -= hi * 49152
        a(f'ds_read_b128 {v(FR + se*8, 4)}, {v((RA, RA2, RA3)[hi])} offset:{off}'); a(f'ds_read_b128 {v(FR + se*8 + 4, 4)}, {v((RB, RB2, RB3)[hi])} offset:{off}')
    issued = LA0
    vm.wait(('f', CH - 1)); a('s_barrier')
    P.stamp()
    reads(0)
    side = []
    for k in range(NSTEP):
        if k + 1 < NSTEP:
            if (k + 1) % CH == 0:
                if hoist and k + CH == NSTEP - 1:
                    a(f's_waitcnt vmcnt({min(vm.count("x"), vm.count(("f", k + CH)))})')
                else: vm.wait(('f', k + CH))
                a('s_barrier')
                if k + 1 in (16, 32, 48, 64, 80): P.stamp()
            reads(k + 1)
            a('s_waitcnt lgkmcnt(2)')
        else:
            a('s_waitcnt lgkmcnt(0)')
        if k < 32: d, first = TT, k == 0
        else:
            tile = (k - 32) // 8; d, first = XA + 16*(tile & 1), (k - 32) % 8 == 0
            if first and tile >= 1:
                pass
        se = k & 1
        a(f'v_mfma_f32_32x32x16_bf16 {v(d,16)}, {v(FR + se*8, 4)}, {v(FR + se*8 + 4, 4)}, {"0" if first else v(d,16)}')
        if issued < NSTEP:
            dma(issued); issued += 1
            if issued < NSTEP and issued - (k + 1) < LA:
                dma(issued); issued += 1
        if k == 2:
            for tt in range(8):
                for q in range(2):
                    vm.issue(f'buffer_load_dword {v(MLR + q*8 + tt)}, {v(VML)}, s[{sW}:{sW+3}], s{sML} offen offset:{tt*256 + q*128}', 'ml')
        if k == 16:
            vm.wait('ml'); side = factors()
        if k == XSTEP:
            a(f's_lshl_b32 s{sT}, s{sW8}, 11')
            for kk in range(2):
                a(f's_add_u32 m0, s{sT}, {XT + 1024*kk}')
                vm.issue(f'buffer_load_dwordx4 {v(VXO+kk)}, s[{sX}:{sX+3}], 0 offen lds', 'x')
            a(f's_add_u32 m0, s{sM0}, {ldsoff((issued - 1) // 4 * 4)}')
        if k >= 42 and (k - 32) % 8 == 2:
            tp = (k - 32) // 8 - 1
            side += [f'v_fmac_f32 {v(TT+j)}, {v(XA + 16*(tp & 1) + j)}, {v(MLR + tp)}' for j in range(16)]
        if hoist and k == 60: side += out_addr()
        if hoist and k == NSTEP - 3:
            a(f'ds_read_b128 {v(XR,4)}, {v(AO0)}'); a(f'ds_read_b128 {v(XR+4,4)}, {v(AO1)}')
            a('s_waitcnt lgkmcnt(0)')
        for _ in range(min(4, len(side))): a(side.pop(0))
    assert not side
    P.stamp()
    for j in range(16): a(f'v_fmac_f32 {v(TT+j)}, {v(XA + 16 + j)}, {v(MLR + 7)}')
    A0 = TT
    for hh in range(2):
        for r in range(4):
            a(f'v_permlane32_swap_b32 {v(A0 + 8*hh + r)}, {v(A0 + 8*hh + 4 + r)}')
    if not hoist:
        for l in out_addr(): a(l)
        a('s_waitcnt vmcnt(0)'); a('s_barrier')
        a(f'ds_read_b128 {v(XR,4)}, {v(AO0)}'); a(f'ds_read_b128 {v(XR+4,4)}, {v(AO1)}')
    a('s_waitcnt lgkmcnt(0)')
    for hh in range(2):
        for d in range(4):
            x = XR + 4*hh + d; c = A0 + 8*hh + 2*d
            a(f'v_lshlrev_b32 {t3}, 16, {v(x)}'); a(f'v_and_b32 {t4}, 0xffff0000, {v(x)}')
            a(f'v_add_f32 {v(c)}, {v(c)}, {t3}'); a(f'v_add_f32 {v(c+1)}, {v(c+1)}, {t4}')
            if delta:
                a(f'v_add_f32 {v(c)}, {f32(delta)}, {v(c)}'); a(f'v_add_f32 {v(c+1)}, {f32(delta)}, {v(c+1)}')
            a(f'v_cvt_pk_bf16_f32 {v(x)}, {v(c)}, {v(c+1)}')
        a(f'ds_write_b128 {v(AO0 if hh == 0 else AO1)}, {v(XR+4*hh,4)}')
    a('s_waitcnt lgkmcnt(0)'); a('s_barrier')
    P.stamp()
    a(f's_lshl_b32 s{sT}, s{sW8}, 11'); a(f's_add_u32 s{sT}, s{sT}, {XT}'); a(f'v_add_u32 {t0}, s{sT}, {v(VL16)}')
    a(f'ds_read_b128 {v(XR,4)}, {t0}'); a(f'ds_read_b128 {v(XR+4,4)}, {t0} offset:1024')
    a('s_waitcnt lgkmcnt(1)')
    a(f'buffer_store_dwordx4 {v(XR,4)}, {v(VXO)}, s[{sO}:{sO+3}], 0 offen')
    a('s_waitcnt lgkmcnt(0)')
    a(f'buffer_store_dwordx4 {v(XR+4,4)}, {v(VXO+1)}, s[{sO}:{sO+3}], 0 offen')
    P.stamp()
    if prof: a('s_waitcnt vmcnt(0)')
    P.stamp(); P.real(); P.finish(sW8, 4, 5)
    a.label('K3_END')
    a('s_endpgm')
    return dict(name=name, body=a.text(), grid=256, block=256, lds=XT + 8192, vgpr=128, agpr=0, sgpr=102 if prof else 64)
```

```python
from common import *

R = 3
STG = 40960
NST = 8
GC0 = -2.0 * 0.7978845608028654 * LOG2E
GC1 = GC0 * 0.044715

def gelu_block(a, y0, n, t0, vC):
    P2 = range(0, n, 2)
    for i in P2: a(f'v_pk_mul_f32 {v(t0+i,2)}, {v(y0+i,2)}, {v(y0+i,2)}')
    for i in P2: a(f'v_pk_fma_f32 {v(t0+i,2)}, {v(t0+i,2)}, {v(vC+2,2)}, {v(vC,2)}')
    for i in P2: a(f'v_pk_mul_f32 {v(t0+i,2)}, {v(t0+i,2)}, {v(y0+i,2)}')
    for i in range(n): a(f'v_exp_f32 {v(t0+i)}, {v(t0+i)}')
    for i in P2: a(f'v_pk_add_f32 {v(t0+i,2)}, {v(t0+i,2)}, {v(vC+4,2)}')
    for i in range(n): a(f'v_rcp_f32 {v(t0+i)}, {v(t0+i)}')
    for i in P2: a(f'v_pk_mul_f32 {v(y0+i,2)}, {v(y0+i,2)}, {v(t0+i,2)}')

def build(name='k1_kernel', prof=False, touch=False, xf=' nt', wf='', prio=0, stf=' sc1', rot=2, wmap=3, dwpf=1):
    a = Asm()
    P = Prof(a, prof, 0)
    ACC = 0
    AS, AG, AC = 48, 52, 56
    FR = 68
    ONES = 132
    AX, AXS, AW = 136, 140, 144
    VX0, VX1, VW = 146, 147, 148
    LANE, T0 = 151, 152
    def fr(st, what, i=0):
        b = FR + st * 32
        return {'x': b + 4 * i, 'xs': b + 16, 'w': b + 20 + 4 * i}[what]
    sX, sWs = 24, 28
    sB = [32, 36, 40]
    sW8, sWR, sWC, sRT, sCT, sFOLD = 44, 45, 46, 47, 48, 49
    sOX, sOW, sSW, sM0 = 50, [51, 52, 53], [54, 55, 56], 57
    sTY, sOB = [58, 59, 60], [61, 62, 63]
    sT, sT2, sT3, sC1 = 20, 21, 22, 23
    L = v(LANE); t0, t1, t2, t3, t4 = (v(T0 + i) for i in range(5))

    if wmap == 3:
        a('s_cmp_ge_u32 s2, 256'); a('s_cbranch_scc1 K1_IDLE')
        a('s_cmp_lt_u32 s2, 240'); a('s_cbranch_scc1 K1_GO')
        a('s_and_b32 s20, s2, 7'); a('s_cmp_lt_u32 s20, 4'); a('s_cbranch_scc1 K1_GO')
        if dwpf:
            a('s_cmp_lg_u32 s2, 244'); a('s_cbranch_scc1 K1_IDLE')
            a('s_load_dwordx2 s[4:5], s[0:1], 48'); a('v_lshlrev_b32 v1, 7, v0'); a('s_waitcnt lgkmcnt(0)')
            srd(a, 8, 4, 5, 31 * 1024)
            a('buffer_load_dword v2, v1, s[8:11], 0 offen')
        a.label('K1_IDLE')
        a('s_branch K1_END')
    elif wmap != 1:
        a('s_cmp_ge_u32 s2, 248'); a('s_cbranch_scc0 K1_GO')
        if dwpf:
            a('s_cmp_lg_u32 s2, 248'); a('s_cbranch_scc1 K1_IDLE')
            a('s_load_dwordx2 s[4:5], s[0:1], 48'); a('v_lshlrev_b32 v1, 7, v0'); a('s_waitcnt lgkmcnt(0)')
            srd(a, 8, 4, 5, 31 * 1024)
            a('buffer_load_dword v2, v1, s[8:11], 0 offen')
            a.label('K1_IDLE')
        a('s_branch K1_END')
    else:
        a('s_cmp_ge_u32 s2, 256'); a('s_cbranch_scc1 K1_OUT')
        a('s_and_b32 s20, s2, 7'); a('s_cmp_lt_u32 s20, 6'); a('s_cbranch_scc1 K1_GO')
        a('s_cmp_lt_u32 s2, 224'); a('s_cbranch_scc1 K1_GO')
        a.label('K1_OUT')
        a('s_branch K1_END')
    a.label('K1_GO')
    if prio: a('s_setprio 3')
    P.real(); P.stamp()
    a('s_load_dwordx16 s[4:19], s[0:1], 0')
    a('s_load_dwordx2 s[100:101], s[0:1], 64')
    a('s_load_dwordx2 s[98:99], s[0:1], 88')
    a(f'v_lshrrev_b32 {t0}, 6, v0'); a(f'v_and_b32 {L}, 63, v0')
    a(f'v_readfirstlane_b32 s{sW8}, {t0}')
    a(f's_and_b32 s{sT}, s2, 7'); a(f's_lshr_b32 s{sT2}, s2, 3')
    if wmap == 3:
        a(f's_cmp_ge_u32 s{sT2}, 24'); a(f's_cselect_b32 s{sFOLD}, 1, 0'); a(f's_cmp_ge_u32 s{sT}, 4'); a(f's_cselect_b32 s{sFOLD}, s{sFOLD}, 0')
    elif wmap != 1:
        a(f's_cmp_ge_u32 s{sT2}, 28'); a(f's_cselect_b32 s{sFOLD}, 1, 0')
    else:
        a(f's_cmp_ge_u32 s{sT2}, 16'); a(f's_cselect_b32 s{sFOLD}, 1, 0'); a(f's_cmp_ge_u32 s{sT}, 6'); a(f's_cselect_b32 s{sFOLD}, s{sFOLD}, 0')
    a(f's_lshr_b32 s{sWR}, s{sW8}, 2'); a(f's_and_b32 s{sWC}, s{sW8}, 3')
    a(f's_lshl_b32 s{sM0}, s{sW8}, 10')
    lF, lD = a.new('K1F'), a.new('K1D')
    a(f's_cmp_eq_u32 s{sFOLD}, 1'); a(f's_cbranch_scc1 {lF}')
    if wmap == 0:
        a(f's_and_b32 s{sRT}, s{sT}, 3'); a(f's_lshl_b32 s{sRT}, s{sRT}, 2'); a(f's_and_b32 s{sT3}, s{sT2}, 3'); a(f's_add_u32 s{sRT}, s{sRT}, s{sT3}')
        a(f's_lshr_b32 s{sCT}, s{sT}, 2'); a(f's_mul_i32 s{sCT}, s{sCT}, 7'); a(f's_lshr_b32 s{sT3}, s{sT2}, 2'); a(f's_add_u32 s{sCT}, s{sCT}, s{sT3}')
    elif wmap == 3:
        a(f's_and_b32 s{sRT}, s{sT}, 3'); a(f's_lshl_b32 s{sRT}, s{sRT}, 2'); a(f's_and_b32 s{sT3}, s{sT2}, 3'); a(f's_add_u32 s{sRT}, s{sRT}, s{sT3}')
        a(f's_lshr_b32 s{sCT}, s{sT}, 2'); a(f's_lshl_b32 s{sCT}, s{sCT}, 3'); a(f's_lshr_b32 s{sT3}, s{sT2}, 2'); a(f's_add_u32 s{sCT}, s{sCT}, s{sT3}')
    elif wmap == 2:
        a(f's_lshr_b32 s{sRT}, s{sT}, 1'); a(f's_lshl_b32 s{sRT}, s{sRT}, 2'); a(f's_and_b32 s{sT3}, s{sT2}, 3'); a(f's_add_u32 s{sRT}, s{sRT}, s{sT3}')
        a(f's_and_b32 s{sCT}, s{sT}, 1'); a(f's_mul_i32 s{sCT}, s{sCT}, 7'); a(f's_lshr_b32 s{sT3}, s{sT2}, 2'); a(f's_add_u32 s{sCT}, s{sCT}, s{sT3}')
    else:
        a(f's_and_b32 s{sRT}, s{sT2}, 15')
        a(f's_lshl_b32 s{sCT}, s{sT}, 1'); a(f's_lshr_b32 s{sT3}, s{sT2}, 4'); a(f's_add_u32 s{sCT}, s{sCT}, s{sT3}')
        a(f's_add_u32 s{sT3}, s{sT}, 6'); a(f's_cmp_ge_u32 s{sT}, 6'); a(f's_cselect_b32 s{sCT}, s{sT3}, s{sCT}')
    for j in range(3):
        bi = sOB[j]
        if j == 0:
            a(f's_lshl_b32 s{bi}, s{sCT}, 1'); a(f's_cmp_ge_u32 s{sCT}, 12'); a(f's_cselect_b32 s{bi}, 0, s{bi}')
        elif j == 1:
            a(f's_lshl_b32 s{bi}, s{sCT}, 1'); a(f's_add_u32 s{sT}, s{bi}, 1'); a(f's_add_u32 s{sT2}, s{bi}, 4')
            a(f's_cmp_ge_u32 s{sCT}, 12'); a(f's_cselect_b32 s{bi}, s{sT2}, s{sT}')
        else:
            a(f's_add_u32 s{sT}, s{sCT}, 32'); a(f's_add_u32 s{sT2}, s{sCT}, 16')
            a(f's_cmp_ge_u32 s{sCT}, 8'); a(f's_cselect_b32 s{sT}, s{sT2}, s{sT}')
            a(f's_lshl_b32 s{sT2}, s{sCT}, 1'); a(f's_add_u32 s{sT2}, s{sT2}, 5')
            a(f's_cmp_ge_u32 s{sCT}, 12'); a(f's_cselect_b32 s{bi}, s{sT2}, s{sT}')
        a(f's_lshr_b32 s{sT}, s{bi}, 3'); a(f's_and_b32 s{sT2}, s{bi}, 7')
        a(f's_cmp_ge_u32 s{sT}, 3'); a(f's_cselect_b32 s{sSW[j]}, 11, 10')
        a(f's_sub_u32 s{sTY[j]}, s{sT}, 2'); a(f's_max_i32 s{sTY[j]}, s{sTY[j]}, 0')
        if j == 0:
            a(f's_cmp_ge_u32 s{sCT}, 12'); a(f's_cselect_b32 s{sTY[j]}, 3, s{sTY[j]}')
        a(f's_lshl_b32 s{sOW[j]}, s{sT2}, 7'); a(f's_cmp_eq_u32 s{sT}, 4'); a(f's_cselect_b32 s{sT3}, 1024, 0'); a(f's_add_u32 s{sOW[j]}, s{sOW[j]}, s{sT3}')
    a(f's_lshr_b32 s{sT3}, s{sRT}, 3'); a(f's_mul_i32 s{sT3}, s{sT3}, 1000')
    a(f's_and_b32 s{sT}, s{sRT}, 7'); a(f's_lshl_b32 s{sT}, s{sT}, 7'); a(f's_add_u32 s{sOX}, s{sT3}, s{sT}'); a(f's_lshl_b32 s{sOX}, s{sOX}, 10')
    a(f's_branch {lD}')
    a.label(lF)
    if wmap == 3:
        a(f's_sub_u32 s{sT}, s{sT}, 4'); a(f's_mul_i32 s{sT}, s{sT}, 6'); a(f's_sub_u32 s{sT2}, s{sT2}, 24'); a(f's_add_u32 s{sT}, s{sT}, s{sT2}')
        a(f's_cmp_ge_u32 s{sT}, 12'); a(f's_cselect_b32 s{sT3}, 1, 0'); a(f's_mul_i32 s{sT2}, s{sT3}, 12'); a(f's_sub_u32 s{sT}, s{sT}, s{sT2}')
        a(f's_mul_i32 s{sRT}, s{sT}, 21846'); a(f's_lshr_b32 s{sRT}, s{sRT}, 16'); a(f's_mul_i32 s{sT2}, s{sRT}, 3'); a(f's_sub_u32 s{sCT}, s{sT}, s{sT2}')
    elif wmap != 1:
        a(f's_sub_u32 s{sCT}, s{sT2}, 28')
        a(f's_and_b32 s{sRT}, s{sT}, 3')
        a(f's_lshr_b32 s{sT3}, s{sT}, 2')
    else:
        a(f's_sub_u32 s{sT2}, s{sT2}, 16'); a(f's_mul_i32 s{sRT}, s{sT2}, 21846'); a(f's_lshr_b32 s{sRT}, s{sRT}, 16')
        a(f's_mul_i32 s{sT3}, s{sRT}, 3'); a(f's_sub_u32 s{sCT}, s{sT2}, s{sT3}')
        a(f's_sub_u32 s{sT3}, s{sT}, 6')
    a(f's_lshl_b32 s{sOX}, s{sRT}, 17')
    for j in range(3):
        a(f's_mov_b32 s{sSW[j]}, 10')
        a(f's_mul_i32 s{sOB[j]}, s{sCT}, 3'); a(f's_add_u32 s{sOB[j]}, s{sOB[j]}, {j}')
        a(f's_cmp_ge_u32 s{sOB[j]}, 8'); a(f's_cselect_b32 s{sTY[j]}, 3, 0'); a(f's_min_u32 s{sOB[j]}, s{sOB[j]}, 7')
        a(f's_lshl_b32 s{sOW[j]}, s{sOB[j]}, 7'); a(f's_lshl_b32 s{sT}, s{sT3}, 19'); a(f's_add_u32 s{sOW[j]}, s{sOW[j]}, s{sT}')
    a(f's_add_u32 s{sFOLD}, s{sT3}, 1')
    a.label(lD)
    a(f'v_lshrrev_b32 {t0}, 3, {L}')
    a(f'v_and_b32 {t1}, 7, {L}')
    a(f'v_lshrrev_b32 {t2}, 1, {t0}')
    a(f'v_xor_b32 {t3}, {t2}, {t1}')
    a(f's_lshl_b32 s{sT}, s{sW8}, 4')
    a(f'v_add_u32 {t4}, s{sT}, {t0}'); a(f'v_lshlrev_b32 {t4}, 10, {t4}'); a(f'v_add_u32 {t4}, s{sOX}, {t4}')
    a(f's_mov_b32 s{sOX}, 0')
    a(f'v_lshl_add_u32 {v(VX0)}, {t3}, 4, {t4}')
    a(f'v_xor_b32 {t3}, 4, {t3}'); a(f'v_add_u32 {t4}, 8192, {t4}')
    a(f'v_lshl_add_u32 {v(VX1)}, {t3}, 4, {t4}')
    a(f'v_and_b32 {t2}, 1, {t2}'); a(f's_and_b32 s{sT}, s{sW8}, 1'); a(f's_lshl_b32 s{sT}, s{sT}, 1')
    a(f'v_or_b32 {t2}, s{sT}, {t2}'); a(f'v_lshlrev_b32 {t2}, 1, {t2}'); a(f'v_xor_b32 {t2}, {t2}, {t1}'); a(f'v_lshlrev_b32 {t2}, 4, {t2}')
    a(f's_lshl_b32 s{sT}, s{sW8}, 3'); a(f'v_add_u32 {t0}, s{sT}, {t0}')
    for j in range(3):
        a(f'v_lshlrev_b32 {v(VW+j)}, s{sSW[j]}, {t0}'); a(f'v_add_u32 {v(VW+j)}, {v(VW+j)}, {t2}'); a(f'v_add_u32 {v(VW+j)}, s{sOW[j]}, {v(VW+j)}')
        a(f's_add_u32 s{sSW[j]}, s{sSW[j]}, 6')
    sKS = sC1
    if rot:
        a(f's_lshr_b32 s{sT2}, s2, 3'); a(f's_and_b32 s{sT}, s{sT2}, 3'); a(f's_lshl_b32 s{sT}, s{sT}, 1'); a(f's_lshr_b32 s{sT2}, s{sT2}, 2')
        a(f's_add_u32 s{sT}, s{sT}, s{sT2}'); a(f's_and_b32 s{sT2}, s2, 1'); a(f's_add_u32 s{sT}, s{sT}, s{sT2}')
        a(f's_mul_i32 s{sT2}, s{sCT}, 3'); a(f's_lshl_b32 s{sT3}, s{sRT}, 1'); a(f's_add_u32 s{sT2}, s{sT2}, s{sT3}')
        a(f's_cmp_lg_u32 s{sFOLD}, 0'); a(f's_cselect_b32 s{sKS}, s{sT2}, s{sT}'); a(f's_and_b32 s{sKS}, s{sKS}, 7')
        if rot == 2:
            a(f's_lshr_b32 s{sT2}, s2, 3'); a(f's_lshr_b32 s{sT}, s{sT2}, 2'); a(f's_add_u32 s{sT}, s{sT}, s{sT2}')
            a(f's_and_b32 s{sT}, s{sT}, 1'); a(f's_lshl_b32 s{sKS}, s{sT}, 2')
        if rot == 4:
            a(f's_add_u32 s{sT}, s{sRT}, s{sCT}'); a(f's_and_b32 s{sT}, s{sT}, 1'); a(f's_lshl_b32 s{sKS}, s{sT}, 2')
        if rot == 3:
            a(f's_lshr_b32 s{sT2}, s2, 3'); a(f's_lshr_b32 s{sT}, s{sT2}, 2'); a(f's_and_b32 s{sT2}, s{sT2}, 3'); a(f's_add_u32 s{sT}, s{sT}, s{sT2}')
            a(f's_mul_i32 s{sT2}, s{sT}, 21846'); a(f's_lshr_b32 s{sT2}, s{sT2}, 16'); a(f's_mul_i32 s{sT2}, s{sT2}, 3'); a(f's_sub_u32 s{sT}, s{sT}, s{sT2}')
            a(f's_mul_i32 s{sKS}, s{sT}, 3')
    else:
        a(f's_mov_b32 s{sKS}, 0')
    a(f's_lshl_b32 s{sOX}, s{sKS}, 7')

    def dma_groups(st):
        base = (st % R) * STG
        g = []
        g.append(([f's_lshl_b32 s{sT}, s{sM0}, 1', f's_add_u32 m0, s{sT}, {base}'],
                  [f'buffer_load_dwordx4 {v(VX0)}, s[{sX}:{sX+3}], s{sOX} offen{xf} lds']))
        g.append(([f's_add_u32 m0, m0, 1024'],
                  [f'buffer_load_dwordx4 {v(VX1)}, s[{sX}:{sX+3}], s{sOX} offen{xf} lds']))
        for j in range(3):
            post = [f'buffer_load_dwordx4 {v(VW+j)}, s[{sB[j]}:{sB[j]+3}], s{sOW[j]} offen{wf} lds']
            if j == 2: post += [f's_add_u32 s{sKS}, s{sKS}, 1', f's_and_b32 s{sKS}, s{sKS}, 7', f's_lshl_b32 s{sOX}, s{sKS}, 7']
            g.append(([f's_lshl_b32 s{sOW[j]}, s{sKS}, s{sSW[j]}', f's_add_u32 m0, s{sM0}, {base + 16384 + j*8192}'], post))
        return g
    def dma(st):
        for pre, post in dma_groups(st):
            for l in pre + post: a(l)
    a('s_waitcnt lgkmcnt(0)')
    lF2, lD2 = a.new('K1F2'), a.new('K1D2')
    a(f's_mov_b32 s{sWs}, s98'); a(f's_mov_b32 s{sWs+1}, s99'); a(f's_mov_b32 s{sWs+2}, {WS_BYTES}'); a(f's_mov_b32 s{sWs+3}, {SRD3}')
    a(f's_mov_b32 s{sX+3}, {SRD3}')
    for j in range(3): a(f's_mov_b32 s{sB[j]+3}, {SRD3}')
    a(f's_cmp_lg_u32 s{sFOLD}, 0'); a(f's_cbranch_scc1 {lF2}')
    a(f's_mov_b32 s{sX}, s4'); a(f's_mov_b32 s{sX+1}, s5'); a(f's_mov_b32 s{sX+2}, {OUT_BYTES}')
    for j in range(3):
        b = sB[j]
        a(f's_lshr_b32 s{sT}, s{sOB[j]}, 3')
        a(f's_cmp_eq_u32 s{sT}, 1'); a(f's_cselect_b32 s{b}, s8, s6'); a(f's_cselect_b32 s{b+1}, s9, s7')
        a(f's_cmp_eq_u32 s{sT}, 2'); a(f's_cselect_b32 s{b}, s10, s{b}'); a(f's_cselect_b32 s{b+1}, s11, s{b+1}')
        a(f's_cmp_ge_u32 s{sT}, 3'); a(f's_cselect_b32 s{b}, s14, s{b}'); a(f's_cselect_b32 s{b+1}, s15, s{b+1}')
        a(f's_mov_b32 s{b+2}, {1 << 19}'); a(f's_cselect_b32 s{b+2}, {1 << 20}, s{b+2}')
    a(f's_branch {lD2}')
    a.label(lF2)
    a(f's_cmp_eq_u32 s{sFOLD}, 2'); a(f's_cselect_b32 s{sX}, s18, s12'); a(f's_cselect_b32 s{sX+1}, s19, s13')
    a(f's_mov_b32 s{sX+2}, {1 << 19}')
    for j in range(3):
        b = sB[j]
        a(f's_mov_b32 s{b}, s100'); a(f's_mov_b32 s{b+1}, s101'); a(f's_mov_b32 s{b+2}, {1 << 20}')
    a.label(lD2)
    TCH = T0 + 5
    if touch:
        lW, lT = a.new('K1TW'), a.new('K1TD')
        a(f's_mov_b32 s92, s{sX}'); a(f's_mov_b32 s93, s{sX+1}'); a(f's_mov_b32 s94, s{sX+2}'); a(f's_mov_b32 s95, {SRD3}')
        a(f'v_mov_b32 {v(TCH)}, {v(VX0)}')
        a(f's_lshr_b32 s{sT2}, s2, 3')
        a(f's_cmp_ge_u32 s{sW8}, 2'); a(f's_cbranch_scc1 {lW}')
        a(f's_lshr_b32 s{sT2}, s{sT2}, 2'); a(f's_cmp_lg_u32 s{sFOLD}, 0'); a(f's_cselect_b32 s{sT2}, s{sCT}, s{sT2}')
        a(f's_add_u32 s{sT2}, s{sT2}, 1'); a(f's_lshl_b32 s{sT2}, s{sT2}, 7')
        a(f'v_and_b32 {t0}, 0xfffffc00, {v(VX0)}')
        a(f'v_lshrrev_b32 {t1}, 3, {L}'); a(f's_lshl_b32 s{sT}, s{sW8}, 4'); a(f'v_add_u32 {t1}, s{sT}, {t1}'); a(f'v_lshlrev_b32 {t1}, 10, {t1}')
        a(f'v_sub_u32 {t0}, {t0}, {t1}')
        a(f's_lshl_b32 s{sT}, s{sW8}, 6'); a(f'v_add_u32 {t1}, s{sT}, {L}'); a(f'v_lshl_add_u32 {t0}, {t1}, 10, {t0}')
        a(f'v_add_u32 {v(TCH)}, s{sT2}, {t0}')
        a(f's_branch {lT}')
        a.label(lW)
        a(f's_and_b32 s{sT2}, s{sT2}, 3'); a(f's_cmp_lg_u32 s{sFOLD}, 0'); a(f's_cselect_b32 s{sT2}, s{sRT}, s{sT2}'); a(f's_and_b32 s{sT2}, s{sT2}, 3')
        a(f's_mul_i32 s{sT2}, s{sT2}, 96'); a(f's_and_b32 s{sT}, s{sW8}, 1'); a(f's_mul_i32 s{sT}, s{sT}, 48'); a(f's_add_u32 s{sT2}, s{sT2}, s{sT}'); a(f's_add_u32 s{sT2}, s{sT2}, 128')
        a(f'v_min_u32 {t0}, 47, {L}'); a(f'v_add_u32 {t0}, s{sT2}, {t0}')
        a(f's_sub_u32 s{sT}, s{sW8}, 2'); a(f's_lshr_b32 s{sT}, s{sT}, 1')
        for j in range(3):
            lj = a.new('K1TJ')
            a(f's_cmp_lg_u32 s{sT}, {j}'); a(f's_cbranch_scc1 {lj}')
            a(f's_lshr_b32 s{sT2}, s{sSW[j]}, 6'); a(f'v_mul_lo_u32 {t0}, {t0}, s{sT2}'); a(f'v_add_u32 {v(TCH)}, s{sOW[j]}, {t0}')
            a(f's_mov_b32 s92, s{sB[j]}'); a(f's_mov_b32 s93, s{sB[j]+1}'); a(f's_mov_b32 s94, s{sB[j]+2}'); a(f's_mov_b32 s95, {SRD3}')
            a.label(lj)
        a.label(lT)
    dma(0); a('s_barrier'); dma(1)
    if touch: a(f'buffer_load_dword {v(TCH+1)}, {v(TCH)}, s[92:95], 0 offen')
    if prio:
        a('s_setprio 0')
        if prio == 1:
            lp = a.new('K1P')
            a(f's_cmp_lt_u32 s{sW8}, 4'); a(f's_cbranch_scc1 {lp}'); a('s_setprio 1'); a.label(lp)
    P.stamp()

    a(f'v_and_b32 {t0}, 15, {L}'); a(f'v_lshrrev_b32 {t1}, 4, {L}')
    a(f'v_lshrrev_b32 {t2}, 1, {t0}'); a(f'v_xor_b32 {t2}, {t2}, {t1}')
    a(f'v_lshlrev_b32 {t2}, 4, {t2}'); a(f'v_lshl_add_u32 {t2}, {t0}, 7, {t2}')
    a(f's_lshl_b32 s{sT}, s{sWR}, 13')
    a(f'v_add_u32 {v(AX)}, s{sT}, {t2}'); a(f'v_xor_b32 {v(AX+1)}, 64, {v(AX)}')
    a(f's_lshl_b32 s{sT}, s{sWC}, 11')
    a(f'v_add_u32 {v(AXS)}, s{sT}, {v(AX)}'); a(f'v_add_u32 {v(AXS+1)}, s{sT}, {v(AX+1)}')
    for b in (AX, AXS):
        a(f'v_add_u32 {v(b+2)}, {2*STG}, {v(b)}'); a(f'v_add_u32 {v(b+3)}, {2*STG}, {v(b+1)}')
    a(f'v_bfe_u32 {t2}, {L}, 2, 2')
    a(f'v_lshl_add_u32 {t3}, {t1}, 3, {t2}'); a(f'v_lshlrev_b32 {t3}, 7, {t3}')
    a(f'v_lshrrev_b32 {t2}, 1, {t2}'); a(f'v_and_b32 {t4}, 1, {t1}'); a(f'v_lshl_or_b32 {t2}, {t4}, 1, {t2}'); a(f'v_lshlrev_b32 {t2}, 1, {t2}')
    a(f'v_bfe_u32 {t4}, {L}, 1, 1'); a(f's_lshl_b32 s{sT}, s{sWC}, 1'); a(f'v_or_b32 {t4}, s{sT}, {t4}')
    a(f'v_xor_b32 {t2}, {t2}, {t4}'); a(f'v_lshl_add_u32 {t3}, {t2}, 4, {t3}')
    a(f'v_and_b32 {t4}, 1, {L}'); a(f'v_lshl_add_u32 {t3}, {t4}, 3, {t3}')
    a(f'v_add_u32 {v(AW)}, 16384, {t3}'); a(f'v_add_u32 {v(AW+1)}, {16384 + 2*STG}, {t3}')
    ST, CS, GSL, GTL = 0, 1024, 4096, 8192
    A_STW, A_CSW, A_CSR, A_STR, VA, VG, VS, VC0, VJ3, VGA, VGL, VTS = range(158, 170)
    a(f'v_and_b32 {t0}, 15, {L}'); a(f'v_lshrrev_b32 {t1}, 4, {L}')
    a(f'v_and_b32 {v(VJ3)}, 3, {t0}')
    a(f's_lshl_b32 s{sT}, s{sW8}, 4'); a(f'v_add_u32 {t2}, s{sT}, {t0}'); a(f'v_lshlrev_b32 {v(A_STW)}, 3, {t2}')
    a(f'v_lshlrev_b32 {t3}, 4, {t1}'); a(f's_mul_i32 s{sT}, s{sW8}, 192'); a(f'v_add_u32 {v(A_CSW)}, s{sT}, {t3}')
    a(f's_mul_i32 s{sT}, s{sWC}, 192'); a(f'v_add_u32 {v(A_CSR)}, s{sT}, {t3}')
    a(f's_lshl_b32 s{sT}, s{sWR}, 9'); a(f'v_lshl_add_u32 {v(A_STR)}, {t0}, 3, s{sT}')
    a(f'v_lshlrev_b32 {v(VA)}, 4, {L}')
    a(f'v_and_b32 {t2}, 1, {t1}'); a(f'v_lshl_add_u32 {t2}, {t2}, 4, {t0}')
    a(f'v_lshrrev_b32 {t3}, 1, {t1}')
    a(f's_lshl_b32 s{sT}, s{sWC}, 1'); a(f'v_or_b32 {t4}, s{sT}, {t3}'); a(f'v_and_b32 {v(VG)}, 7, {t0}'); a(f'v_xor_b32 {t4}, {t4}, {v(VG)}')
    a(f'v_lshlrev_b32 {t4}, 4, {t4}'); a(f'v_lshl_add_u32 {v(VG)}, {t2}, 7, {t4}')
    a(f's_lshl_b32 s{sT}, s{sWR}, 13'); a(f'v_add_u32 {v(VG)}, s{sT}, {v(VG)}')
    a(f'v_lshlrev_b32 {v(VS)}, 3, {t2}'); a(f'v_lshl_add_u32 {v(VS)}, {t3}, 2, {v(VS)}')
    a(f's_lshl_b32 s{sT}, s{sWC}, 10'); a(f's_lshl_b32 s{sT2}, s{sWR}, 9'); a(f's_add_u32 s{sT}, s{sT}, s{sT2}'); a(f'v_add_u32 {v(VS)}, s{sT}, {v(VS)}')
    a(f'v_mov_b32 {v(VC0)}, {f32(GC0)}')
    a(f'v_lshrrev_b32 {t2}, 3, {L}'); a(f'v_and_b32 {t3}, 7, {L}'); a(f'v_xor_b32 {t4}, {t3}, {t2}')
    a(f'v_lshlrev_b32 {t4}, 4, {t4}'); a(f'v_lshl_add_u32 {t4}, {t2}, 7, {t4}'); a(f's_lshl_b32 s{sT}, s{sW8}, 11'); a(f'v_add_u32 {v(VGL)}, s{sT}, {t4}')
    a(f'v_lshlrev_b32 {t2}, 10, {t2}'); a(f'v_lshl_add_u32 {v(VGA)}, {t3}, 4, {t2}')
    a(f's_lshl_b32 s{sT}, s{sW8}, 8'); a(f'v_lshl_add_u32 {v(VTS)}, {L}, 2, s{sT}')
    a(f'v_lshrrev_b32 {t3}, 2, {t0}'); a(f'v_cmp_eq_u32 s[94:95], {t3}, {t1}'); a(f'v_cmp_eq_u32 s[96:97], 0, {t0}')
    for i in range(4): a(f'v_mov_b32 {v(ONES+i)}, 0x3f803f80')
    for i in range(AC, AC+12): a(f'v_mov_b32 {v(i)}, 0')

    def reads(u, stats):
        st, h = u >> 1, u & 1
        r = st % R; hi = 1 if r == 2 else 0; off = (r & 1) * STG if r < 2 else 0; se = u & 1
        out = []
        for s_ in range(4):
            out.append(f'ds_read_b128 {v(fr(se,"x",s_),4)}, {v(AX + 2*hi + h)} offset:{off + s_*2048}')
        if stats: out.append(f'ds_read_b128 {v(fr(se,"xs"),4)}, {v(AXS + 2*hi + h)} offset:{off}')
        for j in range(3):
            for e in range(2):
                out.append(f'ds_read_b64_tr_b16 {v(fr(se,"w",j)+2*e,2)}, {v(AW + hi)} offset:{off + j*8192 + h*4096 + e*512}')
        return out
    def mfmas(u, wr):
        se = u & 1; out = []
        first = (u == 0)
        mm = lambda d, x, y, z=False: f'v_mfma_f32_16x16x32_bf16 {v(d,4)}, {v(x,4)}, {v(y,4)}, {"0" if z else v(d,4)}'
        for j in range(3):
            for s_ in range(4):
                d = ACC + (j*4+s_)*4
                out.append(mm(d, fr(se,'w',j), fr(se,'x',s_), first) if wr < 2 else mm(d, fr(se,'x',s_), fr(se,'w',j), first))
        if wr < 2:
            out.insert(4, mm(AS, ONES, fr(se,'xs'), first))
            out.insert(9, mm(AG, fr(se,'xs'), fr(se,'xs'), first))
            for j in range(3):
                if (j + u + wr) % 2 == 0: out.append(mm(AC + 4*j, fr(se,'w',j), ONES))
        return out

    TR = FR
    def stats_items():
        d, mean, var_ = v(TR), v(TR+2), v(TR+3)
        o = []
        o.append(f'v_cmp_eq_u32 vcc, 1, {v(VJ3)}\nv_cndmask_b32 {d}, {v(AG)}, {v(AG+1)}, vcc')
        o.append(f'v_cmp_eq_u32 vcc, 2, {v(VJ3)}\nv_cndmask_b32 {d}, {d}, {v(AG+2)}, vcc')
        o.append(f'v_cmp_eq_u32 vcc, 3, {v(VJ3)}\nv_cndmask_b32 {d}, {d}, {v(AG+3)}, vcc')
        o.append(f's_mov_b32 s{sT2}, {f32(1/512)}\nv_mul_f32 {mean}, s{sT2}, {v(AS)}\nv_mul_f32 {d}, s{sT2}, {d}')
        o.append(f'v_fma_f32 {var_}, -{mean}, {mean}, {d}\ns_mov_b32 s{sT2}, {f32(1e-5)}')
        o.append(f'v_max_f32 {var_}, 0, {var_}\nv_add_f32 {var_}, s{sT2}, {var_}')
        o.append(f'v_rsq_f32 {var_}, {var_}\nv_sub_f32 {mean}, 0, {mean}')
        o.append(f's_mov_b64 exec, s[96:97]\n' + '\n'.join(f'ds_write_b128 {v(A_CSW)}, {v(AC+4*j,4)} offset:{CS + j*64}' for j in range(3)) + '\ns_mov_b64 exec, -1')
        o.append(f's_mov_b64 exec, s[94:95]\nds_write_b64 {v(A_STW)}, {v(TR+2,2)} offset:{ST}\ns_mov_b64 exec, -1')
        return o
    a(f's_waitcnt vmcnt({6 if touch else 5})'); a('s_barrier')
    P.stamp()
    labs = [a.new('K1V') for _ in range(3)]
    lE, lEF = a.new('K1EPI'), a.new('K1EPF')
    a(f's_cmp_lg_u32 s{sFOLD}, 0'); a(f's_cbranch_scc1 {labs[2]}')
    a(f's_cmp_eq_u32 s{sWR}, 1'); a(f's_cbranch_scc1 {labs[1]}')
    for var in range(3):
        a.label(labs[var])
        stats = var < 2
        for l in reads(0, stats): a(l)
        pend = dma_groups(2)
        issued = 3
        for u in range(2*NST):
            st = u >> 1
            if u & 1 and st + 1 < NST:
                assert not pend
                a(f's_waitcnt vmcnt({5*(issued - (st+2)) + (1 if touch and st == 0 else 0)}) lgkmcnt(0)')
                a('s_barrier')
                if st in (1, 3, 5):
                    n0 = P.n; P.n = 4 + st // 2; P.stamp(); P.n = n0
                if issued < NST:
                    pend = dma_groups(issued); issued += 1
            else:
                a('s_waitcnt lgkmcnt(0)')
            rd = reads(u + 1, stats) if u + 1 < 2*NST else []
            mf = mfmas(u, var)
            quota = len(pend) if (u == 0 or not (u & 1)) else min(3, len(pend))
            last = (u == 2*NST - 1) and var < 2
            if last:
                mf = [m for m in mf if m.split()[1].startswith(('v[48:', 'v[52:', 'v[56:', 'v[60:', 'v[64:'))] + [m for m in mf if not m.split()[1].startswith(('v[48:', 'v[52:', 'v[56:', 'v[60:', 'v[64:'))]
                items = stats_items(); nst_ = len(mf) - 12
                for i, m in enumerate(mf):
                    a(m)
                    if i >= nst_ + 2 and items: a(items.pop(0))
                for it_ in items: a(it_)
                continue
            n = max(len(rd), len(mf))
            slots = [1 + (k * (len(mf) - 1)) // quota for k in range(quota)] if quota else []
            post = None
            for i in range(n):
                if i in slots:
                    pre, post = pend.pop(0)
                    for l in pre: a(l)
                if i < len(mf): a(mf[i])
                if post:
                    for l in post: a(l)
                    post = None
                if i < len(rd): a(rd[i])
        if var == 0: a(f's_branch {lE}')
        if var == 1: a(f's_branch {lE}')
    P.n = 7; P.stamp()
    PK = FR
    a(f'v_and_b32 {t0}, 15, {L}'); a(f'v_lshrrev_b32 {t1}, 4, {L}')
    a(f's_and_b32 s{sT}, s{sWC}, 1'); a(f's_lshl_b32 s{sT}, s{sT}, 4')
    a(f'v_add_u32 {t2}, s{sT}, {t0}'); a(f'v_lshrrev_b32 {t3}, 1, {t1}'); a(f'v_lshl_add_u32 {t2}, {t3}, 5, {t2}'); a(f'v_lshlrev_b32 {t2}, 4, {t2}')
    a(f'v_and_b32 {t4}, 1, {t1}'); a(f'v_lshl_add_u32 {t2}, {t4}, 3, {t2}')
    a(f's_cmp_eq_u32 s{sFOLD}, 2'); a(f's_mov_b32 s{sT3}, {WO1}'); a(f's_cselect_b32 s{sT3}, {WO2}, s{sT3}')
    a(f's_lshl_b32 s{sT}, s{sRT}, 3'); a(f's_lshl_b32 s{sT2}, s{sWR}, 2'); a(f's_add_u32 s{sT}, s{sT}, s{sT2}'); a(f's_lshl_b32 s{sT}, s{sT}, 10')
    a(f's_add_u32 s{sT3}, s{sT3}, s{sT}')
    for j in range(3):
        lS = a.new('K1FS')
        a(f's_cmp_eq_u32 s{sTY[j]}, 3'); a(f's_cbranch_scc1 {lS}')
        a(f's_lshl_b32 s{sT}, s{sOB[j]}, 1'); a(f's_lshr_b32 s{sT2}, s{sWC}, 1'); a(f's_add_u32 s{sT}, s{sT}, s{sT2}'); a(f's_mul_i32 s{sT}, s{sT}, {S32}')
        a(f's_add_u32 s{sT}, s{sT}, s{sT3}')
        for s_ in range(4):
            b = ACC + (j*4+s_)*4; p = PK + 2*s_
            a(f'v_cvt_pk_bf16_f32 {v(p)}, {v(b)}, {v(b+1)}'); a(f'v_cvt_pk_bf16_f32 {v(p+1)}, {v(b+2)}, {v(b+3)}')
            a(f'buffer_store_dwordx2 {v(p,2)}, {t2}, s[{sWs}:{sWs+3}], s{sT} offen offset:{s_*1024}{stf}')
        a.label(lS)
    a('s_branch K1_FIN')

    a.label(lE)
    P.n = 7; P.stamp()
    a('s_waitcnt lgkmcnt(0)'); a('s_barrier')
    P.stamp()
    STA = TR + 12
    for s_ in range(4): a(f'ds_read_b64 {v(STA+2*s_,2)}, {v(A_STR)} offset:{ST + s_*128}')
    for j in range(3):
        a(f'ds_read_b128 {v(AC+4*j,4)}, {v(A_CSR)} offset:{CS + j*64}')
        a(f'ds_read_b128 {v(TR+4*j,4)}, {v(A_CSR)} offset:{CS + 768 + j*64}')
    sRB = sM0
    a(f's_lshl_b32 s{sRB}, s{sRT}, 2'); a(f's_lshl_b32 s{sT}, s{sWR}, 1'); a(f's_add_u32 s{sRB}, s{sRB}, s{sT}')
    GC = TR + 48
    for i, c in enumerate((GC0, GC0, GC1, GC1, 1.0, 1.0)): a(f'v_mov_b32 {v(GC+i)}, {f32(c)}')
    a('s_waitcnt lgkmcnt(0)')
    for i in range(12): a(f'v_add_f32 {v(AC+i)}, {v(AC+i)}, {v(TR+i)}')
    a(f'v_and_b32 {t0}, 15, {L}'); a(f'v_lshrrev_b32 {t1}, 4, {L}')
    PK = TR + 24
    GT = TR + 40
    def pack(j, pair, p):
        b = ACC + (j*4 + 2*pair)*4
        a(f'v_cvt_pk_bf16_f32 {v(p)}, {v(b)}, {v(b+1)}'); a(f'v_cvt_pk_bf16_f32 {v(p+1)}, {v(b+2)}, {v(b+3)}')
        a(f'v_cvt_pk_bf16_f32 {v(p+2)}, {v(b+4)}, {v(b+5)}'); a(f'v_cvt_pk_bf16_f32 {v(p+3)}, {v(b+6)}, {v(b+7)}')
        a(f'v_permlane16_swap_b32 {v(p)}, {v(p+2)}'); a(f'v_permlane16_swap_b32 {v(p+1)}, {v(p+3)}')
    for j in range(3):
        lN, lG, lFS = a.new('K1N'), a.new('K1G'), a.new('K1FS')
        ty, bi = sTY[j], sOB[j]
        if j == 0:
            a(f's_cmp_eq_u32 s{ty}, 3'); a(f's_cbranch_scc1 {lN}')
        for s_ in range(4):
            for r in (0, 2):
                x = ACC + (j*4+s_)*4 + r
                a(f'v_pk_fma_f32 {v(x,2)}, {v(STA+2*s_,2)}, {v(AC+4*j+r,2)}, {v(x,2)} op_sel_hi:[0,1,1]')
        for s_ in range(4):
            for r in (0, 2):
                x = ACC + (j*4+s_)*4 + r
                a(f'v_pk_mul_f32 {v(x,2)}, {v(x,2)}, {v(STA+2*s_,2)} op_sel:[0,1] op_sel_hi:[1,1]')
        if j > 0:
            if j == 1:
                a(f's_cmp_eq_u32 s{ty}, 0'); a(f's_cbranch_scc1 {lFS}')
            for h in range(2):
                gelu_block(a, ACC + j*16 + 8*h, 8, GT, GC)
            if j == 2:
                P.stamp()
                a(f's_cmp_eq_u32 s{ty}, 2'); a(f's_cbranch_scc1 {lG}')
        a.label(lFS)
        a(f's_lshr_b32 s{sT}, s{bi}, 3'); a(f's_mul_i32 s{sT}, s{sT}, {REG}')
        if QF: a(f's_add_u32 s{sT}, s{sT}, {QF}')
        a(f's_and_b32 s{sT2}, s{bi}, 7'); a(f's_lshl_b32 s{sT2}, s{sT2}, 2'); a(f's_add_u32 s{sT2}, s{sT2}, s{sWC}'); a(f's_lshl_b32 s{sT2}, s{sT2}, 10')
        a(f's_add_u32 s{sT}, s{sT}, s{sT2}'); a(f's_mul_i32 s{sT2}, s{sRB}, {S32}'); a(f's_add_u32 s{sT}, s{sT}, s{sT2}')
        for pair in range(2):
            p = PK + 4*pair
            pack(j, pair, p)
            if pair: a(f's_add_u32 s{sT}, s{sT}, {S32}')
            a(f'buffer_store_dwordx4 {v(p,4)}, {v(VA)}, s[{sWs}:{sWs+3}], s{sT} offen{stf}')
        if j == 2:
            a(f's_branch {lN}')
            a.label(lG)
            a(f's_and_b32 s{sT3}, s{bi}, 7')
            sGS = sC1
            a(f's_lshl_b32 s{sGS}, s{sT3}, 14'); a(f's_add_u32 s{sGS}, s{sGS}, {GS}')
            a(f's_lshl_b32 s{sT}, s{sRT}, 7'); a(f's_lshl_b32 s{sT2}, s{sW8}, 4'); a(f's_add_u32 s{sT}, s{sT}, s{sT2}'); a(f's_lshl_b32 s{sT}, s{sT}, 10')
            a(f's_lshl_b32 s{sT2}, s{sT3}, 7'); a(f's_add_u32 s{sT}, s{sT}, s{sT2}'); a(f's_add_u32 s{sT}, s{sT}, {G}')
            SQ = PK + 8
            TQ_ = GT
            for pair in range(2):
                for sl in range(2):
                    b = ACC + (j*4 + 2*pair + sl)*4; q = TQ_ + 4*sl
                    a(f'v_pk_add_f32 {v(q,2)}, {v(b,2)}, {v(b+2,2)}'); a(f'v_pk_mul_f32 {v(q+2,2)}, {v(b,2)}, {v(b,2)}')
                    a(f'v_pk_fma_f32 {v(q+2,2)}, {v(b+2,2)}, {v(b+2,2)}, {v(q+2,2)}')
                for sl in range(2):
                    q = TQ_ + 4*sl
                    a(f'v_add_f32 {v(SQ+sl)}, {v(q)}, {v(q+1)}'); a(f'v_add_f32 {v(SQ+2+sl)}, {v(q+2)}, {v(q+3)}')
                p = PK + 4*pair
                pack(j, pair, p)
                a(f'ds_write_b128 {v(VG)}, {v(p,4)} offset:{GTL + pair*4096}')
                a(f'v_permlane16_swap_b32 {v(SQ)}, {v(SQ+1)}'); a(f'v_permlane16_swap_b32 {v(SQ+2)}, {v(SQ+3)}')
                a(f'v_add_f32 {v(SQ)}, {v(SQ)}, {v(SQ+1)}'); a(f'v_add_f32 {v(SQ+2)}, {v(SQ+2)}, {v(SQ+3)}')
                a(f'v_permlane32_swap_b32 {v(SQ)}, {v(SQ+2)}')
                a(f'v_add_f32 {v(SQ)}, {v(SQ)}, {v(SQ+2)}')
                a(f'ds_write_b32 {v(VS)}, {v(SQ)} offset:{GSL + pair*256}')
            a('s_waitcnt lgkmcnt(0)'); a('s_barrier')
            a(f'ds_read_b128 {v(PK,4)}, {v(VGL)} offset:{GTL}'); a(f'ds_read_b128 {v(PK+4,4)}, {v(VGL)} offset:{GTL + 1024}')
            lK = a.new('K1GK')
            a(f's_cmp_ge_u32 s{sW8}, 4'); a(f's_cbranch_scc1 {lK}')
            for w in range(4): a(f'ds_read_b32 {v(SQ+w)}, {v(VTS)} offset:{GSL + w*1024}')
            a(f's_lshl_b32 s{sT2}, s{sRT}, 10'); a(f's_add_u32 s{sT2}, s{sT2}, s{sGS}')
            a('s_waitcnt lgkmcnt(0)')
            a(f'v_add_f32 {v(SQ)}, {v(SQ)}, {v(SQ+1)}'); a(f'v_add_f32 {v(SQ+2)}, {v(SQ+2)}, {v(SQ+3)}'); a(f'v_add_f32 {v(SQ)}, {v(SQ)}, {v(SQ+2)}')
            a(f'buffer_store_dword {v(SQ)}, {v(VTS)}, s[{sWs}:{sWs+3}], s{sT2} offen{stf}')
            a.label(lK)
            a('s_waitcnt lgkmcnt(0)')
            a(f'buffer_store_dwordx4 {v(PK,4)}, {v(VGA)}, s[{sWs}:{sWs+3}], s{sT} offen{stf}')
            a(f's_add_u32 s{sT}, s{sT}, 8192')
            a(f'buffer_store_dwordx4 {v(PK+4,4)}, {v(VGA)}, s[{sWs}:{sWs+3}], s{sT} offen{stf}')
            if j == 1: a('s_barrier')
        a.label(lN)
        if j < 2: P.stamp()
    a.label('K1_FIN')
    P.n = 12; P.stamp()
    if prof: a('s_waitcnt vmcnt(0)')
    P.stamp(); P.real()
    P.finish(sW8, sWs, sWs+1)
    a.label('K1_END')
    a('s_endpgm')
    return dict(name=name, body=a.text(), grid=256, block=512, lds=R*STG, vgpr=172, agpr=0, sgpr=102)
```

```python
from common import *

SCALE = LOG2E / (512 ** 0.5)
KT_BYTES = 131072
CV_W = 9216
TRS = 272
NPART = 32

def build(name='k2_kernel', prof=False, prio=0, stf=' sc1', CH=2, LA=9, LA0=9, xpf=1, stv=None, stc=None):
    stv = stf if stv is None else stv; stc = stf if stc is None else stc
    if False:
        pass
    a = Asm()
    P = Prof(a, prof, 1)
    LANE, T0 = 0, 2
    L = v(LANE); t0, t1, t2, t3, t4 = (v(T0 + i) for i in range(5))
    sW, sD = 8, 12
    sW8, sXC, sSL, sT, sT2, sT3 = 16, 17, 18, 19, 20, 21
    sA, sB, sOUT, sKT, sJOB, sM0, sOA, sOB, sML = 22, 23, 24, 25, 26, 27, 28, 29, 30
    a('s_cmp_ge_u32 s2, 256'); a('s_cbranch_scc1 K2_END')
    P.real(); P.stamp()
    a('s_load_dwordx2 s[4:5], s[0:1], 88'); a('s_load_dwordx2 s[6:7], s[0:1], 48'); a('s_load_dwordx2 s[34:35], s[0:1], 0')
    a(f'v_lshrrev_b32 {t0}, 6, v0'); a(f'v_and_b32 {L}, 63, v0')
    a(f'v_readfirstlane_b32 s{sW8}, {t0}')
    a(f's_and_b32 s{sXC}, s2, 7'); a(f's_lshr_b32 s{sSL}, s2, 3')
    a(f's_cmp_ge_u32 s{sSL}, 24'); a('s_cbranch_scc1 K2_CONV')
    a(f's_cmp_ge_u32 s{sW8}, 4'); a('s_cbranch_scc1 K2_END')

    KB, QR, ACC = 32, 64, 192
    lV, lJ = a.new('K2V'), a.new('K2J')
    a(f's_cmp_ge_u32 s{sSL}, 16'); a(f's_cbranch_scc1 {lV}')
    a(f's_mov_b32 s{sJOB}, 0')
    a(f's_lshr_b32 s{sT}, s{sXC}, 2'); a(f's_lshl_b32 s{sT}, s{sT}, 5')
    a(f's_and_b32 s{sKT}, s{sXC}, 1'); a(f's_lshl_b32 s{sKT}, s{sKT}, 2'); a(f's_lshr_b32 s{sT2}, s{sSL}, 2'); a(f's_add_u32 s{sKT}, s{sKT}, s{sT2}')
    a(f's_lshr_b32 s{sT2}, s{sXC}, 1'); a(f's_and_b32 s{sT2}, s{sT2}, 1'); a(f's_lshl_b32 s{sT2}, s{sT2}, 2')
    a(f's_and_b32 s{sT3}, s{sSL}, 3'); a(f's_add_u32 s{sT2}, s{sT2}, s{sT3}')
    a(f's_lshl_b32 s{sT2}, s{sT2}, 2'); a(f's_add_u32 s{sT2}, s{sT2}, s{sT}'); a(f's_add_u32 s{sT2}, s{sT2}, s{sW8}')
    a(f's_lshl_b32 s{sA}, s{sKT}, 2'); a(f's_add_u32 s{sA}, s{sA}, s{sT}'); a(f's_mul_i32 s{sA}, s{sA}, {S32}'); a(f's_add_u32 s{sA}, s{sA}, {KF}')
    a(f's_mul_i32 s{sB}, s{sT2}, {S32}'); a(f's_add_u32 s{sB}, s{sB}, {QF}')
    a(f's_mul_i32 s{sOUT}, s{sT2}, {S64}'); a(f's_lshl_b32 s{sT3}, s{sKT}, 13'); a(f's_add_u32 s{sOUT}, s{sOUT}, s{sT3}'); a(f's_add_u32 s{sOUT}, s{sOUT}, {PF}')
    a(f's_lshl_b32 s{sML}, s{sT2}, 3'); a(f's_add_u32 s{sML}, s{sML}, s{sKT}'); a(f's_lshl_b32 s{sML}, s{sML}, 8'); a(f's_add_u32 s{sML}, s{sML}, {ML}')
    a(f's_branch {lJ}')
    a.label(lV)
    a(f's_mov_b32 s{sJOB}, 1')
    a(f's_sub_u32 s{sT3}, s{sSL}, 16')
    a(f's_lshr_b32 s{sT}, s{sT3}, 2'); a(f's_lshl_b32 s{sT2}, s{sXC}, 1'); a(f's_add_u32 s{sT}, s{sT}, s{sT2}')
    a(f's_and_b32 s{sKT}, s{sT}, 7')
    a(f's_mul_i32 s{sA}, s{sT}, {4*S32}'); a(f's_add_u32 s{sA}, s{sA}, {VF}')
    a(f's_and_b32 s{sT3}, s{sT3}, 3'); a(f's_lshl_b32 s{sT3}, s{sT3}, 2'); a(f's_add_u32 s{sT3}, s{sT3}, s{sW8}')
    a(f's_mul_i32 s{sB}, s{sT3}, {S32}'); a(f's_add_u32 s{sB}, s{sB}, {WO1}')
    a(f's_lshr_b32 s{sT}, s{sT}, 3'); a(f's_lshl_b32 s{sT}, s{sT}, 4'); a(f's_add_u32 s{sT}, s{sT}, s{sT3}')
    a(f's_mul_i32 s{sOUT}, s{sT}, {S64}'); a(f's_lshl_b32 s{sT3}, s{sKT}, 13'); a(f's_add_u32 s{sOUT}, s{sOUT}, s{sT3}'); a(f's_add_u32 s{sOUT}, s{sOUT}, {VT}')
    a.label(lJ)
    VL16, RA, RB = 8, 9, 10
    a(f'v_lshlrev_b32 {v(VL16)}, 4, {L}')
    a(f'v_mov_b32 {v(RA)}, {v(VL16)}'); a(f'v_add_u32 {v(RB)}, 65536, {v(VL16)}')
    a(f's_lshl_b32 s{sM0}, s{sW8}, 15')
    a(f's_mul_i32 s{sOA}, s{sW8}, {S32}'); a(f's_add_u32 s{sOA}, s{sOA}, s{sA}'); a(f's_mov_b32 s{sOB}, s{sB}')
    a('s_waitcnt lgkmcnt(0)')
    srd(a, sW, 4, 5, WS_BYTES)
    def kload(k):
        if k % 4 == 0: a(f's_add_u32 m0, s{sM0}, {k*1024}')
        a(f'buffer_load_dwordx4 {v(VL16)}, s[{sW}:{sW+3}], s{sOA} offen offset:{(k%4)*1024} lds')
        a(f'buffer_load_dwordx4 {v(QR + 4*k, 4)}, {v(VL16)}, s[{sW}:{sW+3}], s{sOB} offen offset:{(k%4)*1024}')
        if k % 4 == 3:
            a(f's_add_u32 s{sOA}, s{sOA}, 4096'); a(f's_add_u32 s{sOB}, s{sOB}, 4096')
    for k in range(LA0): kload(k)
    P.stamp()
    def kreads(ks):
        se = ks & 1
        for kb in range(4):
            base = RA if kb < 2 else RB
            a(f'ds_read_b128 {v(KB + se*16 + kb*4, 4)}, {v(base)} offset:{(kb & 1)*32768 + ks*1024}')
    issued = LA0
    a(f's_waitcnt vmcnt({2*(issued - CH)})'); a('s_barrier')
    P.stamp()
    kreads(0)
    for ks in range(32):
        if ks + 1 < 32:
            if (ks + 1) % CH == 0:
                a(f's_waitcnt vmcnt({2*(issued - (ks + 1 + CH))})'); a('s_barrier')
                if ks + 1 in (8, 16, 24): P.stamp()
            kreads(ks + 1)
            a('s_waitcnt lgkmcnt(4)')
        else:
            a('s_waitcnt lgkmcnt(0)')
        se = ks & 1
        for kb in range(4):
            d = ACC + 16*kb
            a(f'v_mfma_f32_32x32x16_bf16 {v(d,16)}, {v(KB + se*16 + kb*4, 4)}, {v(QR + 4*ks, 4)}, {"0" if ks == 0 else v(d,16)}')
            if issued < 32 and (kb == 0 or (kb == 2 and issued - (ks + 1) < LA)):
                kload(issued); issued += 1
    P.stamp()
    lSE, lVE = a.new('K2SE'), a.new('K2VE')
    PK = 32
    def store_frags():
        for kb in range(4):
            for h in range(2):
                p = PK + ((kb*2+h) % 4) * 4
                b = ACC + 16*kb + 8*h
                for i in range(4):
                    a(f'v_cvt_pk_bf16_f32 {v(p+i)}, {v(b+2*i)}, {v(b+2*i+1)}')
                f = kb*2 + h
                a(f's_add_u32 s{sT}, s{sOUT}, {(f//4)*4096}') if f % 4 == 0 else None
                a(f'buffer_store_dwordx4 {v(p,4)}, {v(VL16)}, s[{sW}:{sW+3}], s{sT} offen offset:{(f%4)*1024}{stv}')
    a(f's_cmp_eq_u32 s{sJOB}, 0'); a(f's_cbranch_scc1 {lSE}')
    store_frags()
    if xpf:
        srd(a, 36, 34, 35, OUT_BYTES)
        a(f's_lshl_b32 s{sT}, s{sXC}, 3'); a(f's_sub_u32 s{sT2}, s{sSL}, 16'); a(f's_add_u32 s{sT}, s{sT}, s{sT2}')
        a(f's_lshl_b32 s{sT}, s{sT}, 2'); a(f's_add_u32 s{sT}, s{sT}, s{sW8}'); a(f's_lshl_b32 s{sT}, s{sT}, 13')
        a(f'v_lshl_add_u32 {t0}, {L}, 7, s{sT}')
        a(f'buffer_load_dword {t1}, {t0}, s[36:39], 0 offen')
    P.stamp()
    if prof: a('s_waitcnt vmcnt(0)')
    P.stamp(); P.real(); P.finish(sW8, 4, 5); P.n = 8
    a('s_endpgm')
    a.label(lSE)
    lNM = a.new('K2NM')
    a('s_nop 7'); a('s_nop 7')
    a(f's_cmp_lg_u32 s{sKT}, 7'); a(f's_cbranch_scc1 {lNM}')
    for j in range(4, 16): a(f'v_mov_b32 {v(ACC+48+j)}, 0xff800000')
    a.label(lNM)
    M, M2, SUM = 12, 13, 14
    a(f'v_max3_f32 {v(M)}, {v(ACC)}, {v(ACC+1)}, {v(ACC+2)}')
    a(f'v_max3_f32 {v(M2)}, {v(ACC+3)}, {v(ACC+4)}, {v(ACC+5)}')
    i = 6
    while i + 3 < 64:
        a(f'v_max3_f32 {v(M)}, {v(M)}, {v(ACC+i)}, {v(ACC+i+1)}')
        a(f'v_max3_f32 {v(M2)}, {v(M2)}, {v(ACC+i+2)}, {v(ACC+i+3)}')
        i += 4
    a(f'v_max3_f32 {v(M)}, {v(M)}, {v(ACC+62)}, {v(ACC+63)}')
    a(f'v_max_f32 {v(M)}, {v(M)}, {v(M2)}')
    a(f'v_mov_b32 {v(M2)}, {v(M)}')
    a(f'v_permlane32_swap_b32 {v(M)}, {v(M2)}')
    a(f'v_max_f32 {v(M)}, {v(M)}, {v(M2)}')
    a(f's_mov_b32 s{sT2}, {f32(SCALE)}')
    a(f'v_mul_f32 {v(M)}, s{sT2}, {v(M)}')
    CC, NM, S2 = 16, 18, 20
    a(f'v_mov_b32 {v(CC)}, s{sT2}'); a(f'v_mov_b32 {v(CC+1)}, s{sT2}')
    a(f'v_sub_f32 {v(NM)}, 0, {v(M)}'); a(f'v_sub_f32 {v(NM+1)}, 0, {v(M)}')
    for i in range(4): a(f'v_mov_b32 {v(S2+i)}, 0')
    for kb in range(4):
        for h in range(2):
            b = ACC + 16*kb + 8*h
            for i in range(4): a(f'v_pk_fma_f32 {v(b+2*i,2)}, {v(b+2*i,2)}, {v(CC,2)}, {v(NM,2)}')
            for i in range(8): a(f'v_exp_f32 {v(b+i)}, {v(b+i)}')
            p = PK + ((kb*2+h) % 4) * 4
            for i in range(4):
                a(f'v_cvt_pk_bf16_f32 {v(p+i)}, {v(b+2*i)}, {v(b+2*i+1)}')
            f = kb*2 + h
            if f % 4 == 0: a(f's_add_u32 s{sT}, s{sOUT}, {(f//4)*4096}')
            a(f'buffer_store_dwordx4 {v(p,4)}, {v(VL16)}, s[{sW}:{sW+3}], s{sT} offen offset:{(f%4)*1024}{stf}')
            for i in range(4): a(f'v_pk_add_f32 {v(S2+2*(i&1),2)}, {v(S2+2*(i&1),2)}, {v(b+2*i,2)}')
    a(f'v_add_f32 {v(SUM)}, {v(S2)}, {v(S2+1)}'); a(f'v_add_f32 {v(M2)}, {v(S2+2)}, {v(S2+3)}')
    a(f'v_add_f32 {v(SUM)}, {v(SUM)}, {v(M2)}')
    a(f'v_mov_b32 {v(M2)}, {v(SUM)}')
    a(f'v_permlane32_swap_b32 {v(SUM)}, {v(M2)}')
    a(f'v_add_f32 {v(SUM)}, {v(SUM)}, {v(M2)}')
    a(f'v_cmp_gt_u32 vcc, 32, {L}')
    a(f'v_cndmask_b32 {v(SUM)}, {v(SUM)}, {v(M)}, vcc')
    a(f'v_lshlrev_b32 {t0}, 2, {L}')
    a(f'buffer_store_dword {v(SUM)}, {t0}, s[{sW}:{sW+3}], s{sML} offen{stf}')
    P.stamp()
    if prof: a('s_waitcnt vmcnt(0)')
    P.stamp(); P.real(); P.finish(sW8, 4, 5); P.n = 2
    a('s_endpgm')

    a.label('K2_CONV')
    sCG, sRT, sR0, sLB, sBB, sUO, sPR = 24, 25, 26, 27, 28, 29, 22
    GT_, WT_, ST_, PR_ = 0, 40960, 49152, 51200
    PRW = 9760
    NT_, TW_ = 0, 5664
    BF, AF, DD, UR = 16, 92, 112, 144
    SP, GQ, SR = 160, 192, 200
    VG_, VST, VNT, VB, VA_, VU = 8, 9, 10, 11, 12, 13
    a(f's_sub_u32 s{sT}, s{sSL}, 24')
    a(f's_lshl_b32 s{sRT}, s{sXC}, 1'); a(f's_and_b32 s{sT2}, s{sT}, 1'); a(f's_add_u32 s{sRT}, s{sRT}, s{sT2}')
    a(f's_lshr_b32 s{sCG}, s{sT}, 1')
    a(f's_lshl_b32 s{sR0}, s{sRT}, 7'); a(f's_sub_u32 s{sR0}, s{sR0}, 16')
    a(f'v_lshrrev_b32 {t0}, 4, {L}'); a(f'v_and_b32 {t1}, 15, {L}')
    a(f'v_lshlrev_b32 {t2}, 2, {t0}'); a(f'v_xor_b32 {t1}, {t1}, {t2}'); a(f'v_lshlrev_b32 {t1}, 4, {t1}')
    a(f's_lshl_b32 s{sT}, s{sCG}, 8'); a(f'v_add_u32 {t1}, s{sT}, {t1}')
    a(f's_mul_i32 s{sT}, s{sW8}, 20'); a(f's_add_u32 s{sT3}, s{sT}, s{sR0}'); a(f'v_add_u32 {t2}, s{sT3}, {t0}')
    a(f's_mul_i32 s{sT2}, s{sW8}, 5120')
    a('s_waitcnt lgkmcnt(0)')
    srd(a, sW, 4, 5, WS_BYTES)
    a(f'v_min_u32 {t3}, 19, {L}'); a(f'v_add_u32 {v(SR)}, s{sT}, {t3}')
    a(f'v_add_u32 {v(SR+2)}, s{sR0}, {v(SR)}')
    a(f'v_max_i32 {t3}, 0, {v(SR+2)}'); a(f'v_min_i32 {t3}, 2047, {t3}'); a(f'v_lshlrev_b32 {t3}, 3, {t3}')
    for p_ in range(8):
        a(f's_mov_b32 s{sLB}, {GS + p_*16384}')
        a(f'buffer_load_dwordx2 {v(SP+2*p_,2)}, {t3}, s[{sW}:{sW+3}], s{sLB} offen')
    a(f's_mov_b32 s{sLB}, {G}')
    for i in range(5):
        a(f'v_add_u32 {t3}, {4*i}, {t2}'); a(f'v_max_i32 {t3}, 0, {t3}'); a(f'v_min_i32 {t3}, 2047, {t3}')
        a(f'v_lshl_add_u32 {t3}, {t3}, 10, {t1}')
        a(f's_add_u32 m0, s{sT2}, {GT_ + i*1024}')
        a(f'buffer_load_dwordx4 {t3}, s[{sW}:{sW+3}], s{sLB} offen lds')
    srd(a, sD, 6, 7, 31 * 1024)
    a(f's_lshl_b32 s{sT2}, s{sW8}, 2'); a(f'v_add_u32 {t3}, s{sT2}, {t0}'); a(f'v_lshl_add_u32 {t3}, {t3}, 10, {t1}')
    a(f's_lshl_b32 s{sT2}, s{sW8}, 10'); a(f's_add_u32 m0, s{sT2}, {WT_}')
    a(f'buffer_load_dwordx4 {t3}, s[{sD}:{sD+3}], 0 offen lds')
    P.stamp()
    a(f's_lshr_b32 s{sBB}, s{sRT}, 3'); a(f's_lshl_b32 s{sBB}, s{sBB}, 10')
    a(f's_mul_i32 s{sPR}, s{sW8}, {PRW}'); a(f's_add_u32 s{sPR}, s{sPR}, {PR_}')
    for i in range(4): a(f'v_mov_b32 {v(GQ+i)}, 0')
    a(f'v_lshlrev_b32 {t0}, 4, {L}'); a(f'v_add_u32 {t0}, s{sPR}, {t0}')
    for i in range(4): a(f'ds_write_b128 {t0}, {v(GQ,4)} offset:{TW_ + i*1024}')
    a(f'v_bfe_u32 {t0}, {L}, 2, 2'); a(f'v_lshrrev_b32 {t2}, 4, {L}'); a(f'v_bfe_u32 {t3}, {L}, 1, 1')
    a(f's_lshl_b32 s{sT}, s{sW8}, 1'); a(f'v_or_b32 {t3}, s{sT}, {t3}'); a(f'v_lshlrev_b32 {t4}, 2, {t0}'); a(f'v_xor_b32 {t3}, {t3}, {t4}')
    a(f'v_lshlrev_b32 {t3}, 4, {t3}'); a(f'v_lshl_add_u32 {t3}, {t0}, 8, {t3}'); a(f'v_lshl_add_u32 {t3}, {t2}, 10, {t3}')
    a(f'v_and_b32 {t4}, 1, {L}'); a(f'v_lshl_add_u32 {v(VG_)}, {t4}, 3, {t3}')
    a(f'v_lshlrev_b32 {v(VST)}, 5, {t2}')
    a(f'v_and_b32 {t0}, 15, {L}'); a(f'v_mul_u32_u24 {t3}, 352, {t0}'); a(f'v_lshl_add_u32 {t3}, {t2}, 3, {t3}')
    a(f'v_lshrrev_b32 {t4}, 3, {t0}'); a(f'v_lshl_add_u32 {t3}, {t4}, 3, {t3}'); a(f'v_add_u32 {v(VNT)}, s{sPR}, {t3}')
    a(f'v_mul_u32_u24 {t3}, 200, {t0}'); a(f'v_lshl_add_u32 {t3}, {t2}, 3, {t3}'); a(f'v_add_u32 {t1}, s{sPR}, {t3}')
    a(f'v_lshrrev_b32 {t0}, 2, {L}'); a(f'v_and_b32 {t2}, 3, {L}')
    a(f'v_mul_u32_u24 {t3}, 352, {t0}'); a(f'v_lshl_add_u32 {t3}, {t2}, 3, {t3}')
    a(f'v_lshrrev_b32 {t4}, 3, {t0}'); a(f'v_lshl_add_u32 {t3}, {t4}, 3, {t3}'); a(f'v_add_u32 {v(VB)}, s{sPR}, {t3}')
    a(f'v_mul_u32_u24 {t3}, 200, {t0}'); a(f'v_lshlrev_b32 {t4}, 1, {t2}'); a(f'v_sub_u32 {t3}, {t3}, {t4}')
    a(f'v_and_b32 {t4}, 1, {t2}'); a(f'v_mul_u32_u24 {t4}, 94, {t4}'); a(f'v_sub_u32 {t3}, {t3}, {t4}'); a(f'v_add_u32 {t3}, 108, {t3}')
    a(f'v_add_u32 {v(VA_)}, s{sPR}, {t3}')
    a(f'v_lshlrev_b32 {v(VU)}, 4, {L}')
    a(f's_lshl_b32 s{sT}, s{sRT}, 2'); a(f's_mul_i32 s{sT}, s{sT}, {S32}')
    a(f's_lshl_b32 s{sT2}, s{sCG}, 3'); a(f's_add_u32 s{sT2}, s{sT2}, s{sW8}'); a(f's_lshl_b32 s{sT2}, s{sT2}, 10'); a(f's_add_u32 s{sUO}, s{sT}, s{sT2}')
    a('s_waitcnt vmcnt(6)')
    P.stamp()
    a(f's_mov_b32 s{sT}, {f32(1/512)}'); a(f's_mov_b32 s{sT2}, {f32(1e-5)}')
    b = SP
    for step in (8, 4, 2):
        for i in range(step): a(f'v_add_f32 {v(b+i)}, {v(b+i)}, {v(b+step+i)}')
    a(f'v_mul_f32 {v(b)}, s{sT}, {v(b)}'); a(f'v_mul_f32 {v(b+1)}, s{sT}, {v(b+1)}')
    a(f'v_fma_f32 {v(b+1)}, -{v(b)}, {v(b)}, {v(b+1)}')
    a(f'v_max_f32 {v(b+1)}, 0, {v(b+1)}'); a(f'v_add_f32 {v(b+1)}, s{sT2}, {v(b+1)}')
    a(f'v_rsq_f32 {v(b+2)}, {v(b+1)}')
    a(f'v_mul_f32 {v(b+3)}, {v(b)}, {v(b+2)}'); a(f'v_sub_f32 {v(b+3)}, 0, {v(b+3)}')
    a(f'v_subrev_u32 {t0}, s{sBB}, {v(SR+2)}')
    a(f'v_cmp_gt_u32 vcc, 1000, {t0}')
    a(f'v_cndmask_b32 {v(b+2)}, 0, {v(b+2)}, vcc'); a(f'v_cndmask_b32 {v(b+3)}, 0, {v(b+3)}, vcc')
    a(f'v_lshlrev_b32 {t0}, 3, {v(SR)}')
    a(f'ds_write_b64 {t0}, {v(b+2,2)} offset:{ST_}')
    a('s_waitcnt vmcnt(0) lgkmcnt(0)'); a('s_barrier')
    P.stamp()
    a(f's_add_u32 s{sT}, s{sUO}, {UF}')
    for f in range(4):
        a(f'buffer_load_dwordx4 {v(UR+4*f,4)}, {v(VU)}, s[{sW}:{sW+3}], s{sT} offen')
        if f < 3: a(f's_add_u32 s{sT}, s{sT}, {S32}')
    TQ = 204
    GR = SP
    AB = BF
    for aa in range(2): a(f'ds_read_b64_tr_b16 {v(TQ+2*aa,2)}, {v(VG_)} offset:{WT_ + aa*4096}')
    for aa in range(10):
        a(f'ds_read_b64_tr_b16 {v(GR+2*aa,2)}, {v(VG_)} offset:{GT_ + aa*4096}')
        a(f'ds_read_b128 {v(AB + aa*8, 4)}, {v(VST)} offset:{ST_ + aa*128}')
        a(f'ds_read_b128 {v(AB + aa*8 + 4, 4)}, {v(VST)} offset:{ST_ + aa*128 + 16}')
    a('s_waitcnt lgkmcnt(15)')
    for aa in range(2):
        o = TW_ + aa*32
        a(f'ds_write_b64 {t1}, {v(TQ+2*aa,2)} offset:{o + 16}')
        a(f'ds_write_b16 {t1}, {v(TQ+2*aa)} offset:{o + 96 + 14}'); a(f'ds_write_b16_d16_hi {t1}, {v(TQ+2*aa)} offset:{o + 96 + 16}')
        a(f'ds_write_b16 {t1}, {v(TQ+2*aa+1)} offset:{o + 96 + 18}'); a(f'ds_write_b16_d16_hi {t1}, {v(TQ+2*aa+1)} offset:{o + 96 + 20}')
    NQ = 184
    a('s_waitcnt lgkmcnt(10)')
    for aa in range(10):
        q = AB + aa*8; g0 = GR + 2*aa; nq = NQ + 4*(aa & 1)
        a(f'v_lshlrev_b32 {v(nq)}, 16, {v(g0)}'); a(f'v_and_b32 {v(nq+1)}, 0xffff0000, {v(g0)}')
        a(f'v_lshlrev_b32 {v(nq+2)}, 16, {v(g0+1)}'); a(f'v_and_b32 {v(nq+3)}, 0xffff0000, {v(g0+1)}')
        for e in range(4): a(f'v_fma_f32 {v(nq+e)}, {v(nq+e)}, {v(q+2*e)}, {v(q+2*e+1)}')
        a(f'v_cvt_pk_bf16_f32 {v(g0)}, {v(nq)}, {v(nq+1)}'); a(f'v_cvt_pk_bf16_f32 {v(g0+1)}, {v(nq+2)}, {v(nq+3)}')
        a(f'ds_write_b64 {v(VNT)}, {v(g0,2)} offset:{NT_ + aa*32}')
    a('s_waitcnt lgkmcnt(0)')
    P.stamp()
    for kk in range(9): a(f'ds_read2_b32 {v(AF+2*kk,2)}, {v(VA_)} offset0:{(TW_//4 + 2*kk) if TW_//4 + 2*kk < 255 else 0} offset1:0') if False else None
    a(f'v_add_u32 {v(VA_)}, {TW_}, {v(VA_)}')
    for kk in range(9): a(f'ds_read2_b32 {v(AF+2*kk,2)}, {v(VA_)} offset0:{2*kk} offset1:{2*kk+1}')
    for s_ in range(37): a(f'ds_read_b64 {v(BF+2*s_,2)}, {v(VB)} offset:{NT_ + s_*8}')
    a('s_waitcnt lgkmcnt(0)')
    for kk in range(9):
        for q in range(8):
            d = DD + 4*q
            a(f'v_mfma_f32_4x4x4_16b_bf16 {v(d,4)}, {v(AF+2*kk,2)}, {v(BF+2*(4*q+kk),2)}, {"0" if kk == 0 else v(d,4)}')
    P.stamp()
    a(f'v_lshrrev_b32 {t0}, 2, {L}'); a(f'v_and_b32 {t2}, 3, {L}'); a(f'v_mul_u32_u24 {t3}, 288, {t0}'); a(f'v_lshl_add_u32 {t3}, {t2}, 3, {t3}')
    a(f'v_add_u32 {t3}, s{sPR}, {t3}')
    CP = BF
    for q in range(8):
        a(f'v_cvt_pk_bf16_f32 {v(CP+2*q)}, {v(DD+4*q)}, {v(DD+4*q+1)}'); a(f'v_cvt_pk_bf16_f32 {v(CP+2*q+1)}, {v(DD+4*q+2)}, {v(DD+4*q+3)}')
        a(f'ds_write_b64 {t3}, {v(CP+2*q,2)} offset:{q*32}')
    a(f'v_lshrrev_b32 {t0}, 5, {L}'); a(f'v_bfe_u32 {t1}, {L}, 2, 2'); a(f'v_lshl_add_u32 {t0}, {t0}, 3, {t1}'); a(f'v_mul_u32_u24 {t0}, 288, {t0}')
    a(f'v_bfe_u32 {t1}, {L}, 4, 1'); a(f'v_lshl_add_u32 {t0}, {t1}, 5, {t0}'); a(f'v_and_b32 {t1}, 3, {L}'); a(f'v_lshl_add_u32 {t0}, {t1}, 3, {t0}')
    a(f'v_add_u32 {t2}, s{sPR}, {t0}')
    a('s_waitcnt lgkmcnt(0)')
    CR = BF + 16
    for f in range(4):
        for e in range(2):
            a(f'ds_read_b64_tr_b16 {v(CR+4*f+2*e,2)}, {t2} offset:{e*4*288 + f*64}')
    a('s_waitcnt vmcnt(0)')
    a(f's_add_u32 s{sT}, s{sUO}, {UC}')
    TM = DD
    for f in range(4):
        a(f's_waitcnt lgkmcnt({2*(3-f)})')
        for d in range(4):
            u = UR + 4*f + d; c = CR + 4*f + d; m = TM + 4*d
            a(f'v_lshlrev_b32 {v(m)}, 16, {v(u)}'); a(f'v_and_b32 {v(m+1)}, 0xffff0000, {v(u)}')
            a(f'v_lshlrev_b32 {v(m+2)}, 16, {v(c)}'); a(f'v_and_b32 {v(m+3)}, 0xffff0000, {v(c)}')
        for d in range(4):
            m = TM + 4*d
            a(f'v_mul_f32 {v(m)}, {v(m)}, {v(m+2)}'); a(f'v_mul_f32 {v(m+1)}, {v(m+1)}, {v(m+3)}')
        for d in range(4):
            u = UR + 4*f + d; m = TM + 4*d
            a(f'v_cvt_pk_bf16_f32 {v(u)}, {v(m)}, {v(m+1)}')
        a(f'buffer_store_dwordx4 {v(UR+4*f,4)}, {v(VU)}, s[{sW}:{sW+3}], s{sT} offen{stc}')
        if f < 3: a(f's_add_u32 s{sT}, s{sT}, {S32}')
    P.n = 8; P.stamp()
    if prof: a('s_waitcnt vmcnt(0)')
    P.stamp(); P.real(); P.finish(sW8, 4, 5)
    a.label('K2_END')
    a('s_endpgm')
    return dict(name=name, body=a.text(), grid=256, block=512, lds=max(KT_BYTES, 51200 + 8*9760), vgpr=256, agpr=0, sgpr=102 if prof else 64)
```

```python
import sys
sys.path.insert(0, 'gen')
from asm import module
import k1, k2, k3
DOC = """;
"""
def text():
    s = module([k1.build(), k2.build(), k3.build()])
    i = s.index('.amdgcn_target')
    return s[:i] + DOC + s[i:]
if __name__ == '__main__':
    out = sys.argv[1] if len(sys.argv) > 1 else 'standalone__conformer_family_branchformer__speech.s'
    open(out, 'w').write(text())
    print('wrote', out)
```

```python
from asm import *
MB = 1 << 20
S32 = 33 * 1024
S64 = 65 * 1024
REG = 64 * S32
import os as _os
WS_OFF = int(_os.environ.get('WS_OFF_MB', '0')) * MB
QF = WS_OFF
KF = QF + REG
VF = KF + REG
UF = VF + REG
UC = UF if _os.environ.get('UC_SEP', '1') == '0' else UF + REG
G  = UF + 2 * REG
GS = G + 2048 * 1024
WO1 = GS + 2048 * 64
WO2 = WO1 + 16 * S32
ML = WO2 + 16 * S32
PF = ML + 64 * 2048
VT = PF + 64 * S64
WS_BYTES = VT + 32 * S64
OUT_BYTES = 2048000
SRD3 = 0x20000

def srd(a, s, lo, hi, nbytes):
    a(f's_mov_b32 s{s}, s{lo}'); a(f's_mov_b32 s{s+1}, s{hi}')
    a(f's_mov_b32 s{s+2}, {nbytes}'); a(f's_mov_b32 s{s+3}, {SRD3}')

def v(r, n=1): return f'v{r}' if n == 1 else f'v[{r}:{r+n-1}]'
def ag(r, n=1): return f'a{r}' if n == 1 else f'a[{r}:{r+n-1}]'
def s(r, n=1): return f's{r}' if n == 1 else f's[{r}:{r+n-1}]'

PROF = WS_OFF + 24 * MB
class Prof:
    def __init__(self, a, enabled, kidx, sb=64):
        self.a, self.on, self.k, self.sb, self.n = a, enabled, kidx, sb, 0
    def stamp(self, wait=True):
        if not self.on: return
        if self.on == 'light':
            self.n += 1; return
        i = self.n; self.n += 1
        self.a(f's_memtime s[{self.sb+2*i}:{self.sb+2*i+1}]')
        if wait: self.a('s_waitcnt lgkmcnt(0)')
    def real(self):
        if not self.on: return
        i = self.n; self.n += 1
        self.a(f's_memrealtime s[{self.sb+2*i}:{self.sb+2*i+1}]'); self.a('s_waitcnt lgkmcnt(0)')
    def finish(self, swave, srdbase_lo, srdbase_hi, n=None):
        if not self.on: return
        a = self.a; n = n or self.n
        a('s_waitcnt vmcnt(0) lgkmcnt(0)')
        a(f's_mov_b32 s96, s{srdbase_lo}'); a(f's_mov_b32 s97, s{srdbase_hi}'); a(f's_mov_b32 s98, {WS_OFF + 32*MB}'); a(f's_mov_b32 s99, {SRD3}')
        a(f's_lshl_b32 s60, s2, 3'); a(f's_add_u32 s60, s60, s{swave}'); a(f's_lshl_b32 s60, s60, 7'); a(f's_add_u32 s60, s60, {PROF + self.k*256*8*128}')
        a('v_mov_b32 v2, 0')
        a('s_mov_b64 exec, 1')
        for i in (range(n) if self.on != 'light' else (0, n-1)):
            a(f'v_mov_b32 v1, s{self.sb+2*i}')
            a(f'buffer_store_dword v1, v2, s[96:99], s60 offen offset:{4*i}')
        a('s_getreg_b32 s61, hwreg(HW_REG_HW_ID)'); a('s_getreg_b32 s62, hwreg(HW_REG_XCC_ID)')
        a('v_mov_b32 v1, s61'); a('buffer_store_dword v1, v2, s[96:99], s60 offen offset:120')
        a('v_mov_b32 v1, s62'); a('buffer_store_dword v1, v2, s[96:99], s60 offen offset:124')
        a('s_waitcnt vmcnt(0)')

import struct
LOG2E = 1.4426950408889634
def f32(x):
    return '0x%08x' % struct.unpack('<I', struct.pack('<f', x))[0]

class VM:
    def __init__(self, a):
        self.a, self.q = a, []
    def issue(self, text, tag):
        self.a(text); self.q.append(tag)
    def count(self, tag):
        last = max(i for i, t in enumerate(self.q) if t == tag)
        return len(self.q) - 1 - last
    def wait(self, tag, extra=''):
        n = self.count(tag)
        assert n <= 63, n
        self.a(f's_waitcnt vmcnt({n}){extra}')
ST_FLAGS = ' sc1'

FLG = (WS_BYTES + 127) // 128 * 128
FL1 = FLG
FL2 = FLG + 18 * 128
EPOCH = FL2 + 24 * 128
WS_TOTAL = EPOCH + 128
class Sync:
    sWV, sSRD, sTAG, sCNT, sPTR, sDBG = 3, 68, 72, 73, 76, 80
    vZ, vT, vF, vTAG = 244, 245, 246, 250
    SPINS = 1 << 16
    def __init__(self): self.n = 0
    def lab(self, p): self.n += 1; return f'SY{p}_{self.n}'
    def lane(self, a, dst):
        a(f'v_mbcnt_lo_u32_b32 {dst}, -1, 0'); a(f'v_mbcnt_hi_u32_b32 {dst}, -1, {dst}')
    def restore_v0(self, a):
        self.lane(a, 'v0'); a(f's_lshl_b32 s{self.sCNT}, s{self.sWV}, 6'); a(f'v_add_u32 v0, s{self.sCNT}, v0')
    def srds(self, a, ws_lo, ws_hi):
        srd(a, self.sSRD, ws_lo, ws_hi, WS_TOTAL); srd(a, self.sDBG, self.sPTR, self.sPTR + 1, 256)
    def tag_load(self, a):
        a(f'v_mov_b32 v{self.vZ}, 0')
        a(f'buffer_load_dword v{self.vTAG}, v{self.vZ}, s[{self.sDBG}:{self.sDBG+3}], 0 offen sc1')
    def tag_get(self, a):
        l0, l1 = self.lab('T'), self.lab('T')
        a(f's_mov_b32 s{self.sCNT}, {self.SPINS}')
        a.label(l0)
        a(f'v_readfirstlane_b32 s{self.sTAG}, v{self.vTAG}')
        a(f's_cmp_lg_u32 s{self.sTAG}, 0'); a(f's_cbranch_scc1 {l1}')
        a(f's_sub_u32 s{self.sCNT}, s{self.sCNT}, 1'); a(f's_cmp_eq_u32 s{self.sCNT}, 0'); a(f's_cbranch_scc1 {l1}')
        a('s_sleep 2')
        self.tag_load(a); a('s_waitcnt vmcnt(0)')
        a(f's_branch {l0}')
        a.label(l1)
    def tag_make(self, a):
        a(f'v_mov_b32 v{self.vZ}, 0'); a(f's_mov_b32 s{self.sCNT}, {EPOCH}')
        a(f'buffer_load_dword v{self.vT}, v{self.vZ}, s[{self.sSRD}:{self.sSRD+3}], s{self.sCNT} offen sc1')
        a('s_waitcnt vmcnt(0)')
        a(f'v_add_u32 v{self.vT}, 2, v{self.vT}'); a(f'v_or_b32 v{self.vT}, 1, v{self.vT}')
        a('s_mov_b64 exec, 1')
        a(f'buffer_store_dword v{self.vT}, v{self.vZ}, s[{self.sSRD}:{self.sSRD+3}], s{self.sCNT} offen sc1')
        a(f'buffer_store_dword v{self.vT}, v{self.vZ}, s[{self.sDBG}:{self.sDBG+3}], 0 offen sc1')
        a('s_mov_b64 exec, -1')
    def signal(self, a, soff):
        l = self.lab('S')
        a('s_waitcnt vmcnt(0)'); a('s_barrier')
        a(f's_cmp_lg_u32 s{self.sWV}, 0'); a(f's_cbranch_scc1 {l}')
        a(f'v_mov_b32 v{self.vZ}, 0'); a(f'v_mov_b32 v{self.vT}, s{self.sTAG}')
        a('s_mov_b64 exec, 1')
        a(f'buffer_store_dword v{self.vT}, v{self.vZ}, s[{self.sSRD}:{self.sSRD+3}], s{soff} offen sc1')
        a('s_mov_b64 exec, -1')
        a.label(l)
    def wait(self, a, addr_code):
        l0, l1 = self.lab('W'), self.lab('W')
        a(f's_cmp_lg_u32 s{self.sWV}, 0'); a(f's_cbranch_scc1 {l1}')
        addr_code(a, self.vF, self.vT)
        a(f's_mov_b32 s{self.sCNT}, {self.SPINS}')
        a.label(l0)
        a(f'buffer_load_dword v{self.vZ}, v{self.vF}, s[{self.sSRD}:{self.sSRD+3}], 0 offen sc1')
        a('s_waitcnt vmcnt(0)')
        a(f'v_cmp_eq_u32 vcc, s{self.sTAG}, v{self.vZ}')
        a('s_cmp_eq_u64 vcc, exec'); a(f's_cbranch_scc1 {l1}')
        a(f's_sub_u32 s{self.sCNT}, s{self.sCNT}, 1'); a(f's_cmp_eq_u32 s{self.sCNT}, 0'); a(f's_cbranch_scc1 {l1}')
        a('s_sleep 1')
        a(f's_branch {l0}')
        a.label(l1)
        a('s_barrier')
def sel_lane(a, dst, tmp, lane, lo, hi, expr_reg):
    a(f'v_subrev_u32 v{tmp}, {lo}, {lane}'); a(f'v_cmp_gt_u32 vcc, {hi - lo}, v{tmp}'); a(f'v_cndmask_b32 v{dst}, v{dst}, v{expr_reg}, vcc')
```

```python
from common import *

R = 3
STG = 40960
NST = 8
GC0 = -2.0 * 0.7978845608028654 * LOG2E
GC1 = GC0 * 0.044715

def gelu_block(a, y0, n, t0, vC):
    P2 = range(0, n, 2)
    for i in P2: a(f'v_pk_mul_f32 {v(t0+i,2)}, {v(y0+i,2)}, {v(y0+i,2)}')
    for i in P2: a(f'v_pk_fma_f32 {v(t0+i,2)}, {v(t0+i,2)}, {v(vC+2,2)}, {v(vC,2)}')
    for i in P2: a(f'v_pk_mul_f32 {v(t0+i,2)}, {v(t0+i,2)}, {v(y0+i,2)}')
    for i in range(n): a(f'v_exp_f32 {v(t0+i)}, {v(t0+i)}')
    for i in P2: a(f'v_pk_add_f32 {v(t0+i,2)}, {v(t0+i,2)}, {v(vC+4,2)}')
    for i in range(n): a(f'v_rcp_f32 {v(t0+i)}, {v(t0+i)}')
    for i in P2: a(f'v_pk_mul_f32 {v(y0+i,2)}, {v(y0+i,2)}, {v(t0+i,2)}')

def build(name='k1_kernel', prof=False, A=None, touch=False, xf=' nt', wf='', prio=0, stf=' sc1', rot=2, wmap=3, dwpf=1, F=None):
    a = A if A is not None else Asm()
    P = Prof(a, prof, 0)
    ACC = 0
    AS, AG, AC = 48, 52, 56
    FR = 68
    ONES = 132
    AX, AXS, AW = 136, 140, 144
    VX0, VX1, VW = 146, 147, 148
    LANE, T0 = 151, 152
    def fr(st, what, i=0):
        b = FR + st * 32
        return {'x': b + 4 * i, 'xs': b + 16, 'w': b + 20 + 4 * i}[what]
    sX, sWs = 24, 28
    sB = [32, 36, 40]
    sW8, sWR, sWC, sRT, sCT, sFOLD = 44, 45, 46, 47, 48, 49
    sOX, sOW, sSW, sM0 = 50, [51, 52, 53], [54, 55, 56], 57
    sTY, sOB = [58, 59, 60], [61, 62, 63]
    sT, sT2, sT3, sC1 = 20, 21, 22, 23
    L = v(LANE); t0, t1, t2, t3, t4 = (v(T0 + i) for i in range(5))

    if wmap == 3:
        a('s_cmp_ge_u32 s2, 256'); a(f's_cbranch_scc1 {"K1_IDLE" if not F else "K_FAR_EXIT"}')
        if F:
            a('v_lshrrev_b32 v1, 6, v0'); a('s_nop 0'); a(f'v_readfirstlane_b32 s{F.sWV}, v1')
        a('s_cmp_lt_u32 s2, 240'); a('s_cbranch_scc1 K1_GO')
        a('s_and_b32 s20, s2, 7'); a('s_cmp_lt_u32 s20, 4'); a('s_cbranch_scc1 K1_GO')
        if F:
            a('s_load_dwordx2 s[4:5], s[0:1], 48'); a('s_load_dwordx2 s[98:99], s[0:1], 88'); a(f's_load_dwordx2 s[{F.sPTR}:{F.sPTR+1}], s[0:1], 80')
            a('s_waitcnt lgkmcnt(0)')
            F.srds(a, 98, 99)
            a('s_cmp_lg_u32 s2, 244'); a('s_cbranch_scc1 K1_IDLE2')
            a(f's_cmp_lg_u32 s{F.sWV}, 0'); a('s_cbranch_scc1 K1_IDLE1')
            F.tag_make(a)
            a.label('K1_IDLE1')
            srd(a, 8, 4, 5, 31 * 1024)
            a('v_lshlrev_b32 v1, 7, v0')
            a('buffer_load_dword v2, v1, s[8:11], 0 offen')
            a.label('K1_IDLE2')
            F.tag_load(a); a('s_waitcnt vmcnt(0)')
            F.tag_get(a)
            a('s_branch K1_FAR_P2')
            a.label('K_FAR_EXIT')
            a('s_endpgm')
        else:
            if dwpf:
                a('s_cmp_lg_u32 s2, 244'); a('s_cbranch_scc1 K1_IDLE')
                a('s_load_dwordx2 s[4:5], s[0:1], 48'); a('v_lshlrev_b32 v1, 7, v0'); a('s_waitcnt lgkmcnt(0)')
                srd(a, 8, 4, 5, 31 * 1024)
                a('buffer_load_dword v2, v1, s[8:11], 0 offen')
            a.label('K1_IDLE')
            a('s_branch K1_END')
    elif wmap != 1:
        a('s_cmp_ge_u32 s2, 248'); a('s_cbranch_scc0 K1_GO')
        if dwpf:
            a('s_cmp_lg_u32 s2, 248'); a('s_cbranch_scc1 K1_IDLE')
            a('s_load_dwordx2 s[4:5], s[0:1], 48'); a('v_lshlrev_b32 v1, 7, v0'); a('s_waitcnt lgkmcnt(0)')
            srd(a, 8, 4, 5, 31 * 1024)
            a('buffer_load_dword v2, v1, s[8:11], 0 offen')
            a.label('K1_IDLE')
        a('s_branch K1_END')
    else:
        a('s_cmp_ge_u32 s2, 256'); a('s_cbranch_scc1 K1_OUT')
        a('s_and_b32 s20, s2, 7'); a('s_cmp_lt_u32 s20, 6'); a('s_cbranch_scc1 K1_GO')
        a('s_cmp_lt_u32 s2, 224'); a('s_cbranch_scc1 K1_GO')
        a.label('K1_OUT')
        a('s_branch K1_END')
    a.label('K1_GO')
    if prio: a('s_setprio 3')
    P.real(); P.stamp()
    a('s_load_dwordx16 s[4:19], s[0:1], 0')
    a('s_load_dwordx2 s[100:101], s[0:1], 64')
    a('s_load_dwordx2 s[98:99], s[0:1], 88')
    if F: a(f's_load_dwordx2 s[{F.sPTR}:{F.sPTR+1}], s[0:1], 80')
    a(f'v_lshrrev_b32 {t0}, 6, v0'); a(f'v_and_b32 {L}, 63, v0')
    a(f'v_readfirstlane_b32 s{sW8}, {t0}')
    a(f's_and_b32 s{sT}, s2, 7'); a(f's_lshr_b32 s{sT2}, s2, 3')
    if wmap == 3:
        a(f's_cmp_ge_u32 s{sT2}, 24'); a(f's_cselect_b32 s{sFOLD}, 1, 0'); a(f's_cmp_ge_u32 s{sT}, 4'); a(f's_cselect_b32 s{sFOLD}, s{sFOLD}, 0')
    elif wmap != 1:
        a(f's_cmp_ge_u32 s{sT2}, 28'); a(f's_cselect_b32 s{sFOLD}, 1, 0')
    else:
        a(f's_cmp_ge_u32 s{sT2}, 16'); a(f's_cselect_b32 s{sFOLD}, 1, 0'); a(f's_cmp_ge_u32 s{sT}, 6'); a(f's_cselect_b32 s{sFOLD}, s{sFOLD}, 0')
    a(f's_lshr_b32 s{sWR}, s{sW8}, 2'); a(f's_and_b32 s{sWC}, s{sW8}, 3')
    a(f's_lshl_b32 s{sM0}, s{sW8}, 10')
    lF, lD = a.new('K1F'), a.new('K1D')
    a(f's_cmp_eq_u32 s{sFOLD}, 1'); a(f's_cbranch_scc1 {lF}')
    if wmap == 0:
        a(f's_and_b32 s{sRT}, s{sT}, 3'); a(f's_lshl_b32 s{sRT}, s{sRT}, 2'); a(f's_and_b32 s{sT3}, s{sT2}, 3'); a(f's_add_u32 s{sRT}, s{sRT}, s{sT3}')
        a(f's_lshr_b32 s{sCT}, s{sT}, 2'); a(f's_mul_i32 s{sCT}, s{sCT}, 7'); a(f's_lshr_b32 s{sT3}, s{sT2}, 2'); a(f's_add_u32 s{sCT}, s{sCT}, s{sT3}')
    elif wmap == 3:
        a(f's_and_b32 s{sRT}, s{sT}, 3'); a(f's_lshl_b32 s{sRT}, s{sRT}, 2'); a(f's_and_b32 s{sT3}, s{sT2}, 3'); a(f's_add_u32 s{sRT}, s{sRT}, s{sT3}')
        a(f's_lshr_b32 s{sCT}, s{sT}, 2'); a(f's_lshl_b32 s{sCT}, s{sCT}, 3'); a(f's_lshr_b32 s{sT3}, s{sT2}, 2'); a(f's_add_u32 s{sCT}, s{sCT}, s{sT3}')
    elif wmap == 2:
        a(f's_lshr_b32 s{sRT}, s{sT}, 1'); a(f's_lshl_b32 s{sRT}, s{sRT}, 2'); a(f's_and_b32 s{sT3}, s{sT2}, 3'); a(f's_add_u32 s{sRT}, s{sRT}, s{sT3}')
        a(f's_and_b32 s{sCT}, s{sT}, 1'); a(f's_mul_i32 s{sCT}, s{sCT}, 7'); a(f's_lshr_b32 s{sT3}, s{sT2}, 2'); a(f's_add_u32 s{sCT}, s{sCT}, s{sT3}')
    else:
        a(f's_and_b32 s{sRT}, s{sT2}, 15')
        a(f's_lshl_b32 s{sCT}, s{sT}, 1'); a(f's_lshr_b32 s{sT3}, s{sT2}, 4'); a(f's_add_u32 s{sCT}, s{sCT}, s{sT3}')
        a(f's_add_u32 s{sT3}, s{sT}, 6'); a(f's_cmp_ge_u32 s{sT}, 6'); a(f's_cselect_b32 s{sCT}, s{sT3}, s{sCT}')
    for j in range(3):
        bi = sOB[j]
        if j == 0:
            a(f's_lshl_b32 s{bi}, s{sCT}, 1'); a(f's_cmp_ge_u32 s{sCT}, 12'); a(f's_cselect_b32 s{bi}, 0, s{bi}')
        elif j == 1:
            a(f's_lshl_b32 s{bi}, s{sCT}, 1'); a(f's_add_u32 s{sT}, s{bi}, 1'); a(f's_add_u32 s{sT2}, s{bi}, 4')
            a(f's_cmp_ge_u32 s{sCT}, 12'); a(f's_cselect_b32 s{bi}, s{sT2}, s{sT}')
        else:
            a(f's_add_u32 s{sT}, s{sCT}, 32'); a(f's_add_u32 s{sT2}, s{sCT}, 16')
            a(f's_cmp_ge_u32 s{sCT}, 8'); a(f's_cselect_b32 s{sT}, s{sT2}, s{sT}')
            a(f's_lshl_b32 s{sT2}, s{sCT}, 1'); a(f's_add_u32 s{sT2}, s{sT2}, 5')
            a(f's_cmp_ge_u32 s{sCT}, 12'); a(f's_cselect_b32 s{bi}, s{sT2}, s{sT}')
        a(f's_lshr_b32 s{sT}, s{bi}, 3'); a(f's_and_b32 s{sT2}, s{bi}, 7')
        a(f's_cmp_ge_u32 s{sT}, 3'); a(f's_cselect_b32 s{sSW[j]}, 11, 10')
        a(f's_sub_u32 s{sTY[j]}, s{sT}, 2'); a(f's_max_i32 s{sTY[j]}, s{sTY[j]}, 0')
        if j == 0:
            a(f's_cmp_ge_u32 s{sCT}, 12'); a(f's_cselect_b32 s{sTY[j]}, 3, s{sTY[j]}')
        a(f's_lshl_b32 s{sOW[j]}, s{sT2}, 7'); a(f's_cmp_eq_u32 s{sT}, 4'); a(f's_cselect_b32 s{sT3}, 1024, 0'); a(f's_add_u32 s{sOW[j]}, s{sOW[j]}, s{sT3}')
    a(f's_lshr_b32 s{sT3}, s{sRT}, 3'); a(f's_mul_i32 s{sT3}, s{sT3}, 1000')
    a(f's_and_b32 s{sT}, s{sRT}, 7'); a(f's_lshl_b32 s{sT}, s{sT}, 7'); a(f's_add_u32 s{sOX}, s{sT3}, s{sT}'); a(f's_lshl_b32 s{sOX}, s{sOX}, 10')
    a(f's_branch {lD}')
    a.label(lF)
    if wmap == 3:
        a(f's_sub_u32 s{sT}, s{sT}, 4'); a(f's_mul_i32 s{sT}, s{sT}, 6'); a(f's_sub_u32 s{sT2}, s{sT2}, 24'); a(f's_add_u32 s{sT}, s{sT}, s{sT2}')
        a(f's_cmp_ge_u32 s{sT}, 12'); a(f's_cselect_b32 s{sT3}, 1, 0'); a(f's_mul_i32 s{sT2}, s{sT3}, 12'); a(f's_sub_u32 s{sT}, s{sT}, s{sT2}')
        a(f's_mul_i32 s{sRT}, s{sT}, 21846'); a(f's_lshr_b32 s{sRT}, s{sRT}, 16'); a(f's_mul_i32 s{sT2}, s{sRT}, 3'); a(f's_sub_u32 s{sCT}, s{sT}, s{sT2}')
    elif wmap != 1:
        a(f's_sub_u32 s{sCT}, s{sT2}, 28')
        a(f's_and_b32 s{sRT}, s{sT}, 3')
        a(f's_lshr_b32 s{sT3}, s{sT}, 2')
    else:
        a(f's_sub_u32 s{sT2}, s{sT2}, 16'); a(f's_mul_i32 s{sRT}, s{sT2}, 21846'); a(f's_lshr_b32 s{sRT}, s{sRT}, 16')
        a(f's_mul_i32 s{sT3}, s{sRT}, 3'); a(f's_sub_u32 s{sCT}, s{sT2}, s{sT3}')
        a(f's_sub_u32 s{sT3}, s{sT}, 6')
    a(f's_lshl_b32 s{sOX}, s{sRT}, 17')
    for j in range(3):
        a(f's_mov_b32 s{sSW[j]}, 10')
        a(f's_mul_i32 s{sOB[j]}, s{sCT}, 3'); a(f's_add_u32 s{sOB[j]}, s{sOB[j]}, {j}')
        a(f's_cmp_ge_u32 s{sOB[j]}, 8'); a(f's_cselect_b32 s{sTY[j]}, 3, 0'); a(f's_min_u32 s{sOB[j]}, s{sOB[j]}, 7')
        a(f's_lshl_b32 s{sOW[j]}, s{sOB[j]}, 7'); a(f's_lshl_b32 s{sT}, s{sT3}, 19'); a(f's_add_u32 s{sOW[j]}, s{sOW[j]}, s{sT}')
    a(f's_add_u32 s{sFOLD}, s{sT3}, 1')
    a.label(lD)
    a(f'v_lshrrev_b32 {t0}, 3, {L}')
    a(f'v_and_b32 {t1}, 7, {L}')
    a(f'v_lshrrev_b32 {t2}, 1, {t0}')
    a(f'v_xor_b32 {t3}, {t2}, {t1}')
    a(f's_lshl_b32 s{sT}, s{sW8}, 4')
    a(f'v_add_u32 {t4}, s{sT}, {t0}'); a(f'v_lshlrev_b32 {t4}, 10, {t4}'); a(f'v_add_u32 {t4}, s{sOX}, {t4}')
    a(f's_mov_b32 s{sOX}, 0')
    a(f'v_lshl_add_u32 {v(VX0)}, {t3}, 4, {t4}')
    a(f'v_xor_b32 {t3}, 4, {t3}'); a(f'v_add_u32 {t4}, 8192, {t4}')
    a(f'v_lshl_add_u32 {v(VX1)}, {t3}, 4, {t4}')
    a(f'v_and_b32 {t2}, 1, {t2}'); a(f's_and_b32 s{sT}, s{sW8}, 1'); a(f's_lshl_b32 s{sT}, s{sT}, 1')
    a(f'v_or_b32 {t2}, s{sT}, {t2}'); a(f'v_lshlrev_b32 {t2}, 1, {t2}'); a(f'v_xor_b32 {t2}, {t2}, {t1}'); a(f'v_lshlrev_b32 {t2}, 4, {t2}')
    a(f's_lshl_b32 s{sT}, s{sW8}, 3'); a(f'v_add_u32 {t0}, s{sT}, {t0}')
    for j in range(3):
        a(f'v_lshlrev_b32 {v(VW+j)}, s{sSW[j]}, {t0}'); a(f'v_add_u32 {v(VW+j)}, {v(VW+j)}, {t2}'); a(f'v_add_u32 {v(VW+j)}, s{sOW[j]}, {v(VW+j)}')
        a(f's_add_u32 s{sSW[j]}, s{sSW[j]}, 6')
    sKS = sC1
    if rot:
        a(f's_lshr_b32 s{sT2}, s2, 3'); a(f's_and_b32 s{sT}, s{sT2}, 3'); a(f's_lshl_b32 s{sT}, s{sT}, 1'); a(f's_lshr_b32 s{sT2}, s{sT2}, 2')
        a(f's_add_u32 s{sT}, s{sT}, s{sT2}'); a(f's_and_b32 s{sT2}, s2, 1'); a(f's_add_u32 s{sT}, s{sT}, s{sT2}')
        a(f's_mul_i32 s{sT2}, s{sCT}, 3'); a(f's_lshl_b32 s{sT3}, s{sRT}, 1'); a(f's_add_u32 s{sT2}, s{sT2}, s{sT3}')
        a(f's_cmp_lg_u32 s{sFOLD}, 0'); a(f's_cselect_b32 s{sKS}, s{sT2}, s{sT}'); a(f's_and_b32 s{sKS}, s{sKS}, 7')
        if rot == 2:
            a(f's_lshr_b32 s{sT2}, s2, 3'); a(f's_lshr_b32 s{sT}, s{sT2}, 2'); a(f's_add_u32 s{sT}, s{sT}, s{sT2}')
            a(f's_and_b32 s{sT}, s{sT}, 1'); a(f's_lshl_b32 s{sKS}, s{sT}, 2')
        if rot == 4:
            a(f's_add_u32 s{sT}, s{sRT}, s{sCT}'); a(f's_and_b32 s{sT}, s{sT}, 1'); a(f's_lshl_b32 s{sKS}, s{sT}, 2')
        if rot == 3:
            a(f's_lshr_b32 s{sT2}, s2, 3'); a(f's_lshr_b32 s{sT}, s{sT2}, 2'); a(f's_and_b32 s{sT2}, s{sT2}, 3'); a(f's_add_u32 s{sT}, s{sT}, s{sT2}')
            a(f's_mul_i32 s{sT2}, s{sT}, 21846'); a(f's_lshr_b32 s{sT2}, s{sT2}, 16'); a(f's_mul_i32 s{sT2}, s{sT2}, 3'); a(f's_sub_u32 s{sT}, s{sT}, s{sT2}')
            a(f's_mul_i32 s{sKS}, s{sT}, 3')
    else:
        a(f's_mov_b32 s{sKS}, 0')
    a(f's_lshl_b32 s{sOX}, s{sKS}, 7')

    def dma_groups(st):
        base = (st % R) * STG
        g = []
        g.append(([f's_lshl_b32 s{sT}, s{sM0}, 1', f's_add_u32 m0, s{sT}, {base}'],
                  [f'buffer_load_dwordx4 {v(VX0)}, s[{sX}:{sX+3}], s{sOX} offen{xf} lds']))
        g.append(([f's_add_u32 m0, m0, 1024'],
                  [f'buffer_load_dwordx4 {v(VX1)}, s[{sX}:{sX+3}], s{sOX} offen{xf} lds']))
        for j in range(3):
            post = [f'buffer_load_dwordx4 {v(VW+j)}, s[{sB[j]}:{sB[j]+3}], s{sOW[j]} offen{wf} lds']
            if j == 2: post += [f's_add_u32 s{sKS}, s{sKS}, 1', f's_and_b32 s{sKS}, s{sKS}, 7', f's_lshl_b32 s{sOX}, s{sKS}, 7']
            g.append(([f's_lshl_b32 s{sOW[j]}, s{sKS}, s{sSW[j]}', f's_add_u32 m0, s{sM0}, {base + 16384 + j*8192}'], post))
        return g
    def dma(st):
        for pre, post in dma_groups(st):
            for l in pre + post: a(l)
    a('s_waitcnt lgkmcnt(0)')
    lF2, lD2 = a.new('K1F2'), a.new('K1D2')
    a(f's_mov_b32 s{sWs}, s98'); a(f's_mov_b32 s{sWs+1}, s99'); a(f's_mov_b32 s{sWs+2}, {WS_BYTES}'); a(f's_mov_b32 s{sWs+3}, {SRD3}')
    a(f's_mov_b32 s{sX+3}, {SRD3}')
    for j in range(3): a(f's_mov_b32 s{sB[j]+3}, {SRD3}')
    a(f's_cmp_lg_u32 s{sFOLD}, 0'); a(f's_cbranch_scc1 {lF2}')
    a(f's_mov_b32 s{sX}, s4'); a(f's_mov_b32 s{sX+1}, s5'); a(f's_mov_b32 s{sX+2}, {OUT_BYTES}')
    for j in range(3):
        b = sB[j]
        a(f's_lshr_b32 s{sT}, s{sOB[j]}, 3')
        a(f's_cmp_eq_u32 s{sT}, 1'); a(f's_cselect_b32 s{b}, s8, s6'); a(f's_cselect_b32 s{b+1}, s9, s7')
        a(f's_cmp_eq_u32 s{sT}, 2'); a(f's_cselect_b32 s{b}, s10, s{b}'); a(f's_cselect_b32 s{b+1}, s11, s{b+1}')
        a(f's_cmp_ge_u32 s{sT}, 3'); a(f's_cselect_b32 s{b}, s14, s{b}'); a(f's_cselect_b32 s{b+1}, s15, s{b+1}')
        a(f's_mov_b32 s{b+2}, {1 << 19}'); a(f's_cselect_b32 s{b+2}, {1 << 20}, s{b+2}')
    a(f's_branch {lD2}')
    a.label(lF2)
    a(f's_cmp_eq_u32 s{sFOLD}, 2'); a(f's_cselect_b32 s{sX}, s18, s12'); a(f's_cselect_b32 s{sX+1}, s19, s13')
    a(f's_mov_b32 s{sX+2}, {1 << 19}')
    for j in range(3):
        b = sB[j]
        a(f's_mov_b32 s{b}, s100'); a(f's_mov_b32 s{b+1}, s101'); a(f's_mov_b32 s{b+2}, {1 << 20}')
    a.label(lD2)
    TCH = T0 + 5
    if touch:
        lW, lT = a.new('K1TW'), a.new('K1TD')
        a(f's_mov_b32 s92, s{sX}'); a(f's_mov_b32 s93, s{sX+1}'); a(f's_mov_b32 s94, s{sX+2}'); a(f's_mov_b32 s95, {SRD3}')
        a(f'v_mov_b32 {v(TCH)}, {v(VX0)}')
        a(f's_lshr_b32 s{sT2}, s2, 3')
        a(f's_cmp_ge_u32 s{sW8}, 2'); a(f's_cbranch_scc1 {lW}')
        a(f's_lshr_b32 s{sT2}, s{sT2}, 2'); a(f's_cmp_lg_u32 s{sFOLD}, 0'); a(f's_cselect_b32 s{sT2}, s{sCT}, s{sT2}')
        a(f's_add_u32 s{sT2}, s{sT2}, 1'); a(f's_lshl_b32 s{sT2}, s{sT2}, 7')
        a(f'v_and_b32 {t0}, 0xfffffc00, {v(VX0)}')
        a(f'v_lshrrev_b32 {t1}, 3, {L}'); a(f's_lshl_b32 s{sT}, s{sW8}, 4'); a(f'v_add_u32 {t1}, s{sT}, {t1}'); a(f'v_lshlrev_b32 {t1}, 10, {t1}')
        a(f'v_sub_u32 {t0}, {t0}, {t1}')
        a(f's_lshl_b32 s{sT}, s{sW8}, 6'); a(f'v_add_u32 {t1}, s{sT}, {L}'); a(f'v_lshl_add_u32 {t0}, {t1}, 10, {t0}')
        a(f'v_add_u32 {v(TCH)}, s{sT2}, {t0}')
        a(f's_branch {lT}')
        a.label(lW)
        a(f's_and_b32 s{sT2}, s{sT2}, 3'); a(f's_cmp_lg_u32 s{sFOLD}, 0'); a(f's_cselect_b32 s{sT2}, s{sRT}, s{sT2}'); a(f's_and_b32 s{sT2}, s{sT2}, 3')
        a(f's_mul_i32 s{sT2}, s{sT2}, 96'); a(f's_and_b32 s{sT}, s{sW8}, 1'); a(f's_mul_i32 s{sT}, s{sT}, 48'); a(f's_add_u32 s{sT2}, s{sT2}, s{sT}'); a(f's_add_u32 s{sT2}, s{sT2}, 128')
        a(f'v_min_u32 {t0}, 47, {L}'); a(f'v_add_u32 {t0}, s{sT2}, {t0}')
        a(f's_sub_u32 s{sT}, s{sW8}, 2'); a(f's_lshr_b32 s{sT}, s{sT}, 1')
        for j in range(3):
            lj = a.new('K1TJ')
            a(f's_cmp_lg_u32 s{sT}, {j}'); a(f's_cbranch_scc1 {lj}')
            a(f's_lshr_b32 s{sT2}, s{sSW[j]}, 6'); a(f'v_mul_lo_u32 {t0}, {t0}, s{sT2}'); a(f'v_add_u32 {v(TCH)}, s{sOW[j]}, {t0}')
            a(f's_mov_b32 s92, s{sB[j]}'); a(f's_mov_b32 s93, s{sB[j]+1}'); a(f's_mov_b32 s94, s{sB[j]+2}'); a(f's_mov_b32 s95, {SRD3}')
            a.label(lj)
        a.label(lT)
    dma(0); a('s_barrier'); dma(1)
    if touch: a(f'buffer_load_dword {v(TCH+1)}, {v(TCH)}, s[92:95], 0 offen')
    if prio:
        a('s_setprio 0')
        if prio == 1:
            lp = a.new('K1P')
            a(f's_cmp_lt_u32 s{sW8}, 4'); a(f's_cbranch_scc1 {lp}'); a('s_setprio 1'); a.label(lp)
    P.stamp()
    if F: F.srds(a, 98, 99)

    a(f'v_and_b32 {t0}, 15, {L}'); a(f'v_lshrrev_b32 {t1}, 4, {L}')
    a(f'v_lshrrev_b32 {t2}, 1, {t0}'); a(f'v_xor_b32 {t2}, {t2}, {t1}')
    a(f'v_lshlrev_b32 {t2}, 4, {t2}'); a(f'v_lshl_add_u32 {t2}, {t0}, 7, {t2}')
    a(f's_lshl_b32 s{sT}, s{sWR}, 13')
    a(f'v_add_u32 {v(AX)}, s{sT}, {t2}'); a(f'v_xor_b32 {v(AX+1)}, 64, {v(AX)}')
    a(f's_lshl_b32 s{sT}, s{sWC}, 11')
    a(f'v_add_u32 {v(AXS)}, s{sT}, {v(AX)}'); a(f'v_add_u32 {v(AXS+1)}, s{sT}, {v(AX+1)}')
    for b in (AX, AXS):
        a(f'v_add_u32 {v(b+2)}, {2*STG}, {v(b)}'); a(f'v_add_u32 {v(b+3)}, {2*STG}, {v(b+1)}')
    a(f'v_bfe_u32 {t2}, {L}, 2, 2')
    a(f'v_lshl_add_u32 {t3}, {t1}, 3, {t2}'); a(f'v_lshlrev_b32 {t3}, 7, {t3}')
    a(f'v_lshrrev_b32 {t2}, 1, {t2}'); a(f'v_and_b32 {t4}, 1, {t1}'); a(f'v_lshl_or_b32 {t2}, {t4}, 1, {t2}'); a(f'v_lshlrev_b32 {t2}, 1, {t2}')
    a(f'v_bfe_u32 {t4}, {L}, 1, 1'); a(f's_lshl_b32 s{sT}, s{sWC}, 1'); a(f'v_or_b32 {t4}, s{sT}, {t4}')
    a(f'v_xor_b32 {t2}, {t2}, {t4}'); a(f'v_lshl_add_u32 {t3}, {t2}, 4, {t3}')
    a(f'v_and_b32 {t4}, 1, {L}'); a(f'v_lshl_add_u32 {t3}, {t4}, 3, {t3}')
    a(f'v_add_u32 {v(AW)}, 16384, {t3}'); a(f'v_add_u32 {v(AW+1)}, {16384 + 2*STG}, {t3}')
    ST, CS, GSL, GTL = 0, 1024, 4096, 8192
    A_STW, A_CSW, A_CSR, A_STR, VA, VG, VS, VC0, VJ3, VGA, VGL, VTS = range(158, 170)
    a(f'v_and_b32 {t0}, 15, {L}'); a(f'v_lshrrev_b32 {t1}, 4, {L}')
    a(f'v_and_b32 {v(VJ3)}, 3, {t0}')
    a(f's_lshl_b32 s{sT}, s{sW8}, 4'); a(f'v_add_u32 {t2}, s{sT}, {t0}'); a(f'v_lshlrev_b32 {v(A_STW)}, 3, {t2}')
    a(f'v_lshlrev_b32 {t3}, 4, {t1}'); a(f's_mul_i32 s{sT}, s{sW8}, 192'); a(f'v_add_u32 {v(A_CSW)}, s{sT}, {t3}')
    a(f's_mul_i32 s{sT}, s{sWC}, 192'); a(f'v_add_u32 {v(A_CSR)}, s{sT}, {t3}')
    a(f's_lshl_b32 s{sT}, s{sWR}, 9'); a(f'v_lshl_add_u32 {v(A_STR)}, {t0}, 3, s{sT}')
    a(f'v_lshlrev_b32 {v(VA)}, 4, {L}')
    a(f'v_and_b32 {t2}, 1, {t1}'); a(f'v_lshl_add_u32 {t2}, {t2}, 4, {t0}')
    a(f'v_lshrrev_b32 {t3}, 1, {t1}')
    a(f's_lshl_b32 s{sT}, s{sWC}, 1'); a(f'v_or_b32 {t4}, s{sT}, {t3}'); a(f'v_and_b32 {v(VG)}, 7, {t0}'); a(f'v_xor_b32 {t4}, {t4}, {v(VG)}')
    a(f'v_lshlrev_b32 {t4}, 4, {t4}'); a(f'v_lshl_add_u32 {v(VG)}, {t2}, 7, {t4}')
    a(f's_lshl_b32 s{sT}, s{sWR}, 13'); a(f'v_add_u32 {v(VG)}, s{sT}, {v(VG)}')
    a(f'v_lshlrev_b32 {v(VS)}, 3, {t2}'); a(f'v_lshl_add_u32 {v(VS)}, {t3}, 2, {v(VS)}')
    a(f's_lshl_b32 s{sT}, s{sWC}, 10'); a(f's_lshl_b32 s{sT2}, s{sWR}, 9'); a(f's_add_u32 s{sT}, s{sT}, s{sT2}'); a(f'v_add_u32 {v(VS)}, s{sT}, {v(VS)}')
    a(f'v_mov_b32 {v(VC0)}, {f32(GC0)}')
    a(f'v_lshrrev_b32 {t2}, 3, {L}'); a(f'v_and_b32 {t3}, 7, {L}'); a(f'v_xor_b32 {t4}, {t3}, {t2}')
    a(f'v_lshlrev_b32 {t4}, 4, {t4}'); a(f'v_lshl_add_u32 {t4}, {t2}, 7, {t4}'); a(f's_lshl_b32 s{sT}, s{sW8}, 11'); a(f'v_add_u32 {v(VGL)}, s{sT}, {t4}')
    a(f'v_lshlrev_b32 {t2}, 10, {t2}'); a(f'v_lshl_add_u32 {v(VGA)}, {t3}, 4, {t2}')
    a(f's_lshl_b32 s{sT}, s{sW8}, 8'); a(f'v_lshl_add_u32 {v(VTS)}, {L}, 2, s{sT}')
    a(f'v_lshrrev_b32 {t3}, 2, {t0}'); a(f'v_cmp_eq_u32 s[94:95], {t3}, {t1}'); a(f'v_cmp_eq_u32 s[96:97], 0, {t0}')
    for i in range(4): a(f'v_mov_b32 {v(ONES+i)}, 0x3f803f80')
    for i in range(AC, AC+12): a(f'v_mov_b32 {v(i)}, 0')

    def reads(u, stats):
        st, h = u >> 1, u & 1
        r = st % R; hi = 1 if r == 2 else 0; off = (r & 1) * STG if r < 2 else 0; se = u & 1
        out = []
        for s_ in range(4):
            out.append(f'ds_read_b128 {v(fr(se,"x",s_),4)}, {v(AX + 2*hi + h)} offset:{off + s_*2048}')
        if stats: out.append(f'ds_read_b128 {v(fr(se,"xs"),4)}, {v(AXS + 2*hi + h)} offset:{off}')
        for j in range(3):
            for e in range(2):
                out.append(f'ds_read_b64_tr_b16 {v(fr(se,"w",j)+2*e,2)}, {v(AW + hi)} offset:{off + j*8192 + h*4096 + e*512}')
        return out
    def mfmas(u, wr):
        se = u & 1; out = []
        first = (u == 0)
        mm = lambda d, x, y, z=False: f'v_mfma_f32_16x16x32_bf16 {v(d,4)}, {v(x,4)}, {v(y,4)}, {"0" if z else v(d,4)}'
        for j in range(3):
            for s_ in range(4):
                d = ACC + (j*4+s_)*4
                out.append(mm(d, fr(se,'w',j), fr(se,'x',s_), first) if wr < 2 else mm(d, fr(se,'x',s_), fr(se,'w',j), first))
        if wr < 2:
            out.insert(4, mm(AS, ONES, fr(se,'xs'), first))
            out.insert(9, mm(AG, fr(se,'xs'), fr(se,'xs'), first))
            for j in range(3):
                if (j + u + wr) % 2 == 0: out.append(mm(AC + 4*j, fr(se,'w',j), ONES))
        return out

    TR = FR
    def stats_items():
        d, mean, var_ = v(TR), v(TR+2), v(TR+3)
        o = []
        o.append(f'v_cmp_eq_u32 vcc, 1, {v(VJ3)}\nv_cndmask_b32 {d}, {v(AG)}, {v(AG+1)}, vcc')
        o.append(f'v_cmp_eq_u32 vcc, 2, {v(VJ3)}\nv_cndmask_b32 {d}, {d}, {v(AG+2)}, vcc')
        o.append(f'v_cmp_eq_u32 vcc, 3, {v(VJ3)}\nv_cndmask_b32 {d}, {d}, {v(AG+3)}, vcc')
        o.append(f's_mov_b32 s{sT2}, {f32(1/512)}\nv_mul_f32 {mean}, s{sT2}, {v(AS)}\nv_mul_f32 {d}, s{sT2}, {d}')
        o.append(f'v_fma_f32 {var_}, -{mean}, {mean}, {d}\ns_mov_b32 s{sT2}, {f32(1e-5)}')
        o.append(f'v_max_f32 {var_}, 0, {var_}\nv_add_f32 {var_}, s{sT2}, {var_}')
        o.append(f'v_rsq_f32 {var_}, {var_}\nv_sub_f32 {mean}, 0, {mean}')
        o.append(f's_mov_b64 exec, s[96:97]\n' + '\n'.join(f'ds_write_b128 {v(A_CSW)}, {v(AC+4*j,4)} offset:{CS + j*64}' for j in range(3)) + '\ns_mov_b64 exec, -1')
        o.append(f's_mov_b64 exec, s[94:95]\nds_write_b64 {v(A_STW)}, {v(TR+2,2)} offset:{ST}\ns_mov_b64 exec, -1')
        return o
    a(f's_waitcnt vmcnt({6 if touch else 5})'); a('s_barrier')
    P.stamp()
    labs = [a.new('K1V') for _ in range(3)]
    lE, lEF = a.new('K1EPI'), a.new('K1EPF')
    a(f's_cmp_lg_u32 s{sFOLD}, 0'); a(f's_cbranch_scc1 {labs[2]}')
    a(f's_cmp_eq_u32 s{sWR}, 1'); a(f's_cbranch_scc1 {labs[1]}')
    for var in range(3):
        a.label(labs[var])
        stats = var < 2
        for l in reads(0, stats): a(l)
        pend = dma_groups(2)
        issued = 3
        for u in range(2*NST):
            st = u >> 1
            if u & 1 and st + 1 < NST:
                assert not pend
                a(f's_waitcnt vmcnt({5*(issued - (st+2)) + (1 if touch and st == 0 else 0)}) lgkmcnt(0)')
                a('s_barrier')
                if st in (1, 3, 5):
                    n0 = P.n; P.n = 4 + st // 2; P.stamp(); P.n = n0
                if issued < NST:
                    pend = dma_groups(issued); issued += 1
            else:
                a('s_waitcnt lgkmcnt(0)')
            rd = reads(u + 1, stats) if u + 1 < 2*NST else []
            mf = mfmas(u, var)
            quota = len(pend) if (u == 0 or not (u & 1)) else min(3, len(pend))
            last = (u == 2*NST - 1) and var < 2
            if last:
                mf = [m for m in mf if m.split()[1].startswith(('v[48:', 'v[52:', 'v[56:', 'v[60:', 'v[64:'))] + [m for m in mf if not m.split()[1].startswith(('v[48:', 'v[52:', 'v[56:', 'v[60:', 'v[64:'))]
                items = stats_items(); nst_ = len(mf) - 12
                for i, m in enumerate(mf):
                    a(m)
                    if i >= nst_ + 2 and items: a(items.pop(0))
                for it_ in items: a(it_)
                continue
            n = max(len(rd), len(mf))
            slots = [1 + (k * (len(mf) - 1)) // quota for k in range(quota)] if quota else []
            post = None
            for i in range(n):
                if i in slots:
                    pre, post = pend.pop(0)
                    for l in pre: a(l)
                if i < len(mf): a(mf[i])
                if post:
                    for l in post: a(l)
                    post = None
                if i < len(rd): a(rd[i])
        if var == 0: a(f's_branch {lE}')
        if var == 1: a(f's_branch {lE}')
    P.n = 7; P.stamp()
    if F: F.tag_load(a)
    PK = FR
    a(f'v_and_b32 {t0}, 15, {L}'); a(f'v_lshrrev_b32 {t1}, 4, {L}')
    a(f's_and_b32 s{sT}, s{sWC}, 1'); a(f's_lshl_b32 s{sT}, s{sT}, 4')
    a(f'v_add_u32 {t2}, s{sT}, {t0}'); a(f'v_lshrrev_b32 {t3}, 1, {t1}'); a(f'v_lshl_add_u32 {t2}, {t3}, 5, {t2}'); a(f'v_lshlrev_b32 {t2}, 4, {t2}')
    a(f'v_and_b32 {t4}, 1, {t1}'); a(f'v_lshl_add_u32 {t2}, {t4}, 3, {t2}')
    a(f's_cmp_eq_u32 s{sFOLD}, 2'); a(f's_mov_b32 s{sT3}, {WO1}'); a(f's_cselect_b32 s{sT3}, {WO2}, s{sT3}')
    a(f's_lshl_b32 s{sT}, s{sRT}, 3'); a(f's_lshl_b32 s{sT2}, s{sWR}, 2'); a(f's_add_u32 s{sT}, s{sT}, s{sT2}'); a(f's_lshl_b32 s{sT}, s{sT}, 10')
    a(f's_add_u32 s{sT3}, s{sT3}, s{sT}')
    for j in range(3):
        lS = a.new('K1FS')
        a(f's_cmp_eq_u32 s{sTY[j]}, 3'); a(f's_cbranch_scc1 {lS}')
        a(f's_lshl_b32 s{sT}, s{sOB[j]}, 1'); a(f's_lshr_b32 s{sT2}, s{sWC}, 1'); a(f's_add_u32 s{sT}, s{sT}, s{sT2}'); a(f's_mul_i32 s{sT}, s{sT}, {S32}')
        a(f's_add_u32 s{sT}, s{sT}, s{sT3}')
        for s_ in range(4):
            b = ACC + (j*4+s_)*4; p = PK + 2*s_
            a(f'v_cvt_pk_bf16_f32 {v(p)}, {v(b)}, {v(b+1)}'); a(f'v_cvt_pk_bf16_f32 {v(p+1)}, {v(b+2)}, {v(b+3)}')
            a(f'buffer_store_dwordx2 {v(p,2)}, {t2}, s[{sWs}:{sWs+3}], s{sT} offen offset:{s_*1024}{stf}')
        a.label(lS)
    a('s_branch K1_FIN')

    a.label(lE)
    P.n = 7; P.stamp()
    if F: F.tag_load(a)
    a('s_waitcnt lgkmcnt(0)'); a('s_barrier')
    P.stamp()
    STA = TR + 12
    for s_ in range(4): a(f'ds_read_b64 {v(STA+2*s_,2)}, {v(A_STR)} offset:{ST + s_*128}')
    for j in range(3):
        a(f'ds_read_b128 {v(AC+4*j,4)}, {v(A_CSR)} offset:{CS + j*64}')
        a(f'ds_read_b128 {v(TR+4*j,4)}, {v(A_CSR)} offset:{CS + 768 + j*64}')
    sRB = sM0
    a(f's_lshl_b32 s{sRB}, s{sRT}, 2'); a(f's_lshl_b32 s{sT}, s{sWR}, 1'); a(f's_add_u32 s{sRB}, s{sRB}, s{sT}')
    GC = TR + 48
    for i, c in enumerate((GC0, GC0, GC1, GC1, 1.0, 1.0)): a(f'v_mov_b32 {v(GC+i)}, {f32(c)}')
    a('s_waitcnt lgkmcnt(0)')
    for i in range(12): a(f'v_add_f32 {v(AC+i)}, {v(AC+i)}, {v(TR+i)}')
    a(f'v_and_b32 {t0}, 15, {L}'); a(f'v_lshrrev_b32 {t1}, 4, {L}')
    PK = TR + 24
    GT = TR + 40
    def pack(j, pair, p):
        b = ACC + (j*4 + 2*pair)*4
        a(f'v_cvt_pk_bf16_f32 {v(p)}, {v(b)}, {v(b+1)}'); a(f'v_cvt_pk_bf16_f32 {v(p+1)}, {v(b+2)}, {v(b+3)}')
        a(f'v_cvt_pk_bf16_f32 {v(p+2)}, {v(b+4)}, {v(b+5)}'); a(f'v_cvt_pk_bf16_f32 {v(p+3)}, {v(b+6)}, {v(b+7)}')
        a(f'v_permlane16_swap_b32 {v(p)}, {v(p+2)}'); a(f'v_permlane16_swap_b32 {v(p+1)}, {v(p+3)}')
    for j in range(3):
        lN, lG, lFS = a.new('K1N'), a.new('K1G'), a.new('K1FS')
        ty, bi = sTY[j], sOB[j]
        if j == 0:
            a(f's_cmp_eq_u32 s{ty}, 3'); a(f's_cbranch_scc1 {lN}')
        for s_ in range(4):
            for r in (0, 2):
                x = ACC + (j*4+s_)*4 + r
                a(f'v_pk_fma_f32 {v(x,2)}, {v(STA+2*s_,2)}, {v(AC+4*j+r,2)}, {v(x,2)} op_sel_hi:[0,1,1]')
        for s_ in range(4):
            for r in (0, 2):
                x = ACC + (j*4+s_)*4 + r
                a(f'v_pk_mul_f32 {v(x,2)}, {v(x,2)}, {v(STA+2*s_,2)} op_sel:[0,1] op_sel_hi:[1,1]')
        if j > 0:
            if j == 1:
                a(f's_cmp_eq_u32 s{ty}, 0'); a(f's_cbranch_scc1 {lFS}')
            for h in range(2):
                gelu_block(a, ACC + j*16 + 8*h, 8, GT, GC)
            if j == 2:
                P.stamp()
                a(f's_cmp_eq_u32 s{ty}, 2'); a(f's_cbranch_scc1 {lG}')
        a.label(lFS)
        a(f's_lshr_b32 s{sT}, s{bi}, 3'); a(f's_mul_i32 s{sT}, s{sT}, {REG}')
        if QF: a(f's_add_u32 s{sT}, s{sT}, {QF}')
        a(f's_and_b32 s{sT2}, s{bi}, 7'); a(f's_lshl_b32 s{sT2}, s{sT2}, 2'); a(f's_add_u32 s{sT2}, s{sT2}, s{sWC}'); a(f's_lshl_b32 s{sT2}, s{sT2}, 10')
        a(f's_add_u32 s{sT}, s{sT}, s{sT2}'); a(f's_mul_i32 s{sT2}, s{sRB}, {S32}'); a(f's_add_u32 s{sT}, s{sT}, s{sT2}')
        for pair in range(2):
            p = PK + 4*pair
            pack(j, pair, p)
            if pair: a(f's_add_u32 s{sT}, s{sT}, {S32}')
            a(f'buffer_store_dwordx4 {v(p,4)}, {v(VA)}, s[{sWs}:{sWs+3}], s{sT} offen{stf}')
        if j == 2:
            a(f's_branch {lN}')
            a.label(lG)
            a(f's_and_b32 s{sT3}, s{bi}, 7')
            sGS = sC1
            a(f's_lshl_b32 s{sGS}, s{sT3}, 14'); a(f's_add_u32 s{sGS}, s{sGS}, {GS}')
            a(f's_lshl_b32 s{sT}, s{sRT}, 7'); a(f's_lshl_b32 s{sT2}, s{sW8}, 4'); a(f's_add_u32 s{sT}, s{sT}, s{sT2}'); a(f's_lshl_b32 s{sT}, s{sT}, 10')
            a(f's_lshl_b32 s{sT2}, s{sT3}, 7'); a(f's_add_u32 s{sT}, s{sT}, s{sT2}'); a(f's_add_u32 s{sT}, s{sT}, {G}')
            SQ = PK + 8
            TQ_ = GT
            for pair in range(2):
                for sl in range(2):
                    b = ACC + (j*4 + 2*pair + sl)*4; q = TQ_ + 4*sl
                    a(f'v_pk_add_f32 {v(q,2)}, {v(b,2)}, {v(b+2,2)}'); a(f'v_pk_mul_f32 {v(q+2,2)}, {v(b,2)}, {v(b,2)}')
                    a(f'v_pk_fma_f32 {v(q+2,2)}, {v(b+2,2)}, {v(b+2,2)}, {v(q+2,2)}')
                for sl in range(2):
                    q = TQ_ + 4*sl
                    a(f'v_add_f32 {v(SQ+sl)}, {v(q)}, {v(q+1)}'); a(f'v_add_f32 {v(SQ+2+sl)}, {v(q+2)}, {v(q+3)}')
                p = PK + 4*pair
                pack(j, pair, p)
                a(f'ds_write_b128 {v(VG)}, {v(p,4)} offset:{GTL + pair*4096}')
                a(f'v_permlane16_swap_b32 {v(SQ)}, {v(SQ+1)}'); a(f'v_permlane16_swap_b32 {v(SQ+2)}, {v(SQ+3)}')
                a(f'v_add_f32 {v(SQ)}, {v(SQ)}, {v(SQ+1)}'); a(f'v_add_f32 {v(SQ+2)}, {v(SQ+2)}, {v(SQ+3)}')
                a(f'v_permlane32_swap_b32 {v(SQ)}, {v(SQ+2)}')
                a(f'v_add_f32 {v(SQ)}, {v(SQ)}, {v(SQ+2)}')
                a(f'ds_write_b32 {v(VS)}, {v(SQ)} offset:{GSL + pair*256}')
            a('s_waitcnt lgkmcnt(0)'); a('s_barrier')
            a(f'ds_read_b128 {v(PK,4)}, {v(VGL)} offset:{GTL}'); a(f'ds_read_b128 {v(PK+4,4)}, {v(VGL)} offset:{GTL + 1024}')
            lK = a.new('K1GK')
            a(f's_cmp_ge_u32 s{sW8}, 4'); a(f's_cbranch_scc1 {lK}')
            for w in range(4): a(f'ds_read_b32 {v(SQ+w)}, {v(VTS)} offset:{GSL + w*1024}')
            a(f's_lshl_b32 s{sT2}, s{sRT}, 10'); a(f's_add_u32 s{sT2}, s{sT2}, s{sGS}')
            a('s_waitcnt lgkmcnt(0)')
            a(f'v_add_f32 {v(SQ)}, {v(SQ)}, {v(SQ+1)}'); a(f'v_add_f32 {v(SQ+2)}, {v(SQ+2)}, {v(SQ+3)}'); a(f'v_add_f32 {v(SQ)}, {v(SQ)}, {v(SQ+2)}')
            a(f'buffer_store_dword {v(SQ)}, {v(VTS)}, s[{sWs}:{sWs+3}], s{sT2} offen{stf}')
            a.label(lK)
            a('s_waitcnt lgkmcnt(0)')
            a(f'buffer_store_dwordx4 {v(PK,4)}, {v(VGA)}, s[{sWs}:{sWs+3}], s{sT} offen{stf}')
            a(f's_add_u32 s{sT}, s{sT}, 8192')
            a(f'buffer_store_dwordx4 {v(PK+4,4)}, {v(VGA)}, s[{sWs}:{sWs+3}], s{sT} offen{stf}')
            if j == 1: a('s_barrier')
        a.label(lN)
        if j < 2: P.stamp()
    a.label('K1_FIN')
    if F:
        a('s_waitcnt vmcnt(0)')
        F.tag_get(a)
        a(f's_lshl_b32 s{sT}, s{sRT}, 7'); a(f's_lshl_b32 s{sT2}, s{sCT}, 2'); a(f's_add_u32 s{sT}, s{sT}, s{sT2}')
        a(f's_mul_i32 s{sT2}, s{sRT}, 3'); a(f's_add_u32 s{sT2}, s{sT2}, s{sCT}'); a(f's_lshl_b32 s{sT2}, s{sT2}, 2')
        a(f's_add_u32 s{sT3}, s{sFOLD}, 15'); a(f's_lshl_b32 s{sT3}, s{sT3}, 7'); a(f's_add_u32 s{sT2}, s{sT2}, s{sT3}')
        a(f's_cmp_lg_u32 s{sFOLD}, 0'); a(f's_cselect_b32 s{sT}, s{sT2}, s{sT}'); a(f's_add_u32 s{sT}, s{sT}, {FL1}')
        F.signal(a, sT)
        a.label('K1_FAR_P2')
        return a
    P.n = 12; P.stamp()
    if prof: a('s_waitcnt vmcnt(0)')
    P.stamp(); P.real()
    P.finish(sW8, sWs, sWs+1)
    a.label('K1_END')
    a('s_endpgm')
    return dict(name=name, body=a.text(), grid=256, block=512, lds=R*STG, vgpr=172, agpr=0, sgpr=102)
```

```python
from common import *

SCALE = LOG2E / (512 ** 0.5)
KT_BYTES = 131072
CV_W = 9216
TRS = 272
NPART = 32

def build(name='k2_kernel', prof=False, A=None, F=None, prio=0, stf=' sc1', CH=2, LA=9, LA0=9, xpf=1, stv=None, stc=None):
    stv = stf if stv is None else stv; stc = stf if stc is None else stc
    if False:
        pass
    a = A if A is not None else Asm()
    ldf = ' sc1' if F else ''
    P = Prof(a, prof, 1)
    LANE, T0 = 0, 2
    L = v(LANE); t0, t1, t2, t3, t4 = (v(T0 + i) for i in range(5))
    sW, sD = 8, 12
    sW8, sXC, sSL, sT, sT2, sT3 = 16, 17, 18, 19, 20, 21
    sA, sB, sOUT, sKT, sJOB, sM0, sOA, sOB, sML = 22, 23, 24, 25, 26, 27, 28, 29, 30
    sFA, sFB, sFO = 40, 41, 42
    if F: F.restore_v0(a)
    else:
        a('s_cmp_ge_u32 s2, 256'); a('s_cbranch_scc1 K2_END')
    P.real(); P.stamp()
    a('s_load_dwordx2 s[4:5], s[0:1], 88'); a('s_load_dwordx2 s[6:7], s[0:1], 48'); a('s_load_dwordx2 s[34:35], s[0:1], 0')
    a(f'v_lshrrev_b32 {t0}, 6, v0'); a(f'v_and_b32 {L}, 63, v0')
    a(f'v_readfirstlane_b32 s{sW8}, {t0}')
    a(f's_and_b32 s{sXC}, s2, 7'); a(f's_lshr_b32 s{sSL}, s2, 3')
    a(f's_cmp_ge_u32 s{sSL}, 24'); a('s_cbranch_scc1 K2_CONV')
    if F:
        lGo = a.new('K2GO')
        a(f's_cmp_lt_u32 s{sW8}, 4'); a(f's_cbranch_scc1 {lGo}')
        a(f's_cmp_lt_u32 s{sSL}, 16'); a('s_cbranch_scc1 K2_END')
        a('s_waitcnt lgkmcnt(0)')
        srd(a, 36, 34, 35, OUT_BYTES)
        a(f's_lshl_b32 s{sT}, s{sXC}, 3'); a(f's_sub_u32 s{sT2}, s{sSL}, 16'); a(f's_add_u32 s{sT}, s{sT}, s{sT2}')
        a(f's_lshl_b32 s{sT}, s{sT}, 2'); a(f's_add_u32 s{sT}, s{sT}, s{sW8}'); a(f's_sub_u32 s{sT}, s{sT}, 4'); a(f's_lshl_b32 s{sT}, s{sT}, 13')
        a(f'v_lshl_add_u32 {t0}, {L}, 7, s{sT}')
        a(f'buffer_load_dword {t1}, {t0}, s[36:39], 0 offen')
        a('s_branch K2_END')
        a.label(lGo)
    else:
        a(f's_cmp_ge_u32 s{sW8}, 4'); a('s_cbranch_scc1 K2_END')

    KB, QR, ACC = 32, 64, 192
    lV, lJ = a.new('K2V'), a.new('K2J')
    a(f's_cmp_ge_u32 s{sSL}, 16'); a(f's_cbranch_scc1 {lV}')
    a(f's_mov_b32 s{sJOB}, 0')
    a(f's_lshr_b32 s{sT}, s{sXC}, 2'); a(f's_lshl_b32 s{sT}, s{sT}, 5')
    a(f's_and_b32 s{sKT}, s{sXC}, 1'); a(f's_lshl_b32 s{sKT}, s{sKT}, 2'); a(f's_lshr_b32 s{sT2}, s{sSL}, 2'); a(f's_add_u32 s{sKT}, s{sKT}, s{sT2}')
    a(f's_lshr_b32 s{sT2}, s{sXC}, 1'); a(f's_and_b32 s{sT2}, s{sT2}, 1'); a(f's_lshl_b32 s{sT2}, s{sT2}, 2')
    a(f's_and_b32 s{sT3}, s{sSL}, 3'); a(f's_add_u32 s{sT2}, s{sT2}, s{sT3}')
    a(f's_lshl_b32 s{sT2}, s{sT2}, 2'); a(f's_add_u32 s{sT2}, s{sT2}, s{sT}'); a(f's_add_u32 s{sT2}, s{sT2}, s{sW8}')
    a(f's_lshl_b32 s{sA}, s{sKT}, 2'); a(f's_add_u32 s{sA}, s{sA}, s{sT}'); a(f's_mul_i32 s{sA}, s{sA}, {S32}'); a(f's_add_u32 s{sA}, s{sA}, {KF}')
    a(f's_mul_i32 s{sB}, s{sT2}, {S32}'); a(f's_add_u32 s{sB}, s{sB}, {QF}')
    a(f's_mul_i32 s{sOUT}, s{sT2}, {S64}'); a(f's_lshl_b32 s{sT3}, s{sKT}, 13'); a(f's_add_u32 s{sOUT}, s{sOUT}, s{sT3}'); a(f's_add_u32 s{sOUT}, s{sOUT}, {PF}')
    a(f's_lshl_b32 s{sML}, s{sT2}, 3'); a(f's_add_u32 s{sML}, s{sML}, s{sKT}'); a(f's_lshl_b32 s{sML}, s{sML}, 8'); a(f's_add_u32 s{sML}, s{sML}, {ML}')
    if F:
        a(f's_sub_u32 s{sFA}, s{sT2}, s{sW8}'); a(f's_lshr_b32 s{sFA}, s{sFA}, 2')
        a(f's_lshr_b32 s{sFB}, s{sT}, 2'); a(f's_add_u32 s{sFB}, s{sFB}, s{sKT}')
        a(f's_lshl_b32 s{sFO}, s{sFA}, 7'); a(f's_lshl_b32 s{sT3}, s{sKT}, 2'); a(f's_add_u32 s{sFO}, s{sFO}, s{sT3}'); a(f's_add_u32 s{sFO}, s{sFO}, {FL2}')
        a(f's_lshl_b32 s{sFA}, s{sFA}, 7'); a(f's_add_u32 s{sFA}, s{sFA}, {FL1}'); a(f's_lshl_b32 s{sFB}, s{sFB}, 7'); a(f's_add_u32 s{sFB}, s{sFB}, {FL1}')
    a(f's_branch {lJ}')
    a.label(lV)
    a(f's_mov_b32 s{sJOB}, 1')
    a(f's_sub_u32 s{sT3}, s{sSL}, 16')
    a(f's_lshr_b32 s{sT}, s{sT3}, 2'); a(f's_lshl_b32 s{sT2}, s{sXC}, 1'); a(f's_add_u32 s{sT}, s{sT}, s{sT2}')
    a(f's_and_b32 s{sKT}, s{sT}, 7')
    if F:
        a(f's_lshl_b32 s{sFA}, s{sT}, 7'); a(f's_add_u32 s{sFA}, s{sFA}, {FL1}')
        a(f's_lshr_b32 s{sFO}, s{sT}, 3'); a(f's_lshl_b32 s{sFO}, s{sFO}, 2'); a(f's_and_b32 s{sFB}, s{sT3}, 3'); a(f's_add_u32 s{sFO}, s{sFO}, s{sFB}')
        a(f's_lshl_b32 s{sFO}, s{sFO}, 7'); a(f's_lshl_b32 s{sFB}, s{sKT}, 2'); a(f's_add_u32 s{sFO}, s{sFO}, s{sFB}'); a(f's_add_u32 s{sFO}, s{sFO}, {FL2 + 16*128}')
    a(f's_mul_i32 s{sA}, s{sT}, {4*S32}'); a(f's_add_u32 s{sA}, s{sA}, {VF}')
    a(f's_and_b32 s{sT3}, s{sT3}, 3'); a(f's_lshl_b32 s{sT3}, s{sT3}, 2'); a(f's_add_u32 s{sT3}, s{sT3}, s{sW8}')
    a(f's_mul_i32 s{sB}, s{sT3}, {S32}'); a(f's_add_u32 s{sB}, s{sB}, {WO1}')
    a(f's_lshr_b32 s{sT}, s{sT}, 3'); a(f's_lshl_b32 s{sT}, s{sT}, 4'); a(f's_add_u32 s{sT}, s{sT}, s{sT3}')
    a(f's_mul_i32 s{sOUT}, s{sT}, {S64}'); a(f's_lshl_b32 s{sT3}, s{sKT}, 13'); a(f's_add_u32 s{sOUT}, s{sOUT}, s{sT3}'); a(f's_add_u32 s{sOUT}, s{sOUT}, {VT}')
    a.label(lJ)
    VL16, RA, RB = 8, 9, 10
    a(f'v_lshlrev_b32 {v(VL16)}, 4, {L}')
    a(f'v_mov_b32 {v(RA)}, {v(VL16)}'); a(f'v_add_u32 {v(RB)}, 65536, {v(VL16)}')
    a(f's_lshl_b32 s{sM0}, s{sW8}, 15')
    a(f's_mul_i32 s{sOA}, s{sW8}, {S32}'); a(f's_add_u32 s{sOA}, s{sOA}, s{sA}'); a(f's_mov_b32 s{sOB}, s{sB}')
    a('s_waitcnt lgkmcnt(0)')
    srd(a, sW, 4, 5, WS_BYTES)
    if F:
        def addr(a, dst, tmp):
            lv, ld = a.new('K2FV'), a.new('K2FD')
            a(f's_cmp_lg_u32 s{sJOB}, 0'); a(f's_cbranch_scc1 {lv}')
            a(f'v_mov_b32 v{dst}, s{sFA}'); a(f'v_lshl_add_u32 v{tmp+2}, {L}, 2, s{sFA}'); sel_lane(a, dst, tmp, L, 0, 4, tmp+2)
            a(f'v_lshl_add_u32 v{tmp+2}, {L}, 2, s{sFB}'); sel_lane(a, dst, tmp, L, 4, 8, tmp+2)
            a(f's_branch {ld}')
            a.label(lv)
            a(f's_add_u32 s{sT}, s{sFA}, 32'); a(f'v_mov_b32 v{dst}, s{sT}'); a(f'v_lshl_add_u32 v{tmp+2}, {L}, 2, s{sT}'); sel_lane(a, dst, tmp, L, 0, 4, tmp+2)
            a(f's_mov_b32 s{sT}, {FL1 + 16*128 - 16}'); a(f'v_lshl_add_u32 v{tmp+2}, {L}, 2, s{sT}'); sel_lane(a, dst, tmp, L, 4, 16, tmp+2)
            a.label(ld)
        F.wait(a, addr)
    def kload(k):
        if k % 4 == 0: a(f's_add_u32 m0, s{sM0}, {k*1024}')
        a(f'buffer_load_dwordx4 {v(VL16)}, s[{sW}:{sW+3}], s{sOA} offen offset:{(k%4)*1024}{ldf} lds')
        a(f'buffer_load_dwordx4 {v(QR + 4*k, 4)}, {v(VL16)}, s[{sW}:{sW+3}], s{sOB} offen offset:{(k%4)*1024}{ldf}')
        if k % 4 == 3:
            a(f's_add_u32 s{sOA}, s{sOA}, 4096'); a(f's_add_u32 s{sOB}, s{sOB}, 4096')
    for k in range(LA0): kload(k)
    P.stamp()
    def kreads(ks):
        se = ks & 1
        for kb in range(4):
            base = RA if kb < 2 else RB
            a(f'ds_read_b128 {v(KB + se*16 + kb*4, 4)}, {v(base)} offset:{(kb & 1)*32768 + ks*1024}')
    issued = LA0
    a(f's_waitcnt vmcnt({2*(issued - CH)})'); a('s_barrier')
    P.stamp()
    kreads(0)
    for ks in range(32):
        if ks + 1 < 32:
            if (ks + 1) % CH == 0:
                a(f's_waitcnt vmcnt({2*(issued - (ks + 1 + CH))})'); a('s_barrier')
                if ks + 1 in (8, 16, 24): P.stamp()
            kreads(ks + 1)
            a('s_waitcnt lgkmcnt(4)')
        else:
            a('s_waitcnt lgkmcnt(0)')
        se = ks & 1
        for kb in range(4):
            d = ACC + 16*kb
            a(f'v_mfma_f32_32x32x16_bf16 {v(d,16)}, {v(KB + se*16 + kb*4, 4)}, {v(QR + 4*ks, 4)}, {"0" if ks == 0 else v(d,16)}')
            if issued < 32 and (kb == 0 or (kb == 2 and issued - (ks + 1) < LA)):
                kload(issued); issued += 1
    P.stamp()
    lSE, lVE = a.new('K2SE'), a.new('K2VE')
    PK = 32
    def store_frags():
        for kb in range(4):
            for h in range(2):
                p = PK + ((kb*2+h) % 4) * 4
                b = ACC + 16*kb + 8*h
                for i in range(4):
                    a(f'v_cvt_pk_bf16_f32 {v(p+i)}, {v(b+2*i)}, {v(b+2*i+1)}')
                f = kb*2 + h
                a(f's_add_u32 s{sT}, s{sOUT}, {(f//4)*4096}') if f % 4 == 0 else None
                a(f'buffer_store_dwordx4 {v(p,4)}, {v(VL16)}, s[{sW}:{sW+3}], s{sT} offen offset:{(f%4)*1024}{stv}')
    a(f's_cmp_eq_u32 s{sJOB}, 0'); a(f's_cbranch_scc1 {lSE}')
    store_frags()
    if F:
        F.signal(a, sFO); a('s_branch K2_P3')
    if xpf and not F:
        srd(a, 36, 34, 35, OUT_BYTES)
        a(f's_lshl_b32 s{sT}, s{sXC}, 3'); a(f's_sub_u32 s{sT2}, s{sSL}, 16'); a(f's_add_u32 s{sT}, s{sT}, s{sT2}')
        a(f's_lshl_b32 s{sT}, s{sT}, 2'); a(f's_add_u32 s{sT}, s{sT}, s{sW8}'); a(f's_lshl_b32 s{sT}, s{sT}, 13')
        a(f'v_lshl_add_u32 {t0}, {L}, 7, s{sT}')
        a(f'buffer_load_dword {t1}, {t0}, s[36:39], 0 offen')
    if not F:
        P.stamp()
        if prof: a('s_waitcnt vmcnt(0)')
        P.stamp(); P.real(); P.finish(sW8, 4, 5); P.n = 8
        a('s_endpgm')
    a.label(lSE)
    lNM = a.new('K2NM')
    a('s_nop 7'); a('s_nop 7')
    a(f's_cmp_lg_u32 s{sKT}, 7'); a(f's_cbranch_scc1 {lNM}')
    for j in range(4, 16): a(f'v_mov_b32 {v(ACC+48+j)}, 0xff800000')
    a.label(lNM)
    M, M2, SUM = 12, 13, 14
    a(f'v_max3_f32 {v(M)}, {v(ACC)}, {v(ACC+1)}, {v(ACC+2)}')
    a(f'v_max3_f32 {v(M2)}, {v(ACC+3)}, {v(ACC+4)}, {v(ACC+5)}')
    i = 6
    while i + 3 < 64:
        a(f'v_max3_f32 {v(M)}, {v(M)}, {v(ACC+i)}, {v(ACC+i+1)}')
        a(f'v_max3_f32 {v(M2)}, {v(M2)}, {v(ACC+i+2)}, {v(ACC+i+3)}')
        i += 4
    a(f'v_max3_f32 {v(M)}, {v(M)}, {v(ACC+62)}, {v(ACC+63)}')
    a(f'v_max_f32 {v(M)}, {v(M)}, {v(M2)}')
    a(f'v_mov_b32 {v(M2)}, {v(M)}')
    a(f'v_permlane32_swap_b32 {v(M)}, {v(M2)}')
    a(f'v_max_f32 {v(M)}, {v(M)}, {v(M2)}')
    a(f's_mov_b32 s{sT2}, {f32(SCALE)}')
    a(f'v_mul_f32 {v(M)}, s{sT2}, {v(M)}')
    CC, NM, S2 = 16, 18, 20
    a(f'v_mov_b32 {v(CC)}, s{sT2}'); a(f'v_mov_b32 {v(CC+1)}, s{sT2}')
    a(f'v_sub_f32 {v(NM)}, 0, {v(M)}'); a(f'v_sub_f32 {v(NM+1)}, 0, {v(M)}')
    for i in range(4): a(f'v_mov_b32 {v(S2+i)}, 0')
    for kb in range(4):
        for h in range(2):
            b = ACC + 16*kb + 8*h
            for i in range(4): a(f'v_pk_fma_f32 {v(b+2*i,2)}, {v(b+2*i,2)}, {v(CC,2)}, {v(NM,2)}')
            for i in range(8): a(f'v_exp_f32 {v(b+i)}, {v(b+i)}')
            p = PK + ((kb*2+h) % 4) * 4
            for i in range(4):
                a(f'v_cvt_pk_bf16_f32 {v(p+i)}, {v(b+2*i)}, {v(b+2*i+1)}')
            f = kb*2 + h
            if f % 4 == 0: a(f's_add_u32 s{sT}, s{sOUT}, {(f//4)*4096}')
            a(f'buffer_store_dwordx4 {v(p,4)}, {v(VL16)}, s[{sW}:{sW+3}], s{sT} offen offset:{(f%4)*1024}{stf}')
            for i in range(4): a(f'v_pk_add_f32 {v(S2+2*(i&1),2)}, {v(S2+2*(i&1),2)}, {v(b+2*i,2)}')
    a(f'v_add_f32 {v(SUM)}, {v(S2)}, {v(S2+1)}'); a(f'v_add_f32 {v(M2)}, {v(S2+2)}, {v(S2+3)}')
    a(f'v_add_f32 {v(SUM)}, {v(SUM)}, {v(M2)}')
    a(f'v_mov_b32 {v(M2)}, {v(SUM)}')
    a(f'v_permlane32_swap_b32 {v(SUM)}, {v(M2)}')
    a(f'v_add_f32 {v(SUM)}, {v(SUM)}, {v(M2)}')
    a(f'v_cmp_gt_u32 vcc, 32, {L}')
    a(f'v_cndmask_b32 {v(SUM)}, {v(SUM)}, {v(M)}, vcc')
    a(f'v_lshlrev_b32 {t0}, 2, {L}')
    a(f'buffer_store_dword {v(SUM)}, {t0}, s[{sW}:{sW+3}], s{sML} offen{stf}')
    if F:
        F.signal(a, sFO); a('s_branch K2_P3')
    else:
        P.stamp()
        if prof: a('s_waitcnt vmcnt(0)')
        P.stamp(); P.real(); P.finish(sW8, 4, 5); P.n = 2
        a('s_endpgm')

    a.label('K2_CONV')
    sCG, sRT, sR0, sLB, sBB, sUO, sPR = 24, 25, 26, 27, 28, 29, 22
    GT_, WT_, ST_, PR_ = 0, 40960, 49152, 51200
    PRW = 9760
    NT_, TW_ = 0, 5664
    BF, AF, DD, UR = 16, 92, 112, 144
    SP, GQ, SR = 160, 192, 200
    VG_, VST, VNT, VB, VA_, VU = 8, 9, 10, 11, 12, 13
    a(f's_sub_u32 s{sT}, s{sSL}, 24')
    a(f's_lshl_b32 s{sRT}, s{sXC}, 1'); a(f's_and_b32 s{sT2}, s{sT}, 1'); a(f's_add_u32 s{sRT}, s{sRT}, s{sT2}')
    a(f's_lshr_b32 s{sCG}, s{sT}, 1')
    a(f's_lshl_b32 s{sR0}, s{sRT}, 7'); a(f's_sub_u32 s{sR0}, s{sR0}, 16')
    a(f'v_lshrrev_b32 {t0}, 4, {L}'); a(f'v_and_b32 {t1}, 15, {L}')
    a(f'v_lshlrev_b32 {t2}, 2, {t0}'); a(f'v_xor_b32 {t1}, {t1}, {t2}'); a(f'v_lshlrev_b32 {t1}, 4, {t1}')
    a(f's_lshl_b32 s{sT}, s{sCG}, 8'); a(f'v_add_u32 {t1}, s{sT}, {t1}')
    a(f's_mul_i32 s{sT}, s{sW8}, 20'); a(f's_add_u32 s{sT3}, s{sT}, s{sR0}'); a(f'v_add_u32 {t2}, s{sT3}, {t0}')
    a(f's_mul_i32 s{sT2}, s{sW8}, 5120')
    a('s_waitcnt lgkmcnt(0)')
    srd(a, sW, 4, 5, WS_BYTES)
    if F:
        def addrc(a, dst, tmp):
            a(f's_lshl_b32 s40, s{sRT}, 7'); a(f's_add_u32 s40, s40, {FL1}')
            a(f'v_mov_b32 v{dst}, s40'); a(f'v_lshl_add_u32 v{tmp+2}, {L}, 2, s40'); sel_lane(a, dst, tmp, L, 0, 14, tmp+2)
            a(f's_sub_i32 s41, s{sRT}, 1'); a('s_max_i32 s41, s41, 0'); a('s_lshl_b32 s41, s41, 7'); a(f's_add_u32 s41, s41, {FL1 - 64}')
            a(f'v_lshl_add_u32 v{tmp+2}, {L}, 2, s41'); sel_lane(a, dst, tmp, L, 16, 24, tmp+2)
            a(f's_add_u32 s41, s{sRT}, 1'); a('s_min_u32 s41, s41, 15'); a('s_lshl_b32 s41, s41, 7'); a(f's_add_u32 s41, s41, {FL1 - 96}')
            a(f'v_lshl_add_u32 v{tmp+2}, {L}, 2, s41'); sel_lane(a, dst, tmp, L, 24, 32, tmp+2)
        F.wait(a, addrc)
    a(f'v_min_u32 {t3}, 19, {L}'); a(f'v_add_u32 {v(SR)}, s{sT}, {t3}')
    a(f'v_add_u32 {v(SR+2)}, s{sR0}, {v(SR)}')
    a(f'v_max_i32 {t3}, 0, {v(SR+2)}'); a(f'v_min_i32 {t3}, 2047, {t3}'); a(f'v_lshlrev_b32 {t3}, 3, {t3}')
    for p_ in range(8):
        a(f's_mov_b32 s{sLB}, {GS + p_*16384}')
        a(f'buffer_load_dwordx2 {v(SP+2*p_,2)}, {t3}, s[{sW}:{sW+3}], s{sLB} offen{ldf}')
    a(f's_mov_b32 s{sLB}, {G}')
    for i in range(5):
        a(f'v_add_u32 {t3}, {4*i}, {t2}'); a(f'v_max_i32 {t3}, 0, {t3}'); a(f'v_min_i32 {t3}, 2047, {t3}')
        a(f'v_lshl_add_u32 {t3}, {t3}, 10, {t1}')
        a(f's_add_u32 m0, s{sT2}, {GT_ + i*1024}')
        a(f'buffer_load_dwordx4 {t3}, s[{sW}:{sW+3}], s{sLB} offen{ldf} lds')
    srd(a, sD, 6, 7, 31 * 1024)
    a(f's_lshl_b32 s{sT2}, s{sW8}, 2'); a(f'v_add_u32 {t3}, s{sT2}, {t0}'); a(f'v_lshl_add_u32 {t3}, {t3}, 10, {t1}')
    a(f's_lshl_b32 s{sT2}, s{sW8}, 10'); a(f's_add_u32 m0, s{sT2}, {WT_}')
    a(f'buffer_load_dwordx4 {t3}, s[{sD}:{sD+3}], 0 offen lds')
    P.stamp()
    a(f's_lshr_b32 s{sBB}, s{sRT}, 3'); a(f's_lshl_b32 s{sBB}, s{sBB}, 10')
    a(f's_mul_i32 s{sPR}, s{sW8}, {PRW}'); a(f's_add_u32 s{sPR}, s{sPR}, {PR_}')
    for i in range(4): a(f'v_mov_b32 {v(GQ+i)}, 0')
    a(f'v_lshlrev_b32 {t0}, 4, {L}'); a(f'v_add_u32 {t0}, s{sPR}, {t0}')
    for i in range(4): a(f'ds_write_b128 {t0}, {v(GQ,4)} offset:{TW_ + i*1024}')
    a(f'v_bfe_u32 {t0}, {L}, 2, 2'); a(f'v_lshrrev_b32 {t2}, 4, {L}'); a(f'v_bfe_u32 {t3}, {L}, 1, 1')
    a(f's_lshl_b32 s{sT}, s{sW8}, 1'); a(f'v_or_b32 {t3}, s{sT}, {t3}'); a(f'v_lshlrev_b32 {t4}, 2, {t0}'); a(f'v_xor_b32 {t3}, {t3}, {t4}')
    a(f'v_lshlrev_b32 {t3}, 4, {t3}'); a(f'v_lshl_add_u32 {t3}, {t0}, 8, {t3}'); a(f'v_lshl_add_u32 {t3}, {t2}, 10, {t3}')
    a(f'v_and_b32 {t4}, 1, {L}'); a(f'v_lshl_add_u32 {v(VG_)}, {t4}, 3, {t3}')
    a(f'v_lshlrev_b32 {v(VST)}, 5, {t2}')
    a(f'v_and_b32 {t0}, 15, {L}'); a(f'v_mul_u32_u24 {t3}, 352, {t0}'); a(f'v_lshl_add_u32 {t3}, {t2}, 3, {t3}')
    a(f'v_lshrrev_b32 {t4}, 3, {t0}'); a(f'v_lshl_add_u32 {t3}, {t4}, 3, {t3}'); a(f'v_add_u32 {v(VNT)}, s{sPR}, {t3}')
    a(f'v_mul_u32_u24 {t3}, 200, {t0}'); a(f'v_lshl_add_u32 {t3}, {t2}, 3, {t3}'); a(f'v_add_u32 {t1}, s{sPR}, {t3}')
    a(f'v_lshrrev_b32 {t0}, 2, {L}'); a(f'v_and_b32 {t2}, 3, {L}')
    a(f'v_mul_u32_u24 {t3}, 352, {t0}'); a(f'v_lshl_add_u32 {t3}, {t2}, 3, {t3}')
    a(f'v_lshrrev_b32 {t4}, 3, {t0}'); a(f'v_lshl_add_u32 {t3}, {t4}, 3, {t3}'); a(f'v_add_u32 {v(VB)}, s{sPR}, {t3}')
    a(f'v_mul_u32_u24 {t3}, 200, {t0}'); a(f'v_lshlrev_b32 {t4}, 1, {t2}'); a(f'v_sub_u32 {t3}, {t3}, {t4}')
    a(f'v_and_b32 {t4}, 1, {t2}'); a(f'v_mul_u32_u24 {t4}, 94, {t4}'); a(f'v_sub_u32 {t3}, {t3}, {t4}'); a(f'v_add_u32 {t3}, 108, {t3}')
    a(f'v_add_u32 {v(VA_)}, s{sPR}, {t3}')
    a(f'v_lshlrev_b32 {v(VU)}, 4, {L}')
    a(f's_lshl_b32 s{sT}, s{sRT}, 2'); a(f's_mul_i32 s{sT}, s{sT}, {S32}')
    a(f's_lshl_b32 s{sT2}, s{sCG}, 3'); a(f's_add_u32 s{sT2}, s{sT2}, s{sW8}'); a(f's_lshl_b32 s{sT2}, s{sT2}, 10'); a(f's_add_u32 s{sUO}, s{sT}, s{sT2}')
    a('s_waitcnt vmcnt(6)')
    P.stamp()
    a(f's_mov_b32 s{sT}, {f32(1/512)}'); a(f's_mov_b32 s{sT2}, {f32(1e-5)}')
    b = SP
    for step in (8, 4, 2):
        for i in range(step): a(f'v_add_f32 {v(b+i)}, {v(b+i)}, {v(b+step+i)}')
    a(f'v_mul_f32 {v(b)}, s{sT}, {v(b)}'); a(f'v_mul_f32 {v(b+1)}, s{sT}, {v(b+1)}')
    a(f'v_fma_f32 {v(b+1)}, -{v(b)}, {v(b)}, {v(b+1)}')
    a(f'v_max_f32 {v(b+1)}, 0, {v(b+1)}'); a(f'v_add_f32 {v(b+1)}, s{sT2}, {v(b+1)}')
    a(f'v_rsq_f32 {v(b+2)}, {v(b+1)}')
    a(f'v_mul_f32 {v(b+3)}, {v(b)}, {v(b+2)}'); a(f'v_sub_f32 {v(b+3)}, 0, {v(b+3)}')
    a(f'v_subrev_u32 {t0}, s{sBB}, {v(SR+2)}')
    a(f'v_cmp_gt_u32 vcc, 1000, {t0}')
    a(f'v_cndmask_b32 {v(b+2)}, 0, {v(b+2)}, vcc'); a(f'v_cndmask_b32 {v(b+3)}, 0, {v(b+3)}, vcc')
    a(f'v_lshlrev_b32 {t0}, 3, {v(SR)}')
    a(f'ds_write_b64 {t0}, {v(b+2,2)} offset:{ST_}')
    a('s_waitcnt vmcnt(0) lgkmcnt(0)'); a('s_barrier')
    P.stamp()
    a(f's_add_u32 s{sT}, s{sUO}, {UF}')
    for f in range(4):
        a(f'buffer_load_dwordx4 {v(UR+4*f,4)}, {v(VU)}, s[{sW}:{sW+3}], s{sT} offen{ldf}')
        if f < 3: a(f's_add_u32 s{sT}, s{sT}, {S32}')
    TQ = 204
    GR = SP
    AB = BF
    for aa in range(2): a(f'ds_read_b64_tr_b16 {v(TQ+2*aa,2)}, {v(VG_)} offset:{WT_ + aa*4096}')
    for aa in range(10):
        a(f'ds_read_b64_tr_b16 {v(GR+2*aa,2)}, {v(VG_)} offset:{GT_ + aa*4096}')
        a(f'ds_read_b128 {v(AB + aa*8, 4)}, {v(VST)} offset:{ST_ + aa*128}')
        a(f'ds_read_b128 {v(AB + aa*8 + 4, 4)}, {v(VST)} offset:{ST_ + aa*128 + 16}')
    a('s_waitcnt lgkmcnt(15)')
    for aa in range(2):
        o = TW_ + aa*32
        a(f'ds_write_b64 {t1}, {v(TQ+2*aa,2)} offset:{o + 16}')
        a(f'ds_write_b16 {t1}, {v(TQ+2*aa)} offset:{o + 96 + 14}'); a(f'ds_write_b16_d16_hi {t1}, {v(TQ+2*aa)} offset:{o + 96 + 16}')
        a(f'ds_write_b16 {t1}, {v(TQ+2*aa+1)} offset:{o + 96 + 18}'); a(f'ds_write_b16_d16_hi {t1}, {v(TQ+2*aa+1)} offset:{o + 96 + 20}')
    NQ = 184
    a('s_waitcnt lgkmcnt(10)')
    for aa in range(10):
        q = AB + aa*8; g0 = GR + 2*aa; nq = NQ + 4*(aa & 1)
        a(f'v_lshlrev_b32 {v(nq)}, 16, {v(g0)}'); a(f'v_and_b32 {v(nq+1)}, 0xffff0000, {v(g0)}')
        a(f'v_lshlrev_b32 {v(nq+2)}, 16, {v(g0+1)}'); a(f'v_and_b32 {v(nq+3)}, 0xffff0000, {v(g0+1)}')
        for e in range(4): a(f'v_fma_f32 {v(nq+e)}, {v(nq+e)}, {v(q+2*e)}, {v(q+2*e+1)}')
        a(f'v_cvt_pk_bf16_f32 {v(g0)}, {v(nq)}, {v(nq+1)}'); a(f'v_cvt_pk_bf16_f32 {v(g0+1)}, {v(nq+2)}, {v(nq+3)}')
        a(f'ds_write_b64 {v(VNT)}, {v(g0,2)} offset:{NT_ + aa*32}')
    a('s_waitcnt lgkmcnt(0)')
    P.stamp()
    for kk in range(9): a(f'ds_read2_b32 {v(AF+2*kk,2)}, {v(VA_)} offset0:{(TW_//4 + 2*kk) if TW_//4 + 2*kk < 255 else 0} offset1:0') if False else None
    a(f'v_add_u32 {v(VA_)}, {TW_}, {v(VA_)}')
    for kk in range(9): a(f'ds_read2_b32 {v(AF+2*kk,2)}, {v(VA_)} offset0:{2*kk} offset1:{2*kk+1}')
    for s_ in range(37): a(f'ds_read_b64 {v(BF+2*s_,2)}, {v(VB)} offset:{NT_ + s_*8}')
    a('s_waitcnt lgkmcnt(0)')
    for kk in range(9):
        for q in range(8):
            d = DD + 4*q
            a(f'v_mfma_f32_4x4x4_16b_bf16 {v(d,4)}, {v(AF+2*kk,2)}, {v(BF+2*(4*q+kk),2)}, {"0" if kk == 0 else v(d,4)}')
    P.stamp()
    a(f'v_lshrrev_b32 {t0}, 2, {L}'); a(f'v_and_b32 {t2}, 3, {L}'); a(f'v_mul_u32_u24 {t3}, 288, {t0}'); a(f'v_lshl_add_u32 {t3}, {t2}, 3, {t3}')
    a(f'v_add_u32 {t3}, s{sPR}, {t3}')
    CP = BF
    for q in range(8):
        a(f'v_cvt_pk_bf16_f32 {v(CP+2*q)}, {v(DD+4*q)}, {v(DD+4*q+1)}'); a(f'v_cvt_pk_bf16_f32 {v(CP+2*q+1)}, {v(DD+4*q+2)}, {v(DD+4*q+3)}')
        a(f'ds_write_b64 {t3}, {v(CP+2*q,2)} offset:{q*32}')
    a(f'v_lshrrev_b32 {t0}, 5, {L}'); a(f'v_bfe_u32 {t1}, {L}, 2, 2'); a(f'v_lshl_add_u32 {t0}, {t0}, 3, {t1}'); a(f'v_mul_u32_u24 {t0}, 288, {t0}')
    a(f'v_bfe_u32 {t1}, {L}, 4, 1'); a(f'v_lshl_add_u32 {t0}, {t1}, 5, {t0}'); a(f'v_and_b32 {t1}, 3, {L}'); a(f'v_lshl_add_u32 {t0}, {t1}, 3, {t0}')
    a(f'v_add_u32 {t2}, s{sPR}, {t0}')
    a('s_waitcnt lgkmcnt(0)')
    CR = BF + 16
    for f in range(4):
        for e in range(2):
            a(f'ds_read_b64_tr_b16 {v(CR+4*f+2*e,2)}, {t2} offset:{e*4*288 + f*64}')
    a('s_waitcnt vmcnt(0)')
    a(f's_add_u32 s{sT}, s{sUO}, {UC}')
    TM = DD
    for f in range(4):
        a(f's_waitcnt lgkmcnt({2*(3-f)})')
        for d in range(4):
            u = UR + 4*f + d; c = CR + 4*f + d; m = TM + 4*d
            a(f'v_lshlrev_b32 {v(m)}, 16, {v(u)}'); a(f'v_and_b32 {v(m+1)}, 0xffff0000, {v(u)}')
            a(f'v_lshlrev_b32 {v(m+2)}, 16, {v(c)}'); a(f'v_and_b32 {v(m+3)}, 0xffff0000, {v(c)}')
        for d in range(4):
            m = TM + 4*d
            a(f'v_mul_f32 {v(m)}, {v(m)}, {v(m+2)}'); a(f'v_mul_f32 {v(m+1)}, {v(m+1)}, {v(m+3)}')
        for d in range(4):
            u = UR + 4*f + d; m = TM + 4*d
            a(f'v_cvt_pk_bf16_f32 {v(u)}, {v(m)}, {v(m+1)}')
        a(f'buffer_store_dwordx4 {v(UR+4*f,4)}, {v(VU)}, s[{sW}:{sW+3}], s{sT} offen{stc}')
        if f < 3: a(f's_add_u32 s{sT}, s{sT}, {S32}')
    if F:
        a(f's_lshl_b32 s40, s{sRT}, 7'); a(f's_add_u32 s41, s{sCG}, 8'); a('s_lshl_b32 s41, s41, 2'); a('s_add_u32 s40, s40, s41'); a(f's_add_u32 s40, s40, {FL2}')
        F.signal(a, 40)
        a(f's_cmp_lt_u32 s{sW8}, 4'); a('s_cbranch_scc1 K2_P3')
        a.label('K2_END')
        a('s_endpgm')
        a.label('K2_P3')
        return a
    P.n = 8; P.stamp()
    if prof: a('s_waitcnt vmcnt(0)')
    P.stamp(); P.real(); P.finish(sW8, 4, 5)
    a.label('K2_END')
    a('s_endpgm')
    return dict(name=name, body=a.text(), grid=256, block=512, lds=max(KT_BYTES, 51200 + 8*9760), vgpr=256, agpr=0, sgpr=102 if prof else 64)
```

```python
from common import *

def build(name='k3_kernel', prof=False, A=None, F=None, LA=16, XSTEP=70, RING=24, CH=4, LA0=16, delta=0.0, hoist=1):
    a = A if A is not None else Asm()
    ldf = ' sc1' if F else ''
    P = Prof(a, prof, 2)
    vm = VM(a)
    LANE, T0 = 0, 2
    L = v(LANE); t0, t1, t2, t3, t4 = (v(T0 + i) for i in range(5))
    sW, sX, sO = 8, 12, 16
    sW8, sXC, sSL, sT, sT2, sT3 = 20, 21, 22, 23, 24, 25
    sB, sRT, sJT, sML, sS1, sS2, sM0 = 26, 27, 28, 29, 30, 31, 32
    assert RING >= LA + CH and RING % CH == 0
    def ldsoff(k): return ((k // CH) % (RING // CH)) * CH * 4096 + (k % CH) * 1024
    XT = RING * 4096
    TT, XA = 64, 80
    FR = 32
    VL16, VML, RA, RB = 8, 9, 10, 11
    VXO = 12
    RA2, RB2, RA3, RB3 = 14, 15, 16, 17
    MLR = 112
    XR = 48
    NSTEP = 96
    if F: F.restore_v0(a)
    else:
        a('s_cmp_ge_u32 s2, 256'); a('s_cbranch_scc1 K3_END')
    P.real(); P.stamp()
    a('s_load_dwordx2 s[4:5], s[0:1], 88'); a('s_load_dwordx2 s[6:7], s[0:1], 0'); a('s_load_dwordx2 s[18:19], s[0:1], 72')
    a(f'v_lshrrev_b32 {t0}, 6, v0'); a(f'v_and_b32 {L}, 63, v0')
    a(f'v_readfirstlane_b32 s{sW8}, {t0}')
    a(f's_and_b32 s{sXC}, s2, 7'); a(f's_lshr_b32 s{sSL}, s2, 3')
    a(f's_lshr_b32 s{sB}, s{sXC}, 2')
    a(f's_and_b32 s{sRT}, s{sXC}, 3'); a(f's_lshl_b32 s{sRT}, s{sRT}, 2'); a(f's_and_b32 s{sT}, s{sSL}, 3'); a(f's_add_u32 s{sRT}, s{sRT}, s{sT}')
    a(f's_lshr_b32 s{sJT}, s{sSL}, 2')
    a(f'v_lshlrev_b32 {v(VL16)}, 4, {L}')
    a(f's_lshl_b32 s{sT}, s{sB}, 5'); a(f's_lshl_b32 s{sT2}, s{sRT}, 1'); a(f's_add_u32 s{sT}, s{sT}, s{sT2}')
    a(f's_and_b32 s{sT3}, s{sW8}, 1')
    a(f's_add_u32 s{sT2}, s{sT}, s{sT3}')
    a(f's_lshl_b32 s{sML}, s{sT2}, 11'); a(f's_add_u32 s{sML}, s{sML}, {ML}')
    lR, lS = a.new('K3A'), a.new('K3B')
    a(f's_cmp_ge_u32 s{sW8}, 2'); a(f's_cbranch_scc1 {lR}')
    a(f's_lshl_b32 s{sT}, s{sJT}, 1'); a(f's_add_u32 s{sT}, s{sT}, s{sT3}')
    a(f's_mul_i32 s{sS1}, s{sT}, {S32}'); a(f's_add_u32 s{sS1}, s{sS1}, {WO2}')
    a(f's_lshl_b32 s{sT2}, s{sB}, 4'); a(f's_add_u32 s{sT}, s{sT}, s{sT2}'); a(f's_mul_i32 s{sS2}, s{sT}, {S64}'); a(f's_add_u32 s{sS2}, s{sS2}, {VT}')
    a(f's_branch {lS}')
    a.label(lR)
    a(f's_mul_i32 s{sS1}, s{sT2}, {S32}'); a(f's_add_u32 s{sS1}, s{sS1}, {UC}')
    a(f's_mul_i32 s{sS2}, s{sT2}, {S64}'); a(f's_add_u32 s{sS2}, s{sS2}, {PF}')
    a.label(lS)
    a(f's_mul_i32 s{sM0}, s{sW8}, {CH*1024}')
    a('s_waitcnt lgkmcnt(0)')
    srd(a, sW, 4, 5, WS_BYTES)
    if F:
        def addr(a, dst, tmp):
            a(f's_lshl_b32 s40, s{sB}, 3'); a(f's_lshr_b32 s41, s{sRT}, 1'); a('s_add_u32 s40, s40, s41'); a('s_lshl_b32 s40, s40, 7'); a(f's_add_u32 s40, s40, {FL2}')
            a(f'v_mov_b32 v{dst}, s40'); a(f'v_lshl_add_u32 v{tmp+2}, {L}, 2, s40'); sel_lane(a, dst, tmp, L, 0, 12, tmp+2)
            a(f's_lshl_b32 s40, s{sB}, 2'); a(f's_lshr_b32 s41, s{sJT}, 1'); a('s_add_u32 s40, s40, s41'); a('s_lshl_b32 s40, s40, 7'); a(f's_add_u32 s40, s40, {FL2 + 16*128 - 64}')
            a(f'v_lshl_add_u32 v{tmp+2}, {L}, 2, s40'); sel_lane(a, dst, tmp, L, 16, 24, tmp+2)
            a(f's_mov_b32 s40, {FL1 + 17*128 - 128}'); a(f'v_lshl_add_u32 v{tmp+2}, {L}, 2, s40'); sel_lane(a, dst, tmp, L, 32, 44, tmp+2)
        F.wait(a, addr)
    def dma(k):
        src = sS1 if k < 32 else sS2
        if k % 4 == 0: a(f's_add_u32 m0, s{sM0}, {ldsoff(k)}')
        vm.issue(f'buffer_load_dwordx4 {v(VL16)}, s[{sW}:{sW+3}], s{src} offen offset:{(k%4)*1024}{ldf} lds', ('f', k))
        if k % 4 == 3: a(f's_add_u32 s{src}, s{src}, 4096')
    for k in range(LA0): dma(k)
    P.stamp()
    a(f's_lshr_b32 s{sT}, s{sW8}, 1'); a(f's_mul_i32 s{sT}, s{sT}, {CH*1024}'); a(f'v_add_u32 {v(RA)}, s{sT}, {v(VL16)}')
    a(f's_and_b32 s{sT}, s{sW8}, 1'); a(f's_add_u32 s{sT}, s{sT}, 2'); a(f's_mul_i32 s{sT}, s{sT}, {CH*1024}'); a(f'v_add_u32 {v(RB)}, s{sT}, {v(VL16)}')
    a(f'v_add_u32 {v(RA2)}, 49152, {v(RA)}'); a(f'v_add_u32 {v(RB2)}, 49152, {v(RB)}'); a(f'v_add_u32 {v(RA3)}, 98304, {v(RA)}'); a(f'v_add_u32 {v(RB3)}, 98304, {v(RB)}')
    srd(a, sX, 6, 7, OUT_BYTES)
    a(f's_mov_b32 s{sO}, s18'); a(f's_mov_b32 s{sO+1}, s19'); a(f's_mov_b32 s{sO+2}, {OUT_BYTES}'); a(f's_mov_b32 s{sO+3}, {SRD3}')
    a(f'v_and_b32 {t0}, 31, {L}'); a(f'v_lshlrev_b32 {v(VML)}, 2, {t0}')
    a(f'v_lshrrev_b32 {t0}, 3, {L}'); a(f'v_and_b32 {t1}, 7, {L}'); a(f'v_xor_b32 {t2}, {t1}, {t0}')
    a(f's_lshl_b32 s{sT}, s{sW8}, 4'); a(f's_lshl_b32 s{sT2}, s{sRT}, 6'); a(f's_add_u32 s{sT}, s{sT}, s{sT2}')
    a(f'v_add_u32 {t0}, s{sT}, {t0}')
    a(f's_mul_i32 s{sT}, s{sB}, 1000'); a(f's_lshl_b32 s{sT2}, s{sJT}, 7')
    for k in range(2):
        a(f'v_add_u32 {t3}, {8*k}, {t0}'); a(f'v_add_u32 {t4}, s{sT}, {t3}'); a(f'v_lshlrev_b32 {t4}, 10, {t4}')
        a(f'v_lshl_add_u32 {t4}, {t2}, 4, {t4}'); a(f'v_add_u32 {t4}, s{sT2}, {t4}')
        a(f'v_cmp_gt_u32 vcc, 1000, {t3}'); a(f'v_mov_b32 {t3}, 0x7ffffff0')
        a(f'v_cndmask_b32 {v(VXO+k)}, {t3}, {t4}, vcc')

    def factors():
        o = []
        m = MLR; l = m + 8
        o += [f'v_max3_f32 {t0}, {v(m)}, {v(m+1)}, {v(m+2)}', f'v_max3_f32 {t1}, {v(m+3)}, {v(m+4)}, {v(m+5)}',
              f'v_max3_f32 {t0}, {t0}, {v(m+6)}, {v(m+7)}', f'v_max_f32 {t0}, {t0}, {t1}']
        o += [f'v_sub_f32 {v(m+t)}, {v(m+t)}, {t0}' for t in range(8)]
        o += [f'v_exp_f32 {v(m+t)}, {v(m+t)}' for t in range(8)]
        o += [f'v_mul_f32 {t1}, {v(m)}, {v(l)}', f'v_mul_f32 {t0}, {v(m+1)}, {v(l+1)}']
        for t in range(2, 8, 2):
            o += [f'v_fmac_f32 {t1}, {v(m+t)}, {v(l+t)}', f'v_fmac_f32 {t0}, {v(m+t+1)}, {v(l+t+1)}']
        o += [f'v_add_f32 {t1}, {t1}, {t0}', f'v_rcp_f32 {t1}, {t1}']
        o += [f'v_mul_f32 {v(m+t)}, {v(m+t)}, {t1}' for t in range(8)]
        return o
    AO0, AO1 = 18, 19
    def out_addr():
        return [f'v_and_b32 {t0}, 31, {L}', f'v_lshrrev_b32 {t1}, 5, {L}', f's_lshr_b32 s{sT}, s{sW8}, 1\ns_lshl_b32 s{sT}, s{sT}, 2\nv_or_b32 {t1}, s{sT}, {t1}',
                f'v_and_b32 {t2}, 7, {t0}', f'v_xor_b32 {t1}, {t1}, {t2}',
                f's_and_b32 s{sT}, s{sW8}, 1\ns_lshl_b32 s{sT}, s{sT}, 12\ns_add_u32 s{sT}, s{sT}, {XT}\nv_lshlrev_b32 {t0}, 7, {t0}\nv_add_u32 {t0}, s{sT}, {t0}',
                f'v_lshl_add_u32 {v(AO0)}, {t1}, 4, {t0}', f'v_xor_b32 {t1}, 2, {t1}', f'v_lshl_add_u32 {v(AO1)}, {t1}, 4, {t0}']
    def reads(k):
        se = k & 1; off = ldsoff(k); hi = off // 49152; off -= hi * 49152
        a(f'ds_read_b128 {v(FR + se*8, 4)}, {v((RA, RA2, RA3)[hi])} offset:{off}'); a(f'ds_read_b128 {v(FR + se*8 + 4, 4)}, {v((RB, RB2, RB3)[hi])} offset:{off}')
    issued = LA0
    vm.wait(('f', CH - 1)); a('s_barrier')
    P.stamp()
    reads(0)
    side = []
    for k in range(NSTEP):
        if k + 1 < NSTEP:
            if (k + 1) % CH == 0:
                if hoist and k + CH == NSTEP - 1:
                    a(f's_waitcnt vmcnt({min(vm.count("x"), vm.count(("f", k + CH)))})')
                else: vm.wait(('f', k + CH))
                a('s_barrier')
                if k + 1 in (16, 32, 48, 64, 80): P.stamp()
            reads(k + 1)
            a('s_waitcnt lgkmcnt(2)')
        else:
            a('s_waitcnt lgkmcnt(0)')
        if k < 32: d, first = TT, k == 0
        else:
            tile = (k - 32) // 8; d, first = XA + 16*(tile & 1), (k - 32) % 8 == 0
            if first and tile >= 1:
                pass
        se = k & 1
        a(f'v_mfma_f32_32x32x16_bf16 {v(d,16)}, {v(FR + se*8, 4)}, {v(FR + se*8 + 4, 4)}, {"0" if first else v(d,16)}')
        if issued < NSTEP:
            dma(issued); issued += 1
            if issued < NSTEP and issued - (k + 1) < LA:
                dma(issued); issued += 1
        if k == 2:
            for tt in range(8):
                for q in range(2):
                    vm.issue(f'buffer_load_dword {v(MLR + q*8 + tt)}, {v(VML)}, s[{sW}:{sW+3}], s{sML} offen offset:{tt*256 + q*128}{ldf}', 'ml')
        if k == 16:
            vm.wait('ml'); side = factors()
        if k == XSTEP:
            a(f's_lshl_b32 s{sT}, s{sW8}, 11')
            for kk in range(2):
                a(f's_add_u32 m0, s{sT}, {XT + 1024*kk}')
                vm.issue(f'buffer_load_dwordx4 {v(VXO+kk)}, s[{sX}:{sX+3}], 0 offen lds', 'x')
            a(f's_add_u32 m0, s{sM0}, {ldsoff((issued - 1) // 4 * 4)}')
        if k >= 42 and (k - 32) % 8 == 2:
            tp = (k - 32) // 8 - 1
            side += [f'v_fmac_f32 {v(TT+j)}, {v(XA + 16*(tp & 1) + j)}, {v(MLR + tp)}' for j in range(16)]
        if hoist and k == 60: side += out_addr()
        if hoist and k == NSTEP - 3:
            a(f'ds_read_b128 {v(XR,4)}, {v(AO0)}'); a(f'ds_read_b128 {v(XR+4,4)}, {v(AO1)}')
            a('s_waitcnt lgkmcnt(0)')
        for _ in range(min(4, len(side))): a(side.pop(0))
    assert not side
    P.stamp()
    for j in range(16): a(f'v_fmac_f32 {v(TT+j)}, {v(XA + 16 + j)}, {v(MLR + 7)}')
    A0 = TT
    for hh in range(2):
        for r in range(4):
            a(f'v_permlane32_swap_b32 {v(A0 + 8*hh + r)}, {v(A0 + 8*hh + 4 + r)}')
    if not hoist:
        for l in out_addr(): a(l)
        a('s_waitcnt vmcnt(0)'); a('s_barrier')
        a(f'ds_read_b128 {v(XR,4)}, {v(AO0)}'); a(f'ds_read_b128 {v(XR+4,4)}, {v(AO1)}')
    a('s_waitcnt lgkmcnt(0)')
    for hh in range(2):
        for d in range(4):
            x = XR + 4*hh + d; c = A0 + 8*hh + 2*d
            a(f'v_lshlrev_b32 {t3}, 16, {v(x)}'); a(f'v_and_b32 {t4}, 0xffff0000, {v(x)}')
            a(f'v_add_f32 {v(c)}, {v(c)}, {t3}'); a(f'v_add_f32 {v(c+1)}, {v(c+1)}, {t4}')
            if delta:
                a(f'v_add_f32 {v(c)}, {f32(delta)}, {v(c)}'); a(f'v_add_f32 {v(c+1)}, {f32(delta)}, {v(c+1)}')
            a(f'v_cvt_pk_bf16_f32 {v(x)}, {v(c)}, {v(c+1)}')
        a(f'ds_write_b128 {v(AO0 if hh == 0 else AO1)}, {v(XR+4*hh,4)}')
    a('s_waitcnt lgkmcnt(0)'); a('s_barrier')
    P.stamp()
    a(f's_lshl_b32 s{sT}, s{sW8}, 11'); a(f's_add_u32 s{sT}, s{sT}, {XT}'); a(f'v_add_u32 {t0}, s{sT}, {v(VL16)}')
    a(f'ds_read_b128 {v(XR,4)}, {t0}'); a(f'ds_read_b128 {v(XR+4,4)}, {t0} offset:1024')
    a('s_waitcnt lgkmcnt(1)')
    a(f'buffer_store_dwordx4 {v(XR,4)}, {v(VXO)}, s[{sO}:{sO+3}], 0 offen')
    a('s_waitcnt lgkmcnt(0)')
    a(f'buffer_store_dwordx4 {v(XR+4,4)}, {v(VXO+1)}, s[{sO}:{sO+3}], 0 offen')
    P.stamp()
    if prof: a('s_waitcnt vmcnt(0)')
    P.stamp(); P.real(); P.finish(sW8, 4, 5)
    a.label('K3_END')
    if F and getattr(F, 'diag_end', None): F.diag_end(a)
    a('s_endpgm')
    if F: return a
    return dict(name=name, body=a.text(), grid=256, block=256, lds=XT + 8192, vgpr=128, agpr=0, sgpr=102 if prof else 64)
```

```python
import sys
sys.path.insert(0, 'gen')
from asm import *
from common import *
import k1, k2, k3
def build(diag=False, a1={}, a2={}, a3={}):
    a = Asm(); F = Sync()
    if diag:
        a('s_memrealtime s[74:75]')
        def diag_end(a):
            a('s_waitcnt vmcnt(0) lgkmcnt(0)'); a('s_memrealtime s[76:77]'); a('s_waitcnt lgkmcnt(0)')
            a(f's_mov_b32 s96, s4'); a(f's_mov_b32 s97, s5'); a(f's_mov_b32 s98, {WS_OFF + 32*MB}'); a(f's_mov_b32 s99, {SRD3}')
            a(f's_lshl_b32 s60, s2, 3'); a(f's_add_u32 s60, s60, s{F.sWV}'); a('s_lshl_b32 s60, s60, 7'); a(f's_add_u32 s60, s60, {PROF}')
            a('v_mov_b32 v2, 0'); a('s_mov_b64 exec, 1')
            a('v_mov_b32 v1, s74'); a('buffer_store_dword v1, v2, s[96:99], s60 offen')
            a('v_mov_b32 v1, s76'); a('buffer_store_dword v1, v2, s[96:99], s60 offen offset:4')
            a(f'v_mov_b32 v1, s{F.sCNT}'); a('buffer_store_dword v1, v2, s[96:99], s60 offen offset:8')
        F.diag_end = diag_end
    k1.build(A=a, F=F, **a1); k2.build(A=a, F=F, **a2); k3.build(A=a, F=F, **a3)
    return dict(name=KNAME, body=a.text(), grid=256, block=512, lds=131072, vgpr=256, agpr=0, sgpr=102)
if __name__ == '__main__':
    out = sys.argv[1]
    open(out, 'w').write(module([build(diag=len(sys.argv) > 2)]))
    print('wrote', out)
```
